```python
import torch

def _softmax(x, axis=-1):
    return torch.softmax(x, dim=axis)
def _gelu(x):
    return torch.nn.functional.gelu(x, approximate="tanh")
def _silu(x):
    return torch.nn.functional.silu(x)
def _sigmoid(x):
    return torch.sigmoid(x)
def _layernorm(x, axis=-1, eps=1e-5):
    m = x.mean(dim=axis, keepdim=True)
    v = x.var(dim=axis, keepdim=True, unbiased=False)
    return (x - m) / torch.sqrt(v + eps)
def _scatter_add(tgt, idx, src, axis=0):
    return tgt.clone().index_add_(axis, idx, src)
def _segment_sum(src, seg, n):
    out = torch.zeros((n,) + src.shape[1:], dtype=src.dtype)
    return out.index_add_(0, seg, src)
def _pad(x, pw):
    flat = tuple(v for pair in reversed(pw) for v in pair)
    return torch.nn.functional.pad(x, flat)

kernel_name = 'recurrent_scan__mha_block_cached__mixer_token_mlp__prompt'

def setup_inputs():

    _w = (lambda a: (lambda t: t.to(torch.bfloat16) if t.is_floating_point() else t)(torch.as_tensor(a)))
    def _A_setup():
        B, Sq, D = 1, 2048, 640
        H, Sk, Dh = 32, 2048, 128
        return {
            "x": _w((lambda *s: torch.randn(*s, dtype=torch.bfloat16) * 0.1)(B, Sq, D)),
            "k_cache": _w((lambda *s: torch.randn(*s, dtype=torch.bfloat16) * 0.8)(B, H, Sk, Dh)),
            "v_cache": _w((lambda *s: torch.randn(*s, dtype=torch.bfloat16) * 3.2)(B, H, Sk, Dh)),
            "wq": _w((lambda *s: torch.randn(*s, dtype=torch.bfloat16) * 0.8)(D, H * Dh) * (D ** -0.5)),
            "wo": _w((lambda *s: torch.randn(*s, dtype=torch.bfloat16) * 3.2)(H * Dh, D) * ((H * Dh) ** -0.5)),
        }
    _A_in = _A_setup()

    def _B_setup():
        B, S, D, F = 1, 2048, 640, 1728
        return {
            "x": _w((lambda *s: torch.randn(*s, dtype=torch.bfloat16) * 0.1)(B, S, D)),
            "w1": _w((lambda *s: torch.randn(*s, dtype=torch.bfloat16) * 3.2)(S, F) * (S ** -0.5)),
            "b1": _w((lambda *s: torch.randn(*s, dtype=torch.bfloat16) * 3.2)(F) * 0.02),
            "w2": _w((lambda *s: torch.randn(*s, dtype=torch.bfloat16) * 3.2)(F, S) * (F ** -0.5)),
            "b2": _w((lambda *s: torch.randn(*s, dtype=torch.bfloat16) * 3.2)(S) * 0.02),
        }
    _B_in = _B_setup()

    return {
        "A_x": _A_in["x"],
        "A_k_cache": _A_in["k_cache"],
        "A_v_cache": _A_in["v_cache"],
        "A_wq": _A_in["wq"],
        "A_wo": _A_in["wo"],
        "B_x": _B_in["x"],
        "B_w1": _B_in["w1"],
        "B_b1": _B_in["b1"],
        "B_w2": _B_in["w2"],
        "B_b2": _B_in["b2"],
    }

def reference(A_x, A_k_cache, A_v_cache, A_wq, A_wo, B_x, B_w1, B_b1, B_w2, B_b2):
    def _A_ref(x, k_cache, v_cache, wq, wo):
        B, Sq, D = x.shape
        H, Dh = 32, 128
        q = (lambda x, *d: x.permute(*d))((x @ wq).reshape(B, Sq, H, Dh), 0, 2, 1, 3)
        scores = torch.einsum("bhqd,bhkd->bhqk", q, k_cache) * (Dh ** -0.5)
        p = _softmax(scores, axis=-1)
        o = torch.einsum("bhqk,bhkd->bhqd", p, v_cache)
        return (lambda x, *d: x.permute(*d))(o, 0, 2, 1, 3).reshape(B, Sq, H * Dh) @ wo

    def _B_ref(x, w1, b1, w2, b2):
        B, S, D = x.shape
        h = _layernorm(x, axis=-1)
        u = torch.einsum("bsd,sf->bdf", h, w1) + b1
        u = _gelu(u)
        y = torch.einsum("bdf,fs->bds", u, w2) + b2
        return (lambda x, *d: x.permute(*d))(y, 0, 2, 1)

    x = A_x
    xn = _layernorm(x, axis=-1)
    s = _A_ref(xn, A_k_cache, A_v_cache, A_wq, A_wo)
    g = _silu(_B_ref(xn, B_w1, B_b1, B_w2, B_b2))
    return x + s * g
```

```python
class Em:
    def __init__(self):
        self.items = []
    def __call__(self, text):
        for t in text.strip("\n").split("\n"):
            t = t.strip()
            if t: self.items.append(("raw", t))
    def vm(self, tag, text): self.items.append(("vm", tag, text))
    def ds(self, tag, text): self.items.append(("ds", tag, text))
    def wvm(self, tag): self.items.append(("wait", tag, None))
    def wds(self, tag): self.items.append(("wait", None, tag))
    def wait(self, vtag, dtag): self.items.append(("wait", vtag, dtag))
    def add(self, item): self.items.append(item)
    def mark(self, name): self.items.append(("mark", name))

def resolve(items, vm_log=None, ds_log=None):
    vm_log = [] if vm_log is None else vm_log
    ds_log = [] if ds_log is None else ds_log
    out = []
    def cnt(log, tag, mx):
        if tag == "ALL": return 0
        idx = [i for i, t in enumerate(log) if t == tag]
        assert idx, f"wait on tag {tag} never issued"
        return min(len(log) - 1 - idx[-1], mx)
    for it in items:
        if it[0] == "raw": out.append(it[1])
        elif it[0] == "vm": vm_log.append(it[1]); out.append(it[2])
        elif it[0] == "ds": ds_log.append(it[1]); out.append(it[2])
        elif it[0] == "wait":
            s = "s_waitcnt"
            if it[1] is not None: s += f" vmcnt({cnt(vm_log, it[1], 63)})"
            if it[2] is not None: s += f" lgkmcnt({cnt(ds_log, it[2], 15)})"
            out.append(s)
        elif it[0] == "mark": out.append(("mark", it[1]))
    return out

def vr(b, n=1): return f"v{b}" if n == 1 else f"v[{b}:{b+n-1}]"
def ar(b, n=1): return f"a{b}" if n == 1 else f"a[{b}:{b+n-1}]"
def sr(b, n=1): return f"s{b}" if n == 1 else f"s[{b}:{b+n-1}]"

def srd(e, d, base_lo, base_hi, size, add_lo=None):
    if add_lo is None:
        e(f"s_mov_b32 s{d}, s{base_lo}\ns_mov_b32 s{d+1}, s{base_hi}")
    else:
        e(f"s_add_u32 s{d}, s{base_lo}, {add_lo}\ns_addc_u32 s{d+1}, s{base_hi}, 0")
    e(f"s_mov_b32 s{d+2}, {size}\ns_mov_b32 s{d+3}, 0x20000")

def kdesc(name, nv, ao, ns=102):
    return f""".p2align 6
.amdhsa_kernel {name}
  .amdhsa_next_free_vgpr {nv}
  .amdhsa_next_free_sgpr {ns}
  .amdhsa_accum_offset {ao}
  .amdhsa_group_segment_fixed_size 0
  .amdhsa_kernarg_size 104
  .amdhsa_user_sgpr_count 2
  .amdhsa_user_sgpr_kernarg_segment_ptr 1
  .amdhsa_system_sgpr_workgroup_id_x 1
.end_amdhsa_kernel"""

def khead(name):
    return f".globl {name}\n.p2align 8\n.type {name},@function\n{name}:"

import struct
def f2u(x): return struct.unpack("<I", struct.pack("<f", x))[0]
def fhex(x): return f"0x{f2u(x):08x}"
```

```python
from asmlib import *
from gen_prep import *
import math

V_LANE = 1
V_KA = 2
V_VA = 6
V_DM = 14
V_IDX = 16
V_T = 17
V_ONE = 28
V_Q = 32
V_S = 96
V_P = 160
V_M = 224
V_L = 240
A_O = 0
A_K = 128
A_V = 192
S_K, S_V, S_WQ, S_XN, S_OF, S_W1, S_HT, S_U, S_B1 = 4, 8, 12, 16, 20, 24, 28, 32, 36
S_W4K = 40
S_KOFF = 41
S_VOFF = 42
S_CNT = 43
S_WAVE = 44
S_PASS = 45
S_TS = 84
LDS_K, LDS_V = 0, 65536
LDS_FLAG = 131072
LAG = 10
MF = "v_mfma_f32_16x16x32_bf16"

def Sreg(kb, qb): return V_S + 16*kb + 4*qb
def Preg(par, qb, t): return V_P + 32*par + 8*qb + 4*t
def Qreg(qb, ks): return V_Q + 16*qb + 4*ks
def Kreg(kb, ks): return A_K + 16*kb + 4*ks
def Vreg(db, t): return A_V + 8*db + 4*t
def Oreg(db, qb): return A_O + 16*db + 4*qb

class Ctx:
    ts = False
    nts = 0

def stamp(e, idx):
    if not Ctx.ts: return
    e(f"s_memtime s[90:91]\ns_waitcnt lgkmcnt(0)\nv_mov_b32 v{V_T+9}, s90\nv_mov_b32 v{V_T+10}, {4*idx}")
    e.vm("ts", f"buffer_store_dword v{V_T+9}, v{V_T+10}, s[{S_TS}:{S_TS+3}], s88 offen")

def dma_kv(which, slot, tag):
    base = (LDS_K if which == "K" else LDS_V) + 16384*slot
    s, off = (S_K, S_KOFF) if which == "K" else (S_V, S_VOFF)
    m0 = ("raw", f"s_add_u32 m0, s{S_W4K}, {base}")
    d = [("vm", tag, f"buffer_load_dwordx4 v{V_DM+(n&1)}, s[{s}:{s+3}], s{off} offen offset:{1024*n} lds") for n in range(4)]
    inc = ("raw", f"s_add_u32 s{off}, s{off}, 16384")
    return m0, d, inc

def k_reads(slot, tag):
    return [("ds", tag, f"ds_read_b128 {ar(Kreg(kb,ks),4)}, v{V_KA+ks} offset:{16384*slot+4096*kb}") for kb in range(4) for ks in range(4)]

def v_reads(slot, tag):
    r = []
    for db in range(8):
        for t in range(2):
            for hj in range(2):
                r.append(("ds", (tag, db), f"ds_read_b64_tr_b16 {ar(Vreg(db,t)+2*hj,2)}, v{V_VA+db} offset:{16384*slot+4096*(2*t+hj)}"))
    return r

def attn_iter(e, i, do_qk=True, do_pv=True, first_pv=False, dma=True, wrap_in=True):
    NG = 132
    mf = [None]*NG
    gaps = [[] for _ in range(NG)]
    par = i & 1
    if do_qk:
        for n in range(64):
            kb, qb, ks = n//16, (n//4) % 4, n % 4
            c = vr(V_M+4*qb, 4) if ks == 0 else vr(Sreg(kb,qb), 4)
            mf[n] = f"{MF} {vr(Sreg(kb,qb),4)}, {ar(Kreg(kb,ks),4)}, {vr(Qreg(qb,ks),4)}, {c}"
    if do_pv:
        for m in range(64):
            db, qb, t = m//8, (m//2) % 4, m % 2
            c = "0" if (first_pv and t == 0) else ar(Oreg(db,qb), 4)
            mf[64+m] = f"{MF} {ar(Oreg(db,qb),4)}, {ar(Vreg(db,t),4)}, {vr(Preg(par,qb,t),4)}, {c}"
        for qb in range(4):
            mf[128+qb] = f"v_smfmac_f32_16x16x64_bf16 {vr(V_L+4*qb,4)}, {vr(V_ONE,4)}, {vr(Preg(par,qb,0),8)}, v{V_IDX}"
    if do_pv:
        for j, it in enumerate(v_reads(i % 4, ("V", i))): gaps[1+2*j].append(it)
        gaps[63].append(("wait", None, (("V", i), 5)))
        gaps[75].append(("wait", None, (("V", i), 7)))
    if do_qk and dma != "nok":
        kpos = [65,69,71,73,77,79,81,85,87,89,93,95,97,101,103,105]
        for p, it in zip(kpos, k_reads((i+2) % 4, ("K", i+2))): gaps[p].insert(0, it)
    if dma is True:
        m0, d, inc = dma_kv("K", (i+5) % 4, ("D", i))
        gaps[6].append(m0)
        for j in range(4): gaps[67+8*j].insert(0, d[j])
        gaps[91].append(inc)
        m0, d, inc = dma_kv("V", (i+3) % 4, ("D", i))
        gaps[95].append(m0)
        for j in range(4): gaps[99+8*j].insert(0, d[j])
        gaps[123].append(inc)
    def expi(x): return ("raw", f"v_exp_f32 v{V_S+x}, v{V_S+x}")
    def cvti(c, p):
        x = 2*c; kb, qb, r = x//16, (x//4) % 4, x % 4
        return ("raw", f"v_cvt_pk_bf16_f32 v{Preg(p,qb,kb//2)+2*(kb%2)+r//2}, v{V_S+x}, v{V_S+x+1}")
    for x in range(64):
        n = 2*x + LAG
        if n < NG:
            if do_qk: gaps[n].append(expi(x))
        elif wrap_in: gaps[n-NG].append(expi(x))
    for c in range(32):
        n = 4*c + LAG + 3
        if n < NG:
            if do_qk: gaps[n].append(cvti(c, par ^ 1))
        elif wrap_in: gaps[n-NG].append(cvti(c, par))
    if do_qk:
        vt = ("D", i-2) if dma is True else "ALL"
        gaps[131].append(("wait", vt, "ALL"))
        gaps[131].append(("raw", "s_barrier"))
    for n in range(NG):
        if mf[n] is not None: e(mf[n])
        elif gaps[n]: e("s_nop 0")
        for it in gaps[n]: e.add(it)

def xlane(e, v, t, op):
    e(f"v_mov_b32 v{t}, v{v}\ns_nop 1\nv_permlane16_swap_b32 v{t}, v{v}\ns_nop 1\n{op} v{v}, v{v}, v{t}")
    e(f"v_mov_b32 v{t}, v{v}\ns_nop 1\nv_permlane32_swap_b32 v{t}, v{v}\ns_nop 1\n{op} v{v}, v{v}, v{t}")

def qproj(e):
    V_WD, V_WA, V_XO = V_T, V_T+2, V_T+6
    S_WOFF, S_XOFF, S_TMP = 46, 47, 48
    ACC = V_S
    e(f"""v_lshrrev_b32 v{V_T+8}, 4, v{V_LANE}
    v_and_b32 v{V_T+9}, 15, v{V_LANE}
    v_lshlrev_b32 v{V_T+10}, 1, v{V_T+8}
    v_xor_b32 v{V_T+9}, v{V_T+9}, v{V_T+10}
    v_lshlrev_b32 v{V_T+9}, 4, v{V_T+9}
    v_lshl_add_u32 v{V_WD}, v{V_T+8}, 13, v{V_T+9}
    v_xor_b32 v{V_WD+1}, 128, v{V_WD}""")
    e(f"""v_lshrrev_b32 v{V_T+8}, 2, v{V_LANE}
    v_and_b32 v{V_T+9}, 7, v{V_T+8}
    v_lshlrev_b32 v{V_T+9}, 1, v{V_T+9}
    v_and_b32 v{V_T+10}, 3, v{V_LANE}
    v_xor_b32 v{V_T+9}, v{V_T+9}, v{V_T+10}
    v_lshlrev_b32 v{V_T+9}, 4, v{V_T+9}
    v_lshl_add_u32 v{V_WA}, v{V_T+8}, 8, v{V_T+9}
    v_add_u32 v{V_WA}, {LDS_V}, v{V_WA}
    v_xor_b32 v{V_WA+1}, 64, v{V_WA}
    v_xor_b32 v{V_WA+2}, 128, v{V_WA}
    v_xor_b32 v{V_WA+3}, 192, v{V_WA}
    v_lshlrev_b32 v{V_XO}, 4, v{V_LANE}
    s_lshl_b32 s{S_WOFF}, s{S_WAVE}, 17""")
    def slot(j): return (j+2) % 4
    def wq_dma(j):
        r = []
        for n in range(4):
            r.append([("raw", f"s_add_u32 m0, s{S_W4K}, {LDS_V+16384*slot(j)+1024*n}"),
                      ("raw", f"s_add_u32 s{S_TMP}, s{S_WOFF}, {j*64*8192+n*4*8192}"),
                      ("vm", ("W", j), f"buffer_load_dwordx4 v{V_WD+(n&1)}, s[{S_WQ}:{S_WQ+3}], s{S_TMP} offen lds")])
        return r
    def Xreg(j, qb, t): return A_O + 32*(j % 4) + 8*qb + 4*t
    def xn_ld(j):
        r = []
        for qb in range(4):
            r.append([("raw", f"s_add_u32 s{S_TMP+1}, s{S_XOFF}, {qb*20480+j*2048}"),
                      ("vm", ("X", j), f"buffer_load_dwordx4 {ar(Xreg(j,qb,0),4)}, v{V_XO}, s[{S_XN}:{S_XN+3}], s{S_TMP+1} offen")])
            r.append([("vm", ("X", j), f"buffer_load_dwordx4 {ar(Xreg(j,qb,1),4)}, v{V_XO}, s[{S_XN}:{S_XN+3}], s{S_TMP+1} offen offset:1024")])
        return r
    def Wreg(j, a, t): return (A_K if j % 2 == 0 else A_V) + 8*a + 4*t
    def w_reads(j):
        r = []
        for a in range(8):
            for t in range(2):
                for hj in range(2):
                    r.append(("ds", ("Wr", j), f"ds_read_b64_tr_b16 {ar(Wreg(j,a,t)+2*hj,2)}, v{V_WA+a//2} offset:{16384*slot(j)+4096*(2*t+hj)+8*(a&1)}"))
        return r
    def kv(which, tile):
        m0, d, inc = dma_kv(which, tile % 4, (which, "pre", tile))
        return [[m0, ("raw", "s_nop 0"), d[0]], [d[1]], [d[2]], [d[3], inc]]
    for j in range(4):
        for grp in wq_dma(j) + xn_ld(j):
            for it in grp: e.add(it)
    e.wvm(("W", 0)); e("s_barrier")
    for it in w_reads(0): e.add(it)
    for j in range(10):
        need = ("W", j+1) if j < 9 else ("K", "pre", 0)
        e.wvm(need); e.wvm(("X", j)); e.wds("ALL"); e("s_barrier")
        grps = []
        if j+4 < 10: grps += wq_dma(j+4)
        if 1 <= j and j+3 < 10: grps += xn_ld(j+3)
        if j == 5: grps += kv("K", 0)
        if j == 6: grps += kv("K", 1)
        if j == 7: grps += kv("K", 2) + kv("V", 0)
        if j == 8: grps += kv("K", 3) + kv("V", 1)
        rd = w_reads(j+1) if j < 9 else k_reads(0, ("K", 0))
        gaps = [[] for _ in range(64)]
        for k, it in enumerate(rd): gaps[(k*56)//len(rd) if len(rd) == 32 else 2*k].append(it)
        free = [n for n in range(64) if not gaps[n]]
        for k, grp in enumerate(grps): gaps[free[(k*len(free))//max(len(grps),1)]] += grp
        for m in range(64):
            a, qb, t = m//8, (m//2) % 4, m % 2
            d = vr(ACC+16*a+4*qb, 4)
            c = "0" if (j == 0 and t == 0) else d
            e(f"{MF} {d}, {ar(Wreg(j,a,t),4)}, {ar(Xreg(j,qb,t),4)}, {c}")
            for it in gaps[m]: e.add(it)
    e(f"s_mov_b32 s{S_TMP}, {fhex(math.log2(math.e)/math.sqrt(128.0))}\ns_nop 7")
    for a in range(8):
        for qb in range(4):
            r = ACC+16*a+4*qb
            for k in range(4): e(f"v_mul_f32 v{r+k}, s{S_TMP}, v{r+k}")
            q = Qreg(qb, a//2) + 2*(a & 1)
            e(f"v_cvt_pk_bf16_f32 v{q}, v{r}, v{r+1}\nv_cvt_pk_bf16_f32 v{q+1}, v{r+2}, v{r+3}")

def gemm1(e, name):
    S_FB, S_DT, S_A, S_B, S_T = 46, 47, 48, 49, 50
    V_WD, V_WA, V_L16 = 2, 4, 8
    ACC = 16
    WF = 96
    def Hreg(p, db, t): return 40*(p % 4) + 8*db + 4*t
    e(f"""s_lshr_b32 s{S_T}, s2, 3
    s_cmp_ge_u32 s{S_T}, 27
    s_cbranch_scc1 {name}_end
    s_and_b32 s{S_A}, s2, 7
    s_mul_i32 s{S_A}, s{S_A}, 27
    s_add_u32 s{S_T}, s{S_T}, s{S_A}
    s_lshr_b32 s{S_FB}, s{S_T}, 3
    s_and_b32 s{S_DT}, s{S_T}, 7""")
    e(f"""v_lshrrev_b32 v10, 3, v{V_LANE}
    v_and_b32 v11, 7, v{V_LANE}
    v_and_b32 v12, 6, v10
    v_xor_b32 v11, v11, v12
    v_mul_u32_u24 v10, 3456, v10
    v_lshl_add_u32 v{V_WD}, v11, 4, v10
    v_lshrrev_b32 v10, 2, v{V_LANE}
    v_and_b32 v12, 6, v10
    v_bfe_u32 v11, v{V_LANE}, 1, 1
    v_xor_b32 v11, v11, v12
    v_lshlrev_b32 v11, 4, v11
    v_lshl_add_u32 v11, v10, 7, v11
    v_and_b32 v12, 1, v{V_LANE}
    v_lshl_add_u32 v11, v12, 3, v11
    s_lshl_b32 s{S_T}, s{S_WAVE}, 15
    v_add_u32 v{V_WA}, s{S_T}, v11
    v_xor_b32 v{V_WA+1}, 32, v{V_WA}
    v_xor_b32 v{V_WA+2}, 64, v{V_WA}
    v_xor_b32 v{V_WA+3}, 96, v{V_WA}
    v_lshlrev_b32 v{V_L16}, 4, v{V_LANE}
    s_mul_i32 s{S_A}, s{S_WAVE}, {512*3456}
    s_lshl_b32 s{S_T+1}, s{S_FB}, 7
    s_add_u32 s{S_A}, s{S_A}, s{S_T+1}
    s_mul_i32 s{S_B}, s{S_DT}, {5*65536}
    s_lshl_b32 s{S_T+1}, s{S_WAVE}, 14
    s_add_u32 s{S_B}, s{S_B}, s{S_T+1}""")
    e(f"""v_lshrrev_b32 v10, 4, v{V_LANE}
    v_lshlrev_b32 v10, 3, v10
    s_lshl_b32 s{S_T+1}, s{S_FB}, 7
    s_lshl_b32 s{S_T+2}, s{S_WAVE}, 5
    s_add_u32 s{S_T+1}, s{S_T+1}, s{S_T+2}""")
    e.vm("b1", f"buffer_load_dwordx2 v[14:15], v10, s[{S_B1}:{S_B1+3}], s{S_T+1} offen")
    def loads(p):
        r = []
        for n in range(8):
            r.append([("raw", f"s_add_u32 m0, s{S_T}, {8192*(p%4)+1024*n}"),
                      ("raw", f"s_add_u32 s{S_T+1}, s{S_A}, {(64*p+8*n)*3456}"),
                      ("vm", ("w", p), f"buffer_load_dwordx4 v{V_WD}, s[{S_W1}:{S_W1+3}], s{S_T+1} offen lds")])
        for db in range(5):
            r.append([("raw", f"s_add_u32 s{S_T+2}, s{S_B}, {db*65536+p*2048}"),
                      ("vm", ("h", p), f"buffer_load_dwordx4 {ar(Hreg(p,db,0),4)}, v{V_L16}, s[{S_HT}:{S_HT+3}], s{S_T+2} offen")])
            r.append([("vm", ("h", p), f"buffer_load_dwordx4 {ar(Hreg(p,db,1),4)}, v{V_L16}, s[{S_HT}:{S_HT+3}], s{S_T+2} offen offset:1024")])
        return r
    def Wreg(p, fb, t): return WF + 32*(p % 2) + 8*fb + 4*t
    def reads(p):
        return [("ds", ("r", p), f"ds_read_b64_tr_b16 {vr(Wreg(p,fb,t)+2*hj,2)}, v{V_WA+fb} offset:{8192*(p%4)+2048*(2*t+hj)}")
                for fb in range(4) for t in range(2) for hj in range(2)]
    for p in range(3):
        for grp in loads(p):
            for it in grp: e.add(it)
    e.wvm(("w", 0))
    for it in reads(0): e.add(it)
    for p in range(8):
        if p < 7: e.wvm(("w", p+1))
        else: e.wvm(("h", p))
        e.wds(("r", p))
        gaps = [[] for _ in range(40)]
        if p < 7:
            for k, it in enumerate(reads(p+1)): gaps[2*k].append(it)
        if p+3 < 8:
            for k, grp in enumerate(loads(p+3)): gaps[2*k+1] += grp
        for m in range(40):
            fb, db, t = m//10, (m//2) % 5, m % 2
            d = vr(ACC+20*fb+4*db, 4)
            c = "0" if (p == 0 and t == 0) else d
            e(f"{MF} {d}, {vr(Wreg(p,fb,t),4)}, {ar(Hreg(p,db,t),4)}, {c}")
            for it in gaps[m]: e.add(it)
    e(f"""s_nop 7
    s_barrier
    s_mul_i32 s{S_T}, s{S_WAVE}, 20480
    v_add_u32 v10, s{S_T}, v{V_L16}
    s_mul_i32 s{S_T}, s{S_WAVE}, 5120
    v_add_u32 v11, s{S_T}, v{V_L16}""")
    for k in range(20): e(f"ds_write_b128 v10, {vr(ACC+4*k,4)} offset:{1024*k}")
    e("s_waitcnt lgkmcnt(0)\ns_barrier")
    e("v_add_u32 v12, 40960, v11")
    for w in range(4):
        for db in range(5):
            e(f"ds_read_b128 {vr(96+20*w+4*db,4)}, v{11+w//2} offset:{20480*(w%2)+1024*db}")
    e(f"""v_lshlrev_b32 v16, 16, v14
    v_and_b32 v17, 0xffff0000, v14
    v_lshlrev_b32 v18, 16, v15
    v_and_b32 v19, 0xffff0000, v15
    s_mov_b32 s{S_A}, {fhex(-2*math.log2(math.e)*math.sqrt(2/math.pi))}
    s_mov_b32 s{S_B}, {fhex(-2*math.log2(math.e)*math.sqrt(2/math.pi)*0.044715)}
    v_mov_b32 v20, s{S_A}
    s_waitcnt lgkmcnt(0)""")
    for k in range(20):
        x = 96+k
        e(f"v_add_f32 v{x}, v{x}, v{x+20}\nv_add_f32 v{x+40}, v{x+40}, v{x+60}\nv_add_f32 v{x}, v{x}, v{16+k%4}\nv_add_f32 v{x}, v{x}, v{x+40}")
    for k in range(20):
        x = 96+k
        e(f"v_mul_f32 v{x+20}, v{x}, v{x}\nv_fma_f32 v{x+20}, v{x+20}, s{S_B}, v20\nv_mul_f32 v{x+20}, v{x+20}, v{x}")
    for k in range(20): e(f"v_exp_f32 v{116+k}, v{116+k}")
    for k in range(20): e(f"v_add_f32 v{116+k}, 1.0, v{116+k}")
    for k in range(20): e(f"v_rcp_f32 v{116+k}, v{116+k}")
    for k in range(20): e(f"v_mul_f32 v{96+k}, v{96+k}, v{116+k}")
    for k in range(10): e(f"v_cvt_pk_bf16_f32 v{136+k}, v{96+2*k}, v{97+2*k}")
    e(f"""s_mul_i32 s{S_T}, s{S_DT}, {5*54*1024}
    s_lshl_b32 s{S_T+1}, s{S_FB}, 11
    s_add_u32 s{S_T}, s{S_T}, s{S_T+1}
    s_lshr_b32 s{S_T+1}, s{S_WAVE}, 1
    s_lshl_b32 s{S_T+1}, s{S_T+1}, 10
    s_add_u32 s{S_T}, s{S_T}, s{S_T+1}
    s_and_b32 s{S_T+1}, s{S_WAVE}, 1
    s_lshl_b32 s{S_T+1}, s{S_T+1}, 3
    s_add_u32 s{S_T}, s{S_T}, s{S_T+1}""")
    for db in range(5):
        e(f"buffer_store_dwordx2 {vr(136+2*db,2)}, v{V_L16}, s[{S_U}:{S_U+3}], s{S_T} offen")
        e(f"s_add_u32 s{S_T}, s{S_T}, {54*1024}")

def gen_attn(name, ts=False):
    Ctx.ts = ts
    e = Em()
    e(khead(name))
    e(f"s_cmp_ge_u32 s2, 256\ns_cbranch_scc1 {name}_end")
    e("""s_load_dwordx4 s[60:63], s[0:1], 8
    s_load_dwordx2 s[64:65], s[0:1], 24
    s_load_dwordx4 s[68:71], s[0:1], 48
    s_load_dwordx2 s[72:73], s[0:1], 96""")
    e(f"""v_and_b32 v{V_LANE}, 63, v0
    v_lshrrev_b32 v{V_T}, 6, v0
    s_and_b32 s50, s2, 7
    v_readfirstlane_b32 s{S_WAVE}, v{V_T}
    s_lshr_b32 s51, s2, 3
    s_lshr_b32 s52, s51, 3
    s_lshl_b32 s50, s50, 2
    s_add_u32 s50, s50, s52
    s_and_b32 s51, s51, 7
    s_lshl_b32 s{S_W4K}, s{S_WAVE}, 12
    s_mov_b32 s{S_KOFF}, s{S_W4K}
    s_mov_b32 s{S_VOFF}, s{S_W4K}
    s_mov_b32 s{S_PASS}, 0
    s_lshl_b32 s52, s50, 19
    s_lshl_b32 s53, s50, 8
    s_sub_u32 s54, {640*8192}, s53
    s_lshl_b32 s55, s51, 4
    s_lshl_b32 s56, s{S_WAVE}, 2
    s_add_u32 s55, s55, s56
    s_mul_i32 s47, s55, 20480
    s_lshl_b32 s57, s55, 17
    s_lshl_b32 s58, s50, 12
    s_add_u32 s57, s57, s58""")
    e(f"""v_and_b32 v{V_T}, 15, v{V_LANE}
    v_lshrrev_b32 v{V_T+1}, 4, v{V_LANE}
    v_and_b32 v{V_T+2}, 7, v{V_LANE}
    v_lshlrev_b32 v{V_T+2}, 1, v{V_T+2}
    v_xor_b32 v{V_T+2}, v{V_T+2}, v{V_T+1}
    v_lshlrev_b32 v{V_T+2}, 4, v{V_T+2}
    v_lshl_add_u32 v{V_KA}, v{V_T}, 8, v{V_T+2}
    v_xor_b32 v{V_KA+1}, 64, v{V_KA}
    v_xor_b32 v{V_KA+2}, 128, v{V_KA}
    v_xor_b32 v{V_KA+3}, 192, v{V_KA}""")
    e(f"""v_lshlrev_b32 v{V_T+2}, 1, v{V_T+1}
    v_xor_b32 v{V_T+2}, v{V_T+2}, v{V_T}
    v_lshlrev_b32 v{V_T+2}, 4, v{V_T+2}
    v_lshl_add_u32 v{V_DM}, v{V_T+1}, 8, v{V_T+2}
    v_xor_b32 v{V_DM+1}, 128, v{V_DM}""")
    e(f"""v_lshrrev_b32 v{V_T+2}, 2, v{V_LANE}
    v_and_b32 v{V_T+3}, 7, v{V_T+2}
    v_lshlrev_b32 v{V_T+3}, 1, v{V_T+3}
    v_bfe_u32 v{V_T+4}, v{V_LANE}, 1, 1
    v_xor_b32 v{V_T+3}, v{V_T+3}, v{V_T+4}
    v_lshlrev_b32 v{V_T+3}, 4, v{V_T+3}
    v_lshl_add_u32 v{V_T+3}, v{V_T+2}, 8, v{V_T+3}
    v_and_b32 v{V_T+4}, 1, v{V_LANE}
    v_lshl_add_u32 v{V_T+3}, v{V_T+4}, 3, v{V_T+3}
    v_add_u32 v{V_VA}, {LDS_V}, v{V_T+3}""")
    for db in range(1, 8): e(f"v_xor_b32 v{V_VA+db}, {32*db}, v{V_VA}")
    e(f"""v_mov_b32 v{V_T+5}, 0x3f803f80
    v_cmp_gt_u32 vcc, 2, v{V_T}
    v_mov_b32 v{V_T+6}, 0x44444444
    v_mov_b32 v{V_T+7}, 0xeeeeeeee
    v_cndmask_b32 v{V_ONE}, 0, v{V_T+5}, vcc
    v_cmp_eq_u32 vcc, 1, v{V_T+4}
    v_mov_b32 v{V_ONE+1}, v{V_ONE}
    v_mov_b32 v{V_ONE+2}, v{V_ONE}
    v_mov_b32 v{V_ONE+3}, v{V_ONE}
    v_cndmask_b32 v{V_IDX}, v{V_T+6}, v{V_T+7}, vcc
    v_mov_b32 v{V_T+5}, {LDS_FLAG}
    v_mov_b32 v{V_T+6}, 0
    ds_write_b32 v{V_T+5}, v{V_T+6}""")
    e("s_waitcnt lgkmcnt(0)")
    srd(e, S_K, 60, 61, 524288, "s52")
    srd(e, S_V, 62, 63, 524288, "s52")
    srd(e, S_WQ, 64, 65, "s54", "s53")
    srd(e, S_XN, 72, 73, XN_SZ, XN_OFF or None)
    srd(e, S_OF, 72, 73, OF_SZ, OF_OFF)
    srd(e, S_W1, 68, 69, 2048*3456)
    srd(e, S_B1, 70, 71, 3456)
    srd(e, S_HT, 72, 73, HT_SZ, HT_OFF)
    srd(e, S_U, 72, 73, U_SZ, U_OFF)
    if ts:
        srd(e, S_TS, 72, 73, 0x100000, TS_OFF)
        e(f"s_lshl_b32 s88, s2, 2\ns_add_u32 s88, s88, s{S_WAVE}\ns_lshl_b32 s88, s88, 6")
    stamp(e, 0)
    qproj(e)
    stamp(e, 1)
    e.wds("ALL")
    for qb in range(4):
        for ks in range(4):
            c = "0" if ks == 0 else vr(Sreg(0,qb), 4)
            e(f"{MF} {vr(Sreg(0,qb),4)}, {ar(Kreg(0,ks),4)}, {vr(Qreg(qb,ks),4)}, {c}")
    e("s_nop 7")
    for qb in range(4):
        s, m = Sreg(0,qb), V_M+4*qb
        e(f"v_max3_f32 v{m}, v{s}, v{s+1}, v{s+2}\nv_max_f32 v{m}, v{m}, v{s+3}")
    e(f"{name}_setm:")
    for qb in range(4):
        m = V_M+4*qb
        xlane(e, m, V_T, "v_max_f32")
        e(f"v_sub_f32 v{m}, 0, v{m}\nv_mov_b32 v{m+1}, v{m}\nv_mov_b32 v{m+2}, v{m}\nv_mov_b32 v{m+3}, v{m}")
    for k in range(16): e(f"v_mov_b32 v{V_L+k}, 0")
    e.wvm(("K", "pre", 1)); e("s_barrier")
    pre_items = e.items
    def alias(it):
        if it[0] == "vm" and it[1] in (("K","pre",2), ("V","pre",0)): return ("vm", ("D",-3), it[2])
        if it[0] == "vm" and it[1] in (("K","pre",3), ("V","pre",1)): return ("vm", ("D",-2), it[2])
        return it
    e.items = [alias(it) for it in pre_items]
    attn_iter(e, -1, do_pv=False, wrap_in=False)
    attn_iter(e, 0, first_pv=True)
    stamp(e, 2)
    e(f"s_mov_b32 s{S_CNT}, 7")
    e.mark("loop0")
    for i in range(1, 5): attn_iter(e, i)
    e.mark("loop1")
    for i in range(5, 9): attn_iter(e, i)
    e.mark("loop2")
    stamp(e, 3)
    attn_iter(e, 9, dma=False)
    attn_iter(e, 10, dma="nok")
    attn_iter(e, 11, do_qk=False, dma=False)
    stamp(e, 4)
    e("s_nop 7")
    e(f"s_mov_b32 s46, {fhex(2.0**40)}\ns_mov_b64 s[48:49], 0")
    for qb in range(4):
        l = V_L+4*qb
        e(f"v_add_f32 v{l}, v{l}, v{l+1}")
        xlane(e, l, V_T, "v_add_f32")
        e(f"v_cmp_nge_f32 vcc, s46, v{l}\nv_rcp_f32 v{l}, v{l}\ns_or_b64 s[48:49], s[48:49], vcc")
    e(f"""s_cmp_eq_u64 s[48:49], 0
    s_cbranch_scc1 {name}_noflag
    v_mov_b32 v{V_T}, {LDS_FLAG}
    v_mov_b32 v{V_T+1}, 1
    ds_write_b32 v{V_T}, v{V_T+1}
    {name}_noflag:
    v_lshlrev_b32 v{V_T+2}, 4, v{V_LANE}
    s_mov_b32 s46, s57""")
    for qb in range(4):
        for t in range(4):
            tmp = V_S + 16*((4*qb+t) % 4); pk = V_P + 4*((4*qb+t) % 8)
            for k in range(8): e(f"v_accvgpr_read_b32 v{tmp+k}, a{Oreg(2*t+k//4,qb)+k%4}")
            for k in range(8): e(f"v_mul_f32 v{tmp+k}, v{tmp+k}, v{V_L+4*qb}")
            for k in range(4): e(f"v_cvt_pk_bf16_f32 v{pk+k}, v{tmp+2*k}, v{tmp+2*k+1}")
            e.vm("o", f"buffer_store_dwordx4 {vr(pk,4)}, v{V_T+2}, s[{S_OF}:{S_OF+3}], s46 offen offset:{1024*t}")
        e("s_add_u32 s46, s46, 0x20000")
    e(f"""s_waitcnt lgkmcnt(0)
    s_barrier
    v_mov_b32 v{V_T}, {LDS_FLAG}
    ds_read_b32 v{V_T+1}, v{V_T}
    s_waitcnt lgkmcnt(0)
    v_readfirstlane_b32 s46, v{V_T+1}
    s_nop 3
    s_cmp_gt_u32 s46, s{S_PASS}
    s_cbranch_scc1 {name}_redo""")
    stamp(e, 5)
    gemm1(e, name)
    stamp(e, 6)
    e(f"{name}_end:\ns_endpgm")
    e(f"""{name}_redo:
    s_mov_b32 s{S_PASS}, 1
    s_mov_b32 s{S_KOFF}, s{S_W4K}
    s_mov_b32 s{S_CNT}, 32""")
    for qb in range(4): e(f"v_mov_b32 v{V_M+4*qb}, 0xff800000")
    e(f"{name}_mloop:")
    m0, d, inc = dma_kv("K", 0, "fb")
    e.add(m0); e("s_nop 0")
    for it in d: e.add(it)
    e.add(inc)
    e("s_waitcnt vmcnt(0)\ns_barrier")
    for it in k_reads(0, "fb"): e.add(it)
    e("s_waitcnt lgkmcnt(0)\ns_barrier")
    for n in range(64):
        kb, qb, ks = n//16, (n//4) % 4, n % 4
        c = "0" if ks == 0 else vr(Sreg(kb,qb), 4)
        e(f"{MF} {vr(Sreg(kb,qb),4)}, {ar(Kreg(kb,ks),4)}, {vr(Qreg(qb,ks),4)}, {c}")
    e("s_nop 7")
    for kb in range(4):
        for qb in range(4):
            s, m = Sreg(kb,qb), V_M+4*qb
            e(f"v_max3_f32 v{m}, v{m}, v{s}, v{s+1}\nv_max3_f32 v{m}, v{m}, v{s+2}, v{s+3}")
    e(f"s_sub_u32 s{S_CNT}, s{S_CNT}, 1\ns_cmp_lg_u32 s{S_CNT}, 0\ns_cbranch_scc1 {name}_mloop")
    e(f"s_mov_b32 s{S_KOFF}, s{S_W4K}\ns_mov_b32 s{S_VOFF}, s{S_W4K}")
    for which, tile in (("K",0),("K",1),("K",2),("V",0),("K",3),("V",1)):
        m0, d, inc = dma_kv(which, tile, "fb")
        e.add(m0); e("s_nop 0")
        for it in d: e.add(it)
        e.add(inc)
    e("s_waitcnt vmcnt(0)\ns_barrier")
    for it in k_reads(0, "fb"): e.add(it)
    e(f"s_waitcnt lgkmcnt(0)\ns_branch {name}_setm")
    lines = resolve(e.items)
    i0, i1, i2 = (lines.index(("mark", m)) for m in ("loop0", "loop1", "loop2"))
    b1, b2 = lines[i0+1:i1], lines[i1+1:i2]
    if not ts: assert b1 == b2, [(x, y) for x, y in zip(b1, b2) if x != y][:5]
    loop = [".p2align 6", f"{name}_loop:"] + b2 + [f"s_sub_u32 s{S_CNT}, s{S_CNT}, 1", f"s_cmp_lg_u32 s{S_CNT}, 0", f"s_cbranch_scc1 {name}_loop"]
    lines = lines[:i0] + loop + lines[i2+1:]
    return "\n".join(lines), kdesc(name, 512, 256, 96)
```

```python
from asmlib import *
from gen_prep import *
import math
MF = "v_mfma_f32_16x16x32_bf16"

def gen_final(name, ts=False):
    e = Em()
    S_X, S_W2, S_B2, S_OUT, S_OF, S_WOF, S_U, S_TS = 4, 8, 12, 16, 20, 24, 28, 32
    S_WAVE, S_RB, S_CT, S_LB, S_A, S_B, S_T, S_CNT = 40, 41, 42, 43, 44, 45, 48, 47
    V_LANE, V_L16, V_WD, V_WA = 1, 2, 3, 4
    ACS, ACY = 16, 96
    def stamp(idx):
        if not ts: return
        e(f"s_memtime s[90:91]\ns_waitcnt lgkmcnt(0)\nv_mov_b32 v14, s90\nv_mov_b32 v15, {4*idx}")
        e.vm("ts", f"buffer_store_dword v14, v15, s[{S_TS}:{S_TS+3}], s88 offen")
    e(khead(name))
    e(f"s_cmp_ge_u32 s2, 256\ns_cbranch_scc1 {name}_end")
    e("""s_load_dwordx2 s[60:61], s[0:1], 0
    s_load_dwordx4 s[64:67], s[0:1], 64
    s_load_dwordx2 s[68:69], s[0:1], 80
    s_load_dwordx2 s[72:73], s[0:1], 96""")
    e(f"""v_and_b32 v{V_LANE}, 63, v0
    v_lshrrev_b32 v10, 6, v0
    s_and_b32 s50, s2, 7
    v_readfirstlane_b32 s{S_WAVE}, v10
    s_lshr_b32 s51, s2, 3
    s_lshr_b32 s52, s51, 3
    s_lshl_b32 s50, s50, 2
    s_add_u32 s{S_RB}, s50, s52
    s_and_b32 s{S_CT}, s51, 7
    s_lshl_b32 s{S_LB}, s{S_WAVE}, 15
    v_lshlrev_b32 v{V_L16}, 4, v{V_LANE}""")
    e(f"""v_lshrrev_b32 v10, 3, v{V_LANE}
    v_and_b32 v11, 7, v{V_LANE}
    v_and_b32 v12, 6, v10
    v_xor_b32 v11, v11, v12
    v_lshlrev_b32 v10, 12, v10
    v_lshl_add_u32 v{V_WD}, v11, 4, v10
    v_lshrrev_b32 v10, 2, v{V_LANE}
    v_and_b32 v12, 6, v10
    v_bfe_u32 v11, v{V_LANE}, 1, 1
    v_xor_b32 v11, v11, v12
    v_lshlrev_b32 v11, 4, v11
    v_lshl_add_u32 v11, v10, 7, v11
    v_and_b32 v12, 1, v{V_LANE}
    v_lshl_add_u32 v11, v12, 3, v11
    v_add_u32 v{V_WA}, s{S_LB}, v11
    v_xor_b32 v{V_WA+1}, 32, v{V_WA}
    v_xor_b32 v{V_WA+2}, 64, v{V_WA}
    v_xor_b32 v{V_WA+3}, 96, v{V_WA}""")
    e("s_waitcnt lgkmcnt(0)")
    srd(e, S_X, 60, 61, 2048*1280)
    srd(e, S_W2, 64, 65, 1728*4096)
    srd(e, S_B2, 66, 67, 4096)
    srd(e, S_OUT, 68, 69, 2048*1280)
    srd(e, S_OF, 72, 73, OF_SZ, OF_OFF)
    srd(e, S_WOF, 72, 73, WOF_SZ, WOF_OFF)
    srd(e, S_U, 72, 73, U_SZ, U_OFF)
    if ts:
        srd(e, S_TS, 72, 73, 0x100000, TS_OFF+0x10000)
        e(f"s_lshl_b32 s88, s2, 2\ns_add_u32 s88, s88, s{S_WAVE}\ns_lshl_b32 s88, s88, 6")
    stamp(0)
    NY, NS = 7, 16
    S_YA, S_YB, S_SA, S_SB = 52, 53, 54, 55
    e(f"""s_mul_i32 s{S_YA}, s{S_WAVE}, {7*64*4096}
    s_lshl_b32 s{S_T}, s{S_RB}, 7
    s_add_u32 s{S_YA}, s{S_YA}, s{S_T}
    s_mul_i32 s{S_YB}, s{S_CT}, {5*54*1024}
    s_mul_i32 s{S_T}, s{S_WAVE}, {7*2048}
    s_add_u32 s{S_YB}, s{S_YB}, s{S_T}
    s_lshl_b32 s{S_SA}, s{S_RB}, 19
    s_lshl_b32 s{S_T}, s{S_WAVE}, 15
    s_add_u32 s{S_SA}, s{S_SA}, s{S_T}
    s_mul_i32 s{S_SB}, s{S_CT}, {5*0x20000}
    s_add_u32 s{S_SB}, s{S_SB}, s{S_T}""")
    def R(p, k, n=4):
        s = p % 4
        return ar(72*s+k, n) if s < 3 else vr(184+k, n)
    def Areg(p, db, t, n=4, o=0): return R(p, 8*db+4*t+o, n)
    def Breg(p, sb, t, n=4, o=0): return R(p, 40+8*sb+4*t+o, n)
    def loads(p):
        r = []
        if p < NY:
            for n in range(8):
                r.append([("raw", f"s_add_u32 m0, s{S_LB}, {8192*(p%4)+1024*n}"),
                          ("raw", f"s_add_u32 s{S_T}, s{S_YA}, {(64*p+8*n)*4096}"),
                          ("vm", ("w", p), f"buffer_load_dwordx4 v{V_WD}, s[{S_W2}:{S_W2+3}], s{S_T} offen lds")])
            for db in range(5):
                r.append([("raw", f"s_add_u32 s{S_T+1}, s{S_YB}, {db*54*1024+p*2048}"),
                          ("vm", ("a", p), f"buffer_load_dwordx4 {Areg(p,db,0)}, v{V_L16}, s[{S_U}:{S_U+3}], s{S_T+1} offen")])
                r.append([("vm", ("a", p), f"buffer_load_dwordx4 {Areg(p,db,1)}, v{V_L16}, s[{S_U}:{S_U+3}], s{S_T+1} offen offset:1024")])
        else:
            q = p-NY
            for sb in range(4):
                r.append([("raw", f"s_add_u32 s{S_T}, s{S_SA}, {sb*0x20000+q*2048}"),
                          ("vm", ("a", p), f"buffer_load_dwordx4 {Breg(p,sb,0)}, v{V_L16}, s[{S_OF}:{S_OF+3}], s{S_T} offen")])
                r.append([("vm", ("a", p), f"buffer_load_dwordx4 {Breg(p,sb,1)}, v{V_L16}, s[{S_OF}:{S_OF+3}], s{S_T} offen offset:1024")])
            for db in range(5):
                r.append([("raw", f"s_add_u32 s{S_T+1}, s{S_SB}, {db*0x20000+q*2048}"),
                          ("vm", ("a", p), f"buffer_load_dwordx4 {Areg(p,db,0)}, v{V_L16}, s[{S_WOF}:{S_WOF+3}], s{S_T+1} offen")])
                r.append([("vm", ("a", p), f"buffer_load_dwordx4 {Areg(p,db,1)}, v{V_L16}, s[{S_WOF}:{S_WOF+3}], s{S_T+1} offen offset:1024")])
        return r
    def reads(p):
        return [("ds", ("r", p), f"ds_read_b64_tr_b16 {Breg(p,sb,t,2,2*hj)}, v{V_WA+sb} offset:{8192*(p%4)+2048*(2*t+hj)}")
                for sb in range(4) for t in range(2) for hj in range(2)]
    NP = NY+NS
    for p in range(3):
        for grp in loads(p):
            for it in grp: e.add(it)
    e.wvm(("w", 0))
    for it in reads(0): e.add(it)
    XR = 176
    def epi_loads():
        r = [[("raw", f"v_and_b32 v10, 15, v{V_LANE}"), ("raw", f"v_lshrrev_b32 v11, 4, v{V_LANE}"),
              ("raw", "v_mul_u32_u24 v12, 1280, v10"), ("raw", "v_lshl_add_u32 v12, v11, 3, v12"), ("raw", "v_lshlrev_b32 v10, 1, v10"),
              ("raw", f"s_lshl_b32 s{S_A}, s{S_RB}, 2"), ("raw", f"s_add_u32 s{S_A}, s{S_A}, s{S_WAVE}"),
              ("raw", f"s_lshl_b32 s{S_B}, s{S_A}, 5"), ("raw", f"s_mul_i32 s{S_A}, s{S_A}, {16*1280}"),
              ("raw", f"s_mul_i32 s{S_T}, s{S_CT}, 160"), ("raw", f"s_add_u32 s{S_A}, s{S_A}, s{S_T}")]]
        r.append([("vm", "e", f"buffer_load_ushort v13, v10, s[{S_B2}:{S_B2+3}], s{S_B} offen")])
        for db in range(5):
            d = vr(XR+2*db, 2) if db < 4 else vr(8, 2)
            r.append([("vm", "e", f"buffer_load_dwordx2 {d}, v12, s[{S_X}:{S_X+3}], s{S_A} offen offset:{32*db}")])
        return r
    for p in range(NP):
        if p+1 < NY: e.wvm(("w", p+1))
        else: e.wvm(("a", p))
        if p < NY: e.wds(("r", p))
        gaps = [[] for _ in range(40)]
        if p+1 < NY:
            for k, it in enumerate(reads(p+1)): gaps[2*k].append(it)
        if p+3 < NP:
            for k, grp in enumerate(loads(p+3)): gaps[2*k+1] += grp
        if p+3 == NP:
            for k, grp in enumerate(epi_loads()): gaps[2*k+1] += grp
        acc = ACY if p < NY else ACS
        for m in range(40):
            db, sb, t = m//8, (m//2) % 4, m % 2
            d = vr(acc+16*db+4*sb, 4)
            c = "0" if (p in (0, NY) and t == 0) else d
            e(f"{MF} {d}, {Areg(p,db,t)}, {Breg(p,sb,t)}, {c}")
            for it in gaps[m]: e.add(it)
        if p == NY-1: stamp(1)
    stamp(2)
    e("s_nop 7\ns_barrier")
    for dw in range(1, 4):
        e(f"""s_add_u32 s{S_T}, s{S_WAVE}, {dw}
        s_and_b32 s{S_T}, s{S_T}, 3
        s_mul_i32 s{S_T+1}, s{S_T}, 30720
        s_add_u32 s{S_T+1}, s{S_T+1}, {10240*(dw-1)}
        v_add_u32 v10, s{S_T+1}, v{V_L16}""")
        for sbv in range(4):
            e(f"s_cmp_lg_u32 s{S_T}, {sbv}\ns_cbranch_scc1 {name}_w{dw}_{sbv}")
            for db in range(5):
                e(f"ds_write_b128 v10, {vr(ACS+16*db+4*sbv,4)} offset:{1024*db}")
                e(f"ds_write_b128 v10, {vr(ACY+16*db+4*sbv,4)} offset:{5120+1024*db}")
            e(f"{name}_w{dw}_{sbv}:")
    OWN = 184
    for sbv in range(4):
        e(f"s_cmp_lg_u32 s{S_WAVE}, {sbv}\ns_cbranch_scc1 {name}_o{sbv}")
        for db in range(5):
            for k in range(4):
                e(f"v_mov_b32 v{OWN+4*db+k}, v{ACS+16*db+4*sbv+k}")
                e(f"v_mov_b32 v{OWN+20+4*db+k}, v{ACY+16*db+4*sbv+k}")
        e(f"{name}_o{sbv}:")
    e(f"""s_mul_i32 s{S_T}, s{S_WAVE}, 30720
    v_add_u32 v10, s{S_T}, v{V_L16}
    s_waitcnt lgkmcnt(0)
    s_barrier""")
    for k in range(30): e(f"ds_read_b128 {vr(16+4*k,4)}, v10 offset:{1024*k}")
    e(f"s_mov_b32 s{S_T}, {fhex(-math.log2(math.e))}\ns_waitcnt vmcnt(0) lgkmcnt(0)")
    e("v_lshlrev_b32 v13, 16, v13")
    for k in range(40):
        e(f"v_add_f32 v{16+k}, v{16+k}, v{56+k}\nv_add_f32 v{OWN+k}, v{OWN+k}, v{96+k}\nv_add_f32 v{OWN+k}, v{OWN+k}, v{16+k}")
    Y = OWN+20
    for k in range(20): e(f"v_add_f32 v{Y+k}, v{Y+k}, v13")
    for k in range(20): e(f"v_mul_f32 v{16+k}, s{S_T}, v{Y+k}")
    for k in range(20): e(f"v_exp_f32 v{16+k}, v{16+k}")
    for k in range(20): e(f"v_add_f32 v{16+k}, 1.0, v{16+k}")
    for k in range(20): e(f"v_rcp_f32 v{16+k}, v{16+k}")
    for k in range(10):
        src = XR+k if k < 8 else k
        e(f"v_lshlrev_b32 v{40+2*k}, 16, v{src}\nv_and_b32 v{41+2*k}, 0xffff0000, v{src}")
    for k in range(20): e(f"v_mul_f32 v{16+k}, v{16+k}, v{Y+k}")
    for k in range(20): e(f"v_fmac_f32 v{40+k}, v{16+k}, v{OWN+k}")
    for k in range(10): e(f"v_cvt_pk_bf16_f32 v{60+k}, v{40+2*k}, v{41+2*k}")
    for db in range(5):
        e(f"buffer_store_dwordx2 {vr(60+2*db,2)}, v12, s[{S_OUT}:{S_OUT+3}], s{S_A} offen offset:{32*db}")
    stamp(3)
    e(f"{name}_end:\ns_endpgm")
    return "\n".join(resolve(e.items)), kdesc(name, 512, 256, 96)
```

```python
from asmlib import *
XN_OFF, XN_SZ = 0x0, 0x280000
HT_OFF, HT_SZ = 0x280000, 0x280000
U_OFF, U_SZ = 0x500000, 0x21C000
WOF_OFF, WOF_SZ = 0x800000, 0x500000
OF_OFF, OF_SZ = 0x1000000, 0x1000000
TS_OFF = 0x2000000

def allreduce32(e, v, t, op="v_add_f32"):
    for k in (8, 4, 2, 1):
        e("s_nop 1")
        e(f"{op}_dpp v{v}, v{v}, v{v} row_ror:{k} row_mask:0xf bank_mask:0xf")
    e(f"v_mov_b32 v{t}, v{v}")
    e("s_nop 1")
    e(f"v_permlane16_swap_b32 v{t}, v{v}")
    e("s_nop 1")
    e(f"{op} v{v}, v{v}, v{t}")

def round_bf16(e, v):
    e(f"v_cvt_pk_bf16_f32 v{v}, v{v}, v{v}")
    e(f"v_and_b32 v{v}, 0xffff0000, v{v}")

def unpack(e, src, dst, n):
    for i in range(n):
        e(f"v_lshlrev_b32 v{dst+2*i}, 16, v{src+i}")
        e(f"v_and_b32 v{dst+2*i+1}, 0xffff0000, v{src+i}")

def layernorm(e, X, D, OUT, A, B, T):
    e(f"v_add_f32 v{A}, v{X}, v{X+1}")
    e(f"v_add_f32 v{B}, v{X+2}, v{X+3}")
    for i in range(4, 20, 2):
        e(f"v_add_f32 v{A}, v{A}, v{X+i}")
        e(f"v_add_f32 v{B}, v{B}, v{X+i+1}")
    e(f"v_add_f32 v{A}, v{A}, v{B}")
    allreduce32(e, A, T)
    e(f"v_mul_f32 v{A}, {fhex(1.0/640)}, v{A}")
    for i in range(20): e(f"v_sub_f32 v{D+i}, v{X+i}, v{A}")
    e(f"v_mul_f32 v{B}, v{D}, v{D}")
    e(f"v_mul_f32 v{T+1}, v{D+1}, v{D+1}")
    for i in range(2, 20, 2):
        e(f"v_fmac_f32 v{B}, v{D+i}, v{D+i}")
        e(f"v_fmac_f32 v{T+1}, v{D+i+1}, v{D+i+1}")
    e(f"v_add_f32 v{B}, v{B}, v{T+1}")
    allreduce32(e, B, T)
    e(f"v_mul_f32 v{B}, {fhex(1.0/640)}, v{B}")
    round_bf16(e, A)
    round_bf16(e, B)
    e(f"v_add_f32 v{B}, {fhex(1e-5)}, v{B}")
    round_bf16(e, B)
    e(f"v_sqrt_f32 v{B}, v{B}")
    e("s_nop 0")
    round_bf16(e, B)
    e(f"v_rcp_f32 v{B}, v{B}")
    for i in range(20): e(f"v_sub_f32 v{D+i}, v{X+i}, v{A}")
    for i in range(10): e(f"v_cvt_pk_bf16_f32 v{OUT+i}, v{D+2*i}, v{D+2*i+1}")
    unpack(e, OUT, D, 10)
    for i in range(20): e(f"v_mul_f32 v{D+i}, v{D+i}, v{B}")
    for i in range(10): e(f"v_cvt_pk_bf16_f32 v{OUT+i}, v{D+2*i}, v{D+2*i+1}")

def gen_prep(name):
    e = Em()
    e(khead(name))
    e(f"s_cmp_ge_u32 s2, 256\ns_cbranch_scc1 {name}_end")
    e("s_load_dwordx2 s[4:5], s[0:1], 0\ns_load_dwordx2 s[6:7], s[0:1], 32\ns_load_dwordx2 s[8:9], s[0:1], 96")
    e("""v_lshrrev_b32 v1, 5, v0
    v_and_b32 v2, 31, v0
    s_lshr_b32 s10, s2, 2
    s_lshl_b32 s10, s10, 5
    s_and_b32 s11, s2, 3
    s_lshl_b32 s11, s11, 2
    s_add_u32 s10, s10, s11
    v_and_b32 v3, 3, v1
    v_lshrrev_b32 v4, 2, v1
    v_lshl_add_u32 v3, v4, 4, v3
    v_add_u32 v3, s10, v3
    v_mul_u32_u24 v3, 1280, v3
    v_lshl_add_u32 v3, v2, 3, v3
    v_lshrrev_b32 v4, 6, v0
    s_nop 0
    v_readfirstlane_b32 s33, v4
    v_and_b32 v5, 63, v0""")
    e("s_waitcnt lgkmcnt(0)")
    srd(e, 12, 4, 5, 2048*1280)
    srd(e, 16, 6, 7, 4096*1280)
    srd(e, 20, 8, 9, XN_SZ, XN_OFF or None)
    srd(e, 24, 8, 9, HT_SZ, HT_OFF)
    srd(e, 28, 8, 9, WOF_SZ, WOF_OFF)
    for j in range(5):
        e.vm("x", f"buffer_load_dwordx2 v[{10+2*j}:{11+2*j}], v3, s[12:15], 0 offen offset:{256*j}")
    e("""s_lshr_b32 s34, s2, 1
    s_mul_i32 s35, s34, 40960
    s_and_b32 s36, s2, 1
    s_mul_i32 s37, s36, 640
    s_add_u32 s35, s35, s37
    s_mul_i32 s38, s33, 320
    s_mul_i32 s39, s33, 5120
    s_mov_b32 s40, 52429""")
    for n in range(5):
        e(f"""v_add_u32 v6, s38, v5
        v_add_u32 v6, {64*n}, v6
        v_mul_lo_u32 v7, v6, s40
        v_lshrrev_b32 v7, 21, v7
        v_mul_u32_u24 v8, 40, v7
        v_sub_u32 v8, v6, v8
        v_mul_u32_u24 v7, 1280, v7
        v_lshl_add_u32 v7, v8, 4, v7
        s_add_u32 m0, s39, {1024*n}
        s_nop 0""")
        e.vm("wo", "buffer_load_dwordx4 v7, s[16:19], s35 offen lds")
    e.wvm("x")
    X, D, O1, O2 = 20, 40, 60, 70
    unpack(e, 10, X, 10)
    layernorm(e, X, D, O1, 80, 81, 82)
    unpack(e, O1, X, 10)
    layernorm(e, X, D, O2, 80, 81, 82)
    XS, HS = 20480, 30720
    e(f"v_mul_u32_u24 v6, 1280, v1\nv_lshl_add_u32 v6, v2, 3, v6")
    for j in range(5):
        e.ds("w", f"ds_write_b64 v6, v[{O1+2*j}:{O1+2*j+1}] offset:{XS+256*j}")
        e.ds("w", f"ds_write_b64 v6, v[{O2+2*j}:{O2+2*j+1}] offset:{HS+256*j}")
    e(f"""v_and_b32 v7, 3, v0
    v_bfe_u32 v8, v0, 2, 2
    v_bfe_u32 v9, v0, 4, 1
    v_lshrrev_b32 v10, 5, v0
    v_lshl_add_u32 v11, v9, 2, v7
    v_mul_u32_u24 v11, 1280, v11
    v_lshl_add_u32 v11, v10, 6, v11
    v_lshl_add_u32 v11, v8, 3, v11
    v_add_u32 v11, {XS}, v11
    s_lshr_b32 s41, s2, 2
    s_lshl_b32 s41, s41, 1
    v_add_u32 v12, s41, v9
    v_mul_u32_u24 v12, 20, v12
    v_add_u32 v12, v12, v10
    v_lshlrev_b32 v12, 6, v12
    v_lshl_add_u32 v12, v8, 4, v12
    v_add_u32 v12, v12, v7
    v_add_u32 v12, s11, v12
    v_lshlrev_b32 v12, 4, v12""")
    e(f"""v_bfe_u32 v13, v5, 2, 2
    v_mul_u32_u24 v13, 1280, v13
    v_lshrrev_b32 v14, 4, v5
    v_lshl_add_u32 v13, v14, 5, v13
    v_and_b32 v15, 3, v5
    v_lshl_add_u32 v13, v15, 3, v13
    s_lshl_b32 s42, s33, 7
    v_add_u32 v13, s42, v13
    v_add_u32 v13, {HS}, v13
    s_lshl_b32 s43, s33, 2
    v_add_u32 v16, s43, v14
    v_lshlrev_b32 v16, 16, v16
    v_and_b32 v17, 15, v5
    v_lshl_add_u32 v16, v17, 4, v16
    s_lshl_b32 s44, s2, 8
    v_add_u32 v16, s44, v16""")
    e(f"""v_lshrrev_b32 v18, 2, v5
    v_mul_u32_u24 v18, 640, v18
    v_lshl_add_u32 v18, v15, 3, v18
    s_mul_i32 s45, s33, 160
    v_add_u32 v18, s45, v18
    s_mul_i32 s46, s36, 20
    s_mul_i32 s47, s33, 5
    s_add_u32 s46, s46, s47
    s_lshl_b32 s46, s46, 17
    s_lshl_b32 s47, s34, 10
    s_add_u32 s46, s46, s47
    v_lshlrev_b32 v19, 4, v5""")
    e.wait("ALL", "ALL")
    e("s_barrier")
    for n in range(2):
        e.ds(f"x{n}", f"ds_read2_b64 v[{20+4*n}:{23+4*n}], v11 offset0:{64*n} offset1:{64*n+4}")
    for n in range(2):
        for hj in range(2):
            e.ds(f"h{n}", f"ds_read_b64_tr_b16 v[{32+4*n+2*hj}:{33+4*n+2*hj}], v13 offset:{512*n+5120*hj}")
    for f in range(5):
        for hj in range(2):
            e.ds(f"w{f}", f"ds_read_b64_tr_b16 v[{44+4*f+2*hj}:{45+4*f+2*hj}], v18 offset:{32*f+10240*hj}")
    e("s_mov_b32 s48, 8192\ns_mov_b32 s49, 0x100000\ns_mov_b32 s50, 0x200000\ns_mov_b32 s51, 16384")
    e.wds("x0"); e("buffer_store_dwordx4 v[20:23], v12, s[20:23], 0 offen")
    e.wds("x1"); e("buffer_store_dwordx4 v[24:27], v12, s[20:23], s48 offen")
    e.wds("h0"); e("buffer_store_dwordx4 v[32:35], v16, s[24:27], 0 offen")
    e.wds("h1"); e("buffer_store_dwordx4 v[36:39], v16, s[24:27], s49 offen")
    for f in range(5):
        e.wds(f"w{f}")
        e(f"buffer_store_dwordx4 v[{44+4*f}:{47+4*f}], v19, s[28:31], s46 offen")
        e("s_add_u32 s46, s46, 0x20000")
    e(f"s_cmp_ge_u32 s33, 2\ns_cbranch_scc1 {name}_end")
    e("ds_read2_b64 v[28:31], v11 offset0:128 offset1:132")
    for hj in range(2):
        e(f"ds_read_b64_tr_b16 v[{40+2*hj}:{41+2*hj}], v13 offset:{1024+5120*hj}")
    e("s_waitcnt lgkmcnt(0)")
    e("buffer_store_dwordx4 v[28:31], v12, s[20:23], s51 offen")
    e("buffer_store_dwordx4 v[40:43], v16, s[24:27], s50 offen")
    e(f"{name}_end:\ns_endpgm")
    return "\n".join(resolve(e.items)), kdesc(name, 88, 88, 64)
```

```python
import sys
from asmlib import *
from gen_prep import gen_prep
from gen_attn import gen_attn
from gen_final import gen_final
def build(ts=False):
    ref = open("recurrent_scan__mha_block_cached__mixer_token_mlp__prompt.s.ref").read().split("\n")
    head = [l for l in ref if l.startswith(";") and "@launch" not in l and "Override launch" not in l and "grid=ceil" not in l]
    ks = [("prep_kernel", gen_prep("prep_kernel", ts), 20480),
          ("attn_kernel", gen_attn("attn_kernel", ts), 131072+64),
          ("final_kernel", gen_final("final_kernel", ts), 131072)]
    out = head[:]
    for n, _, lds in ks: out.append(f"; @launch kernel={n} grid=(256,1,1) block=(256,1,1) lds={lds}")
    out.append('.amdgcn_target "amdgcn-amd-amdhsa--gfx950"\n.text')
    for _, (body, _d), _l in ks: out.append(body)
    out.append('.section .rodata,"a"')
    for _, (_b, d), _l in ks: out.append(d)
    return "\n".join(out) + "\n"
if __name__ == "__main__":
    open("recurrent_scan__mha_block_cached__mixer_token_mlp__prompt.s", "w").write(build(False))
    open("k_ts.s", "w").write(build(True))
```

```python
from asmlib import *
from gen_prep import *
import math

V_LANE = 1
V_KA = 2
V_VA = 6
V_DM = 14
V_IDX = 16
V_T = 17
V_ONE = 28
V_Q = 32
V_S = 96
V_P = 160
V_M = 224
V_L = 240
A_O = 0
A_K = 128
A_V = 192
S_K, S_V, S_WQ, S_XN, S_OF, S_W1, S_HT, S_U, S_B1 = 4, 8, 12, 16, 20, 24, 28, 32, 36
S_W4K = 40
S_KOFF = 41
S_VOFF = 42
S_CNT = 43
S_WAVE = 44
S_PASS = 45
S_W2, S_WO, S_WOF = 76, 80, 64
S_PF = 59
V_PFA, V_PFD = 24, 25
S_TS = 84
LDS_K, LDS_V = 0, 65536
LDS_FLAG = 131072
LAG = 10
MF = "v_mfma_f32_16x16x32_bf16"

def Sreg(kb, qb): return V_S + 16*kb + 4*qb
def Preg(par, qb, t): return V_P + 32*par + 8*qb + 4*t
def Qreg(qb, ks): return V_Q + 16*qb + 4*ks
def Kreg(kb, ks): return A_K + 16*kb + 4*ks
def Vreg(db, t): return A_V + 8*db + 4*t
def Oreg(db, qb): return A_O + 16*db + 4*qb

class Ctx:
    ts = False
    nts = 0

def stamp(e, idx):
    if not Ctx.ts: return
    e(f"s_memtime s[90:91]\ns_memrealtime s[92:93]\ns_waitcnt lgkmcnt(0)\nv_mov_b32 v{V_T+9}, s90\nv_mov_b32 v{V_T+10}, {4*idx}\nv_mov_b32 v{V_T+8}, s92")
    e.vm("ts", f"buffer_store_dword v{V_T+9}, v{V_T+10}, s[{S_TS}:{S_TS+3}], s88 offen")
    e.vm("ts", f"buffer_store_dword v{V_T+8}, v{V_T+10}, s[{S_TS}:{S_TS+3}], s88 offen offset:32")

def dma_kv(which, slot, tag):
    base = (LDS_K if which == "K" else LDS_V) + 16384*slot
    s, off = (S_K, S_KOFF) if which == "K" else (S_V, S_VOFF)
    m0 = ("raw", f"s_add_u32 m0, s{S_W4K}, {base}")
    d = [("vm", tag, f"buffer_load_dwordx4 v{V_DM+(n&1)}, s[{s}:{s+3}], s{off} offen offset:{1024*n} lds") for n in range(4)]
    inc = ("raw", f"s_add_u32 s{off}, s{off}, 16384")
    return m0, d, inc

def k_reads(slot, tag):
    return [("ds", tag, f"ds_read_b128 {ar(Kreg(kb,ks),4)}, v{V_KA+ks} offset:{16384*slot+4096*kb}") for kb in range(4) for ks in range(4)]

def v_reads(slot, tag):
    r = []
    for db in range(8):
        for t in range(2):
            for hj in range(2):
                r.append(("ds", (tag, db), f"ds_read_b64_tr_b16 {ar(Vreg(db,t)+2*hj,2)}, v{V_VA+db} offset:{16384*slot+4096*(2*t+hj)}"))
    return r

def attn_iter(e, i, do_qk=True, do_pv=True, first_pv=False, dma=True, wrap_in=True, extra=None, pf=False, endbar=True, late=None):
    NG = 132
    mf = [None]*NG
    gaps = [[] for _ in range(NG)]
    par = i & 1
    if do_qk:
        for n in range(64):
            kb, qb, ks = n//16, (n//4) % 4, n % 4
            c = vr(V_M+4*qb, 4) if ks == 0 else vr(Sreg(kb,qb), 4)
            mf[n] = f"{MF} {vr(Sreg(kb,qb),4)}, {ar(Kreg(kb,ks),4)}, {vr(Qreg(qb,ks),4)}, {c}"
    if do_pv:
        for m in range(64):
            db, qb, t = m//8, (m//2) % 4, m % 2
            c = "0" if (first_pv and t == 0) else ar(Oreg(db,qb), 4)
            mf[64+m] = f"{MF} {ar(Oreg(db,qb),4)}, {ar(Vreg(db,t),4)}, {vr(Preg(par,qb,t),4)}, {c}"
        for qb in range(4):
            mf[128+qb] = f"v_smfmac_f32_16x16x64_bf16 {vr(V_L+4*qb,4)}, {vr(V_ONE,4)}, {vr(Preg(par,qb,0),8)}, v{V_IDX}"
    if do_pv:
        for j, it in enumerate(v_reads(i % 4, ("V", i))): gaps[1+2*j].append(it)
        gaps[63].append(("wait", None, (("V", i), 5)))
        gaps[75].append(("wait", None, (("V", i), 7)))
    if do_qk and dma != "nok":
        kpos = [65,69,71,73,77,79,81,85,87,89,93,95,97,101,103,105]
        for p, it in zip(kpos, k_reads((i+2) % 4, ("K", i+2))): gaps[p].insert(0, it)
    if dma is True:
        m0, d, inc = dma_kv("K", (i+5) % 4, ("D", i))
        gaps[6].append(m0)
        for j in range(4): gaps[67+8*j].insert(0, d[j])
        gaps[91].append(inc)
        m0, d, inc = dma_kv("V", (i+3) % 4, ("D", i))
        gaps[95].append(m0)
        for j in range(4): gaps[99+8*j].insert(0, d[j])
        gaps[123].append(inc)
    if pf:
        k = i % 4
        if k in (1, 2, 3):
            sp = {1: S_W1, 2: S_W2, 3: S_WO}[k]
            gaps[8].insert(0, ("vm", ("D", i), f"buffer_load_dword v{V_PFD}, v{V_PFA}, s[{sp}:{sp+3}], s{S_PF} offen"))
        else:
            gaps[8].append(("raw", f"s_add_u32 s{S_PF}, s{S_PF}, 1024"))
    if extra:
        for pos, grp in extra: gaps[pos] = list(grp) + gaps[pos]
    if late:
        for pos, grp in late: gaps[pos] += list(grp)
    def expi(x): return ("raw", f"v_exp_f32 v{V_S+x}, v{V_S+x}")
    def cvti(c, p):
        x = 2*c; kb, qb, r = x//16, (x//4) % 4, x % 4
        return ("raw", f"v_cvt_pk_bf16_f32 v{Preg(p,qb,kb//2)+2*(kb%2)+r//2}, v{V_S+x}, v{V_S+x+1}")
    for x in range(64):
        n = 2*x + LAG
        if n < NG:
            if do_qk: gaps[n].append(expi(x))
        elif wrap_in: gaps[n-NG].append(expi(x))
    for c in range(32):
        n = 4*c + LAG + 3
        if n < NG:
            if do_qk: gaps[n].append(cvti(c, par ^ 1))
        elif wrap_in: gaps[n-NG].append(cvti(c, par))
    if do_qk and endbar:
        vt = ("D", i-2) if dma is True else "ALL"
        gaps[131].append(("wait", vt, "ALL"))
        gaps[131].append(("raw", "s_barrier"))
    for n in range(NG):
        if mf[n] is not None: e(mf[n])
        elif gaps[n]: e("s_nop 0")
        for it in gaps[n]: e.add(it)

def xlane(e, v, t, op):
    e(f"v_mov_b32 v{t}, v{v}\ns_nop 1\nv_permlane16_swap_b32 v{t}, v{v}\ns_nop 1\n{op} v{v}, v{v}, v{t}")
    e(f"v_mov_b32 v{t}, v{v}\ns_nop 1\nv_permlane32_swap_b32 v{t}, v{v}\ns_nop 1\n{op} v{v}, v{v}, v{t}")

def qproj(e):
    V_WD, V_WA, V_XO = V_T, V_T+2, V_T+6
    S_WOFF, S_XOFF, S_TMP = 46, 47, 48
    ACC = V_S
    e(f"""v_lshrrev_b32 v{V_T+8}, 4, v{V_LANE}
    v_and_b32 v{V_T+9}, 15, v{V_LANE}
    v_lshlrev_b32 v{V_T+10}, 1, v{V_T+8}
    v_xor_b32 v{V_T+9}, v{V_T+9}, v{V_T+10}
    v_lshlrev_b32 v{V_T+9}, 4, v{V_T+9}
    v_lshl_add_u32 v{V_WD}, v{V_T+8}, 13, v{V_T+9}
    v_xor_b32 v{V_WD+1}, 128, v{V_WD}""")
    e(f"""v_lshrrev_b32 v{V_T+8}, 2, v{V_LANE}
    v_and_b32 v{V_T+9}, 7, v{V_T+8}
    v_lshlrev_b32 v{V_T+9}, 1, v{V_T+9}
    v_and_b32 v{V_T+10}, 3, v{V_LANE}
    v_xor_b32 v{V_T+9}, v{V_T+9}, v{V_T+10}
    v_lshlrev_b32 v{V_T+9}, 4, v{V_T+9}
    v_lshl_add_u32 v{V_WA}, v{V_T+8}, 8, v{V_T+9}
    v_add_u32 v{V_WA}, {LDS_V}, v{V_WA}
    v_xor_b32 v{V_WA+1}, 64, v{V_WA}
    v_xor_b32 v{V_WA+2}, 128, v{V_WA}
    v_xor_b32 v{V_WA+3}, 192, v{V_WA}
    v_lshlrev_b32 v{V_XO}, 4, v{V_LANE}
    s_lshl_b32 s{S_WOFF}, s{S_WAVE}, 17""")
    def slot(j): return (j+2) % 4
    def wq_dma(j):
        r = []
        for n in range(4):
            r.append([("raw", f"s_add_u32 m0, s{S_W4K}, {LDS_V+16384*slot(j)+1024*n}"),
                      ("raw", f"s_add_u32 s{S_TMP}, s{S_WOFF}, {j*64*8192+n*4*8192}"),
                      ("vm", ("W", j), f"buffer_load_dwordx4 v{V_WD+(n&1)}, s[{S_WQ}:{S_WQ+3}], s{S_TMP} offen lds")])
        return r
    def Xreg(j, qb, t): return A_O + 32*(j % 4) + 8*qb + 4*t
    def xn_ld(j):
        r = []
        for qb in range(4):
            r.append([("raw", f"s_add_u32 s{S_TMP+1}, s{S_XOFF}, {qb*20480+j*2048}"),
                      ("vm", ("X", j), f"buffer_load_dwordx4 {ar(Xreg(j,qb,0),4)}, v{V_XO}, s[{S_XN}:{S_XN+3}], s{S_TMP+1} offen")])
            r.append([("vm", ("X", j), f"buffer_load_dwordx4 {ar(Xreg(j,qb,1),4)}, v{V_XO}, s[{S_XN}:{S_XN+3}], s{S_TMP+1} offen offset:1024")])
        return r
    def Wreg(j, a, t): return (A_K if j % 2 == 0 else A_V) + 8*a + 4*t
    def w_reads(j):
        r = []
        for a in range(8):
            for t in range(2):
                for hj in range(2):
                    r.append(("ds", ("Wr", j), f"ds_read_b64_tr_b16 {ar(Wreg(j,a,t)+2*hj,2)}, v{V_WA+a//2} offset:{16384*slot(j)+4096*(2*t+hj)+8*(a&1)}"))
        return r
    def kv(which, tile):
        m0, d, inc = dma_kv(which, tile % 4, (which, "pre", tile))
        return [[m0, ("raw", "s_nop 0"), d[0]], [d[1]], [d[2]], [d[3], inc]]
    for j in range(4):
        for grp in wq_dma(j) + xn_ld(j):
            for it in grp: e.add(it)
    e.wvm(("W", 0)); e("s_barrier")
    for it in w_reads(0): e.add(it)
    for j in range(10):
        need = ("W", j+1) if j < 9 else ("K", "pre", 0)
        e.wvm(need); e.wvm(("X", j)); e.wds("ALL"); e("s_barrier")
        grps = []
        if j+4 < 10: grps += wq_dma(j+4)
        if 1 <= j and j+3 < 10: grps += xn_ld(j+3)
        if j == 5: grps += kv("K", 0)
        if j == 6: grps += kv("K", 1)
        if j == 7: grps += kv("K", 2) + kv("V", 0)
        if j == 8: grps += kv("K", 3) + kv("V", 1)
        rd = w_reads(j+1) if j < 9 else k_reads(0, ("K", 0))
        gaps = [[] for _ in range(64)]
        for k, it in enumerate(rd): gaps[(k*56)//len(rd) if len(rd) == 32 else 2*k].append(it)
        free = [n for n in range(64) if not gaps[n]]
        for k, grp in enumerate(grps): gaps[free[(k*len(free))//max(len(grps),1)]] += grp
        for m in range(64):
            a, qb, t = m//8, (m//2) % 4, m % 2
            d = vr(ACC+16*a+4*qb, 4)
            c = "0" if (j == 0 and t == 0) else d
            e(f"{MF} {d}, {ar(Wreg(j,a,t),4)}, {ar(Xreg(j,qb,t),4)}, {c}")
            for it in gaps[m]: e.add(it)
    e(f"s_mov_b32 s{S_TMP}, {fhex(math.log2(math.e)/math.sqrt(128.0))}\ns_nop 7")
    for a in range(8):
        for qb in range(4):
            r = ACC+16*a+4*qb
            for k in range(4): e(f"v_mul_f32 v{r+k}, s{S_TMP}, v{r+k}")
            q = Qreg(qb, a//2) + 2*(a & 1)
            e(f"v_cvt_pk_bf16_f32 v{q}, v{r}, v{r+1}\nv_cvt_pk_bf16_f32 v{q+1}, v{r+2}, v{r+3}")

class G1:
    S_FB, S_DT, S_A, S_B, S_T, S_LB = 46, 47, 48, 49, 50, 53
    V_WD, V_WA, V_L16, V_B1 = 14, 2, 15, 18
    @staticmethod
    def acc(fb, db):
        k = 5*fb+db
        return V_S+4*k if k < 16 else V_M+4*(k-16)
    @staticmethod
    def H(p, db, t):
        s, k = p % 4, 2*db+t
        if s == 0: return ar(A_K+4*k, 4)
        if s == 1: return vr(V_Q+4*k, 4)
        if s == 2: return ar(A_K+40+4*k, 4) if k < 6 else vr(V_Q+40+4*(k-6), 4)
        return ar(A_V+4*k, 4)
    @staticmethod
    def W(p, fb, t): return V_P + 32*(p % 2) + 8*fb + 4*t
    @classmethod
    def setup(c):
        T = V_T+3
        L = f"""s_lshr_b32 s{c.S_T}, s2, 3
        s_and_b32 s{c.S_A}, s2, 7
        s_mul_i32 s{c.S_A}, s{c.S_A}, 27
        s_add_u32 s{c.S_T}, s{c.S_T}, s{c.S_A}
        s_lshr_b32 s{c.S_FB}, s{c.S_T}, 3
        s_and_b32 s{c.S_DT}, s{c.S_T}, 7
        s_mul_i32 s{c.S_LB}, s{S_WAVE}, 24576
        s_mul_i32 s{c.S_A}, s{S_WAVE}, {512*3456}
        s_lshl_b32 s{c.S_T+1}, s{c.S_FB}, 7
        s_add_u32 s{c.S_A}, s{c.S_A}, s{c.S_T+1}
        s_mul_i32 s{c.S_B}, s{c.S_DT}, {5*65536}
        s_lshl_b32 s{c.S_T+1}, s{S_WAVE}, 14
        s_add_u32 s{c.S_B}, s{c.S_B}, s{c.S_T+1}
        v_lshrrev_b32 v{T}, 3, v{V_LANE}
        v_and_b32 v{T+1}, 7, v{V_LANE}
        v_and_b32 v{T+2}, 6, v{T}
        v_xor_b32 v{T+1}, v{T+1}, v{T+2}
        v_mul_u32_u24 v{T}, 3456, v{T}
        v_lshl_add_u32 v{c.V_WD}, v{T+1}, 4, v{T}
        v_lshlrev_b32 v{c.V_L16}, 4, v{V_LANE}
        v_lshrrev_b32 v{T}, 2, v{V_LANE}
        v_and_b32 v{T+2}, 6, v{T}
        v_bfe_u32 v{T+1}, v{V_LANE}, 1, 1
        v_xor_b32 v{T+1}, v{T+1}, v{T+2}
        v_lshlrev_b32 v{T+1}, 4, v{T+1}
        v_lshl_add_u32 v{T+1}, v{T}, 7, v{T+1}
        v_and_b32 v{T+2}, 1, v{V_LANE}
        v_lshl_add_u32 v{T+1}, v{T+2}, 3, v{T+1}
        v_add_u32 v{T+1}, s{c.S_LB}, v{T+1}"""
        for fb in range(4):
            L += f"""
            s_add_u32 s{c.S_T+1}, s{S_WAVE}, {fb}
            s_and_b32 s{c.S_T+1}, s{c.S_T+1}, 3
            s_lshl_b32 s{c.S_T+1}, s{c.S_T+1}, 5
            v_xor_b32 v{c.V_WA+fb}, s{c.S_T+1}, v{T+1}"""
        L += f"""
        v_lshrrev_b32 v{T}, 4, v{V_LANE}
        v_lshlrev_b32 v{T}, 3, v{T}
        s_lshl_b32 s{c.S_T+1}, s{c.S_FB}, 7
        s_lshl_b32 s{c.S_T+2}, s{S_WAVE}, 5
        s_add_u32 s{c.S_T+1}, s{c.S_T+1}, s{c.S_T+2}"""
        r = [("raw", x.strip()) for x in L.split("\n")]
        r.append(("vm", "b1", f"buffer_load_dwordx2 v[{c.V_B1}:{c.V_B1+1}], v{T}, s[{S_B1}:{S_B1+3}], s{c.S_T+1} offen"))
        return r
    @classmethod
    def wl(c, p):
        return [[("raw", f"s_add_u32 m0, s{c.S_LB}, {8192*(p%3)+1024*n}"),
                 ("raw", f"s_add_u32 s{c.S_T+1}, s{c.S_A}, {(64*p+8*n)*3456}"),
                 ("vm", ("w", p), f"buffer_load_dwordx4 v{c.V_WD}, s[{S_W1}:{S_W1+3}], s{c.S_T+1} offen lds")] for n in range(8)]
    @classmethod
    def hl(c, p):
        r = []
        for db in range(5):
            r.append([("raw", f"s_add_u32 s{c.S_T+2}, s{c.S_B}, {db*65536+p*2048}"),
                      ("vm", ("h", p), f"buffer_load_dwordx4 {c.H(p,db,0)}, v{c.V_L16}, s[{S_HT}:{S_HT+3}], s{c.S_T+2} offen")])
            r.append([("vm", ("h", p), f"buffer_load_dwordx4 {c.H(p,db,1)}, v{c.V_L16}, s[{S_HT}:{S_HT+3}], s{c.S_T+2} offen offset:1024")])
        return r
    @classmethod
    def reads(c, p):
        return [("ds", ("r", p), f"ds_read_b64_tr_b16 {vr(c.W(p,fb,t)+2*hj,2)}, v{c.V_WA+fb} offset:{8192*(p%3)+2048*(2*t+hj)}")
                for fb in range(4) for t in range(2) for hj in range(2)]

S_OST = 57
def o_frag_items(k, tmp, pk, va):
    qb, t = k//4, k % 4
    r = [("raw", f"v_accvgpr_read_b32 v{tmp+j}, a{Oreg(2*t+j//4,qb)+j%4}") for j in range(8)]
    r += [("raw", f"v_mul_f32 v{tmp+j}, v{tmp+j}, v{V_L+4*qb}") for j in range(8)]
    r += [("raw", f"v_cvt_pk_bf16_f32 v{pk+j}, v{tmp+2*j}, v{tmp+2*j+1}") for j in range(4)]
    r.append(("vm", "o", f"buffer_store_dwordx4 {vr(pk,4)}, v{va}, s[{S_OF}:{S_OF+3}], s{S_OST} offen offset:{1024*t}"))
    if t == 3: r.append(("raw", f"s_add_u32 s{S_OST}, s{S_OST}, 0x20000"))
    return r

def rowsum_check(e, name, sfx):
    e("s_nop 7")
    e(f"s_mov_b32 s56, {fhex(2.0**40)}\ns_mov_b64 s[54:55], 0")
    for qb in range(4):
        l = V_L+4*qb
        e(f"v_add_f32 v{l}, v{l}, v{l+1}")
        xlane(e, l, l+1, "v_add_f32")
        e(f"v_cmp_nge_f32 vcc, s56, v{l}\nv_rcp_f32 v{l}, v{l}\ns_or_b64 s[54:55], s[54:55], vcc")
    e(f"""s_cmp_eq_u64 s[54:55], 0
    s_cbranch_scc1 {name}_noflag{sfx}
    v_mov_b32 v{V_L+1}, {LDS_FLAG}
    v_mov_b32 v{V_L+2}, 1
    ds_write_b32 v{V_L+1}, v{V_L+2}
    s_waitcnt lgkmcnt(0)
    {name}_noflag{sfx}:""")

def tail_gemm1(e, name):
    c = G1
    su = c.setup()
    ex = []
    pos = [n for n in range(3, 64, 4)]
    per = -(-len(su)//len(pos))
    ex30 = []
    for k, p in enumerate(pos): ex30.append((p+0, su[k*per:(k+1)*per]))
    w = c.wl(0)+c.wl(1)+c.wl(2)
    wpos = [n for n in range(65, 131, 2) if n != 75][:24]
    attn_iter(e, 10, dma="nok", extra=list(zip(wpos, w)), endbar=False, late=ex30)
    h = c.hl(0)+c.hl(1)+c.hl(2)
    ex31 = [(64+2*k, g) for k, g in enumerate(h)]
    rd = c.reads(0)
    late31 = [(95, [("wait", ("w", 0), None)])] + [(97+2*k, [it]) for k, it in enumerate(rd)]
    attn_iter(e, 11, do_qk=False, dma=False, extra=ex31, late=late31)
    stamp(e, 4)
    rowsum_check(e, name, "g")
    stamp(e, 5)
    TMP, PK = V_T+3, V_ONE
    for p in range(8):
        if p < 7: e.wvm(("w", p+1))
        e.wvm(("h", p))
        e.wds(("r", p))
        gaps = [[] for _ in range(40)]
        if p < 7:
            for k, it in enumerate(c.reads(p+1)): gaps[2*k].append(it)
        if p+3 < 8:
            for k, grp in enumerate(c.wl(p+3)+c.hl(p+3)): gaps[2*k+1] += grp
        oi = o_frag_items(2*p, TMP, PK, c.V_L16) + o_frag_items(2*p+1, TMP, PK, c.V_L16)
        for k, it in enumerate(oi): gaps[(k*40)//len(oi)].append(it)
        for m in range(40):
            fb, db, t = m//10, (m//2) % 5, m % 2
            d = vr(c.acc(fb,db), 4)
            cc = "0" if (p == 0 and t == 0) else d
            e(f"{MF} {d}, {vr(c.W(p,fb,t),4)}, {c.H(p,db,t)}, {cc}")
            for it in gaps[m]: e.add(it)
    S_T, S_A, S_B = c.S_T, c.S_A, c.S_B
    e(f"v_add_u32 v10, s{c.S_LB}, v{c.V_L16}\ns_nop 4")
    for fb in range(1, 4):
        for db in range(5): e(f"ds_write_b128 v10, {vr(c.acc(fb,db),4)} offset:{5120*(fb-1)+1024*db}")
    for fb in range(1, 4):
        e(f"""s_add_u32 s{S_T}, s{S_WAVE}, {4-fb}
        s_and_b32 s{S_T}, s{S_T}, 3
        s_mul_i32 s{S_T}, s{S_T}, 24576
        v_add_u32 v{10+fb}, s{S_T}, v{c.V_L16}""")
    B = c.V_B1
    e(f"""v_lshlrev_b32 v20, 16, v{B}
    v_and_b32 v21, 0xffff0000, v{B}
    v_lshlrev_b32 v22, 16, v{B+1}
    v_and_b32 v23, 0xffff0000, v{B+1}
    s_mov_b32 s{S_A}, {fhex(-2*math.log2(math.e)*math.sqrt(2/math.pi))}
    s_mov_b32 s{S_B}, {fhex(-2*math.log2(math.e)*math.sqrt(2/math.pi)*0.044715)}
    v_mov_b32 v24, s{S_A}
    v_mov_b32 v25, {LDS_FLAG}""")
    X = V_S
    for k in range(20): e(f"v_add_f32 v{X+k}, v{X+k}, v{20+k%4}")
    e("s_waitcnt lgkmcnt(0)\ns_barrier")
    R = V_Q
    for fb in range(1, 4):
        for db in range(5): e(f"ds_read_b128 {vr(R+20*(fb-1)+4*db,4)}, v{10+fb} offset:{5120*(fb-1)+1024*db}")
    e("ds_read_b32 v26, v25")
    e(f"""s_mul_i32 s{S_T}, s{c.S_DT}, {5*54*1024}
    s_lshl_b32 s{S_T+1}, s{c.S_FB}, 11
    s_add_u32 s{S_T}, s{S_T}, s{S_T+1}
    s_lshr_b32 s{S_T+1}, s{S_WAVE}, 1
    s_lshl_b32 s{S_T+1}, s{S_T+1}, 10
    s_add_u32 s{S_T}, s{S_T}, s{S_T+1}
    s_and_b32 s{S_T+1}, s{S_WAVE}, 1
    s_lshl_b32 s{S_T+1}, s{S_T+1}, 3
    s_add_u32 s{S_T}, s{S_T}, s{S_T+1}
    s_waitcnt lgkmcnt(6)""")
    for k in range(20): e(f"v_add_f32 v{R+k}, v{R+k}, v{R+20+k}")
    for k in range(20): e(f"v_add_f32 v{X+k}, v{X+k}, v{R+k}")
    e("s_waitcnt lgkmcnt(0)")
    for k in range(20): e(f"v_add_f32 v{X+k}, v{X+k}, v{R+40+k}")
    e(f"v_readfirstlane_b32 s{S_T+2}, v26")
    Z = X+20
    for k in range(20): e(f"v_mul_f32 v{Z+k}, v{X+k}, v{X+k}")
    for k in range(20): e(f"v_fma_f32 v{Z+k}, v{Z+k}, s{S_B}, v24")
    for k in range(20): e(f"v_mul_f32 v{Z+k}, v{Z+k}, v{X+k}")
    for k in range(20): e(f"v_exp_f32 v{Z+k}, v{Z+k}")
    for k in range(20): e(f"v_add_f32 v{Z+k}, 1.0, v{Z+k}")
    for k in range(20): e(f"v_rcp_f32 v{Z+k}, v{Z+k}")
    for k in range(20): e(f"v_mul_f32 v{X+k}, v{X+k}, v{Z+k}")
    for k in range(10): e(f"v_cvt_pk_bf16_f32 v{Z+20+k}, v{X+2*k}, v{X+2*k+1}")
    for db in range(5):
        e(f"buffer_store_dwordx2 {vr(Z+20+2*db,2)}, v{c.V_L16}, s[{S_U}:{S_U+3}], s{S_T} offen")
        e(f"s_add_u32 s{S_T}, s{S_T}, {54*1024}")
    stamp(e, 6)
    e(f"s_cmp_lg_u32 s{S_T+2}, 0\ns_cbranch_scc1 {name}_redo\ns_endpgm")

def tail_plain(e, name):
    attn_iter(e, 10, dma="nok", endbar=False)
    attn_iter(e, 11, do_qk=False, dma=False)
    rowsum_check(e, name, "p")
    e(f"v_lshlrev_b32 v{V_T}, 4, v{V_LANE}")
    for k in range(16):
        for it in o_frag_items(k, V_S+8*(k % 4), V_P+4*(k % 8), V_T): e.add(it)
    e(f"""s_cmp_lg_u32 s{S_PASS}, 0
    s_cbranch_scc1 {name}_end
    s_barrier
    v_mov_b32 v{V_T+1}, {LDS_FLAG}
    ds_read_b32 v{V_T+2}, v{V_T+1}""")
    e(f"""s_sub_u32 s46, s2, 216
    s_lshl_b32 s46, s46, 2
    s_add_u32 s46, s46, s{S_WAVE}
    s_lshl_b32 s46, s46, 2
    s_lshl_b32 s47, s{S_WAVE}, 15
    v_lshrrev_b32 v20, 4, v{V_LANE}
    v_and_b32 v21, 15, v{V_LANE}
    v_lshlrev_b32 v22, 1, v20
    v_xor_b32 v21, v21, v22
    v_mul_u32_u24 v20, 1280, v20
    v_lshl_add_u32 v22, v21, 4, v20
    v_xor_b32 v21, 8, v21
    v_lshl_add_u32 v23, v21, 4, v20
    s_sub_u32 s48, s47, {LDS_V}""")
    for db in range(8): e(f"v_add_u32 v{V_VA+db}, s48, v{V_VA+db}")
    for n in range(4):
        e(f"""s_add_u32 s49, s46, {n}
        s_mul_i32 s50, s49, 52429
        s_lshr_b32 s50, s50, 18
        s_mul_i32 s51, s50, 5
        s_sub_u32 s51, s49, s51
        s_mul_i32 s52, s50, {32*1280}
        s_lshl_b32 s53, s51, 8
        s_add_u32 s52, s52, s53
        s_lshl_b32 s50, s50, 10
        s_lshl_b32 s51, s51, 20
        s_add_u32 s{60+n}, s50, s51""")
        for pc in range(8):
            e(f"s_add_u32 m0, s47, {8192*n+1024*pc}\ns_add_u32 s53, s52, {4*1280*pc}")
            e.vm(("wo", n), f"buffer_load_dwordx4 v{22+(pc&1)}, s[{S_WO}:{S_WO+3}], s53 offen lds")
    e(f"s_waitcnt lgkmcnt(0)\nv_readfirstlane_b32 s54, v{V_T+2}")
    for n in range(4):
        e.wvm(("wo", n))
        for db in range(8):
            for hj in range(2):
                e.ds(("t", n, db), f"ds_read_b64_tr_b16 {vr(V_Q+32*n+4*db+2*hj,2)}, v{V_VA+db} offset:{8192*n+4096*hj}")
        for db in range(8):
            e.wds(("t", n, db))
            e.vm("wf", f"buffer_store_dwordx4 {vr(V_Q+32*n+4*db,4)}, v{V_T}, s[{S_WOF}:{S_WOF+3}], s{60+n} offen")
            e(f"s_add_u32 s{60+n}, s{60+n}, 0x20000")
    e(f"s_cmp_lg_u32 s54, 0\ns_cbranch_scc1 {name}_redo")
    e(f"{name}_end:\ns_endpgm")

def gen_attn(name, ts=False):
    Ctx.ts = ts
    e = Em()
    e(khead(name))
    e(f"s_cmp_ge_u32 s2, 256\ns_cbranch_scc1 {name}_end")
    e("""s_load_dwordx4 s[60:63], s[0:1], 8
    s_load_dwordx4 s[64:67], s[0:1], 24
    s_load_dwordx4 s[68:71], s[0:1], 48
    s_load_dwordx2 s[74:75], s[0:1], 64
    s_load_dwordx2 s[72:73], s[0:1], 96""")
    e(f"""v_and_b32 v{V_LANE}, 63, v0
    v_lshrrev_b32 v{V_T}, 6, v0
    s_and_b32 s50, s2, 7
    v_readfirstlane_b32 s{S_WAVE}, v{V_T}
    s_lshr_b32 s51, s2, 6
    s_lshl_b32 s50, s50, 2
    s_add_u32 s50, s50, s51
    s_lshl_b32 s52, s50, 19
    s_lshl_b32 s53, s50, 8
    s_sub_u32 s54, {640*8192}, s53
    s_mov_b32 s{S_PASS}, 0
    v_mov_b32 v{V_T+5}, {LDS_FLAG}
    v_mov_b32 v{V_T+6}, 0
    ds_write_b32 v{V_T+5}, v{V_T+6}
    s_waitcnt lgkmcnt(0)""")
    srd(e, S_K, 60, 61, 524288, "s52")
    srd(e, S_V, 62, 63, 524288, "s52")
    srd(e, S_WQ, 64, 65, "s54", "s53")
    srd(e, S_WO, 66, 67, 4096*1280)
    srd(e, S_XN, 72, 73, XN_SZ, XN_OFF or None)
    srd(e, S_OF, 72, 73, OF_SZ, OF_OFF)
    srd(e, S_W1, 68, 69, 2048*3456)
    srd(e, S_B1, 70, 71, 3456)
    srd(e, S_W2, 74, 75, 1728*4096)
    srd(e, S_HT, 72, 73, HT_SZ, HT_OFF)
    srd(e, S_U, 72, 73, U_SZ, U_OFF)
    srd(e, S_WOF, 72, 73, WOF_SZ, WOF_OFF)
    if ts:
        srd(e, S_TS, 72, 73, 0x100000, TS_OFF)
        e(f"s_lshl_b32 s88, s2, 2\ns_add_u32 s88, s88, s{S_WAVE}\ns_lshl_b32 s88, s88, 6")
    e(f"{name}_start:")
    e(f"""s_and_b32 s50, s2, 7
    s_lshr_b32 s51, s2, 3
    s_lshr_b32 s52, s51, 3
    s_lshl_b32 s50, s50, 2
    s_add_u32 s50, s50, s52
    s_and_b32 s51, s51, 7
    s_lshl_b32 s{S_W4K}, s{S_WAVE}, 12
    s_mov_b32 s{S_KOFF}, s{S_W4K}
    s_mov_b32 s{S_VOFF}, s{S_W4K}
    s_lshl_b32 s55, s51, 4
    s_lshl_b32 s56, s{S_WAVE}, 2
    s_add_u32 s55, s55, s56
    s_mul_i32 s47, s55, 20480
    s_lshl_b32 s{S_OST}, s55, 17
    s_lshl_b32 s58, s50, 12
    s_add_u32 s{S_OST}, s{S_OST}, s58
    s_lshl_b32 s{S_PF}, s2, 2
    s_add_u32 s{S_PF}, s{S_PF}, s{S_WAVE}
    s_mul_i32 s{S_PF}, s{S_PF}, {56*128}""")
    T = V_S
    e(f"""v_and_b32 v{T}, 15, v{V_LANE}
    v_lshrrev_b32 v{T+1}, 4, v{V_LANE}
    v_and_b32 v{T+2}, 7, v{V_LANE}
    v_lshlrev_b32 v{V_PFA}, 7, v{T+2}
    v_lshlrev_b32 v{T+2}, 1, v{T+2}
    v_xor_b32 v{T+2}, v{T+2}, v{T+1}
    v_lshlrev_b32 v{T+2}, 4, v{T+2}
    v_lshl_add_u32 v{V_KA}, v{T}, 8, v{T+2}
    v_xor_b32 v{V_KA+1}, 64, v{V_KA}
    v_xor_b32 v{V_KA+2}, 128, v{V_KA}
    v_xor_b32 v{V_KA+3}, 192, v{V_KA}""")
    e(f"""v_lshlrev_b32 v{T+2}, 1, v{T+1}
    v_xor_b32 v{T+2}, v{T+2}, v{T}
    v_lshlrev_b32 v{T+2}, 4, v{T+2}
    v_lshl_add_u32 v{V_DM}, v{T+1}, 8, v{T+2}
    v_xor_b32 v{V_DM+1}, 128, v{V_DM}""")
    e(f"""v_lshrrev_b32 v{T+2}, 2, v{V_LANE}
    v_and_b32 v{T+3}, 7, v{T+2}
    v_lshlrev_b32 v{T+3}, 1, v{T+3}
    v_bfe_u32 v{T+4}, v{V_LANE}, 1, 1
    v_xor_b32 v{T+3}, v{T+3}, v{T+4}
    v_lshlrev_b32 v{T+3}, 4, v{T+3}
    v_lshl_add_u32 v{T+3}, v{T+2}, 8, v{T+3}
    v_and_b32 v{T+4}, 1, v{V_LANE}
    v_lshl_add_u32 v{T+3}, v{T+4}, 3, v{T+3}
    v_add_u32 v{V_VA}, {LDS_V}, v{T+3}""")
    for db in range(1, 8): e(f"v_xor_b32 v{V_VA+db}, {32*db}, v{V_VA}")
    e(f"""v_mov_b32 v{T+5}, 0x3f803f80
    v_cmp_gt_u32 vcc, 2, v{T}
    v_mov_b32 v{T+6}, 0x44444444
    v_mov_b32 v{T+7}, 0xeeeeeeee
    v_cndmask_b32 v{V_ONE}, 0, v{T+5}, vcc
    v_cmp_eq_u32 vcc, 1, v{T+4}
    v_mov_b32 v{V_ONE+1}, v{V_ONE}
    v_mov_b32 v{V_ONE+2}, v{V_ONE}
    v_mov_b32 v{V_ONE+3}, v{V_ONE}
    v_cndmask_b32 v{V_IDX}, v{T+6}, v{T+7}, vcc""")
    stamp(e, 0)
    qproj(e)
    stamp(e, 1)
    e.wds("ALL")
    e(f"s_cmp_lg_u32 s{S_PASS}, 0\ns_cbranch_scc1 {name}_truemax")
    for qb in range(4):
        for ks in range(4):
            c = "0" if ks == 0 else vr(Sreg(0,qb), 4)
            e(f"{MF} {vr(Sreg(0,qb),4)}, {ar(Kreg(0,ks),4)}, {vr(Qreg(qb,ks),4)}, {c}")
    e("s_nop 7")
    for qb in range(4):
        s, m = Sreg(0,qb), V_M+4*qb
        e(f"v_max3_f32 v{m}, v{s}, v{s+1}, v{s+2}\nv_max_f32 v{m}, v{m}, v{s+3}")
    e(f"{name}_setm:")
    for qb in range(4):
        m = V_M+4*qb
        xlane(e, m, V_T, "v_max_f32")
        e(f"v_sub_f32 v{m}, 0, v{m}\nv_mov_b32 v{m+1}, v{m}\nv_mov_b32 v{m+2}, v{m}\nv_mov_b32 v{m+3}, v{m}")
    for k in range(16): e(f"v_mov_b32 v{V_L+k}, 0")
    e.wvm(("K", "pre", 1)); e("s_barrier")
    def alias(it):
        if it[0] == "vm" and it[1] in (("K","pre",2), ("V","pre",0)): return ("vm", ("D",-3), it[2])
        if it[0] == "vm" and it[1] in (("K","pre",3), ("V","pre",1)): return ("vm", ("D",-2), it[2])
        return it
    e.items = [alias(it) for it in e.items]
    attn_iter(e, -1, do_pv=False, wrap_in=False)
    attn_iter(e, 0, first_pv=True)
    stamp(e, 2)
    e(f"s_mov_b32 s{S_CNT}, 7")
    e.mark("loop0")
    for i in range(1, 5): attn_iter(e, i, pf=True)
    e.mark("loop1")
    for i in range(5, 9): attn_iter(e, i, pf=True)
    e.mark("loop2")
    stamp(e, 3)
    attn_iter(e, 9, dma=False)
    e(f"""s_cmp_ge_u32 s2, 216
    s_cbranch_scc1 {name}_plain
    s_cmp_lg_u32 s{S_PASS}, 0
    s_cbranch_scc1 {name}_plain""")
    tail_gemm1(e, name)
    e(f"{name}_plain:")
    tail_plain(e, name)
    e(f"""{name}_redo:
    s_mov_b32 s{S_PASS}, 1
    s_waitcnt vmcnt(0) lgkmcnt(0)
    s_barrier
    s_branch {name}_start""")
    e(f"""{name}_truemax:
    s_waitcnt vmcnt(0)
    s_barrier
    s_mov_b32 s{S_KOFF}, s{S_W4K}
    s_mov_b32 s{S_CNT}, 32""")
    for qb in range(4): e(f"v_mov_b32 v{V_M+4*qb}, 0xff800000")
    e(f"{name}_mloop:")
    m0, d, inc = dma_kv("K", 0, "fb")
    e.add(m0); e("s_nop 0")
    for it in d: e.add(it)
    e.add(inc)
    e("s_waitcnt vmcnt(0)\ns_barrier")
    for it in k_reads(0, "fb"): e.add(it)
    e("s_waitcnt lgkmcnt(0)\ns_barrier")
    for n in range(64):
        kb, qb, ks = n//16, (n//4) % 4, n % 4
        c = "0" if ks == 0 else vr(Sreg(kb,qb), 4)
        e(f"{MF} {vr(Sreg(kb,qb),4)}, {ar(Kreg(kb,ks),4)}, {vr(Qreg(qb,ks),4)}, {c}")
    e("s_nop 7")
    for kb in range(4):
        for qb in range(4):
            s, m = Sreg(kb,qb), V_M+4*qb
            e(f"v_max3_f32 v{m}, v{m}, v{s}, v{s+1}\nv_max3_f32 v{m}, v{m}, v{s+2}, v{s+3}")
    e(f"s_sub_u32 s{S_CNT}, s{S_CNT}, 1\ns_cmp_lg_u32 s{S_CNT}, 0\ns_cbranch_scc1 {name}_mloop")
    e(f"s_mov_b32 s{S_KOFF}, s{S_W4K}")
    m0, d, inc = dma_kv("K", 0, "fb")
    e.add(m0); e("s_nop 0")
    for it in d: e.add(it)
    e(f"s_add_u32 s{S_KOFF}, s{S_KOFF}, 65536")
    e("s_waitcnt vmcnt(0)\ns_barrier")
    for it in k_reads(0, "fb"): e.add(it)
    e(f"s_waitcnt lgkmcnt(0)\ns_branch {name}_setm")
    lines = resolve(e.items)
    i0, i1, i2 = (lines.index(("mark", m)) for m in ("loop0", "loop1", "loop2"))
    b1, b2 = lines[i0+1:i1], lines[i1+1:i2]
    if not ts: assert b1 == b2, [(x, y) for x, y in zip(b1, b2) if x != y][:5]
    loop = [".p2align 6", f"{name}_loop:"] + b2 + [f"s_sub_u32 s{S_CNT}, s{S_CNT}, 1", f"s_cmp_lg_u32 s{S_CNT}, 0", f"s_cbranch_scc1 {name}_loop"]
    lines = lines[:i0] + loop + lines[i2+1:]
    return "\n".join(lines), kdesc(name, 512, 256, 96)
```

```python
from asmlib import *
from gen_prep import *
import math
MF = "v_mfma_f32_16x16x32_bf16"

def gen_final(name, ts=False):
    e = Em()
    S_X, S_W2, S_B2, S_OUT, S_OF, S_WOF, S_U, S_TS = 4, 8, 12, 16, 20, 24, 28, 32
    S_WAVE, S_RB, S_CT, S_LB, S_A, S_B, S_T = 40, 41, 42, 43, 44, 45, 48
    S_YA, S_YB, S_SB, S_SA = 52, 53, 54, 56
    V_LANE, V_L16, V_WD, V_WA = 1, 2, 3, 4
    ACS, ACY = 16, 96
    def stamp(idx):
        if not ts: return
        e(f"s_memtime s[90:91]\ns_memrealtime s[92:93]\ns_waitcnt lgkmcnt(0)\nv_mov_b32 v14, s90\nv_mov_b32 v15, {4*idx}\nv_mov_b32 v0, s92")
        e.vm("ts", f"buffer_store_dword v14, v15, s[{S_TS}:{S_TS+3}], s88 offen")
        e.vm("ts", f"buffer_store_dword v0, v15, s[{S_TS}:{S_TS+3}], s88 offen offset:32")
    e(khead(name))
    e(f"s_cmp_ge_u32 s2, 256\ns_cbranch_scc1 {name}_end")
    e("""s_load_dwordx2 s[60:61], s[0:1], 0
    s_load_dwordx4 s[64:67], s[0:1], 64
    s_load_dwordx2 s[68:69], s[0:1], 80
    s_load_dwordx2 s[72:73], s[0:1], 96""")
    e(f"""v_and_b32 v{V_LANE}, 63, v0
    v_lshrrev_b32 v10, 6, v0
    s_and_b32 s50, s2, 7
    v_readfirstlane_b32 s{S_WAVE}, v10
    s_lshr_b32 s51, s2, 3
    s_lshr_b32 s52, s51, 3
    s_lshl_b32 s50, s50, 2
    s_add_u32 s{S_RB}, s50, s52
    s_and_b32 s{S_CT}, s51, 7
    s_lshl_b32 s{S_LB}, s{S_WAVE}, 15
    v_lshlrev_b32 v{V_L16}, 4, v{V_LANE}""")
    e(f"""v_lshrrev_b32 v10, 3, v{V_LANE}
    v_and_b32 v11, 7, v{V_LANE}
    v_and_b32 v12, 6, v10
    v_xor_b32 v11, v11, v12
    v_lshlrev_b32 v10, 12, v10
    v_lshl_add_u32 v{V_WD}, v11, 4, v10
    v_lshrrev_b32 v10, 2, v{V_LANE}
    v_and_b32 v12, 6, v10
    v_bfe_u32 v11, v{V_LANE}, 1, 1
    v_xor_b32 v11, v11, v12
    v_lshlrev_b32 v11, 4, v11
    v_lshl_add_u32 v11, v10, 7, v11
    v_and_b32 v12, 1, v{V_LANE}
    v_lshl_add_u32 v11, v12, 3, v11
    v_add_u32 v11, s{S_LB}, v11""")
    NY, NS = 7, 16
    e(f"""s_mul_i32 s{S_YA}, s{S_WAVE}, {7*64*4096}
    s_lshl_b32 s{S_T}, s{S_RB}, 7
    s_add_u32 s{S_YA}, s{S_YA}, s{S_T}
    s_mul_i32 s{S_YB}, s{S_CT}, {5*54*1024}
    s_mul_i32 s{S_T}, s{S_WAVE}, {7*2048}
    s_add_u32 s{S_YB}, s{S_YB}, s{S_T}
    s_lshl_b32 s{S_T+1}, s{S_RB}, 19
    s_lshl_b32 s{S_T}, s{S_WAVE}, 15
    s_add_u32 s{S_T+1}, s{S_T+1}, s{S_T}
    s_mul_i32 s{S_SB}, s{S_CT}, {5*0x20000}
    s_add_u32 s{S_SB}, s{S_SB}, s{S_T}""")
    for sb in range(4):
        e(f"""s_add_u32 s{S_T}, s{S_WAVE}, {sb}
        s_and_b32 s{S_T}, s{S_T}, 3
        s_lshl_b32 s{S_T+2}, s{S_T}, 5
        v_xor_b32 v{V_WA+sb}, s{S_T+2}, v11
        s_lshl_b32 s{S_T}, s{S_T}, 17
        s_add_u32 s{S_SA+sb}, s{S_T+1}, s{S_T}""")
    e("s_waitcnt lgkmcnt(0)")
    srd(e, S_W2, 64, 65, 1728*4096)
    srd(e, S_U, 72, 73, U_SZ, U_OFF)
    def R(p, k, n=4):
        s = p % 4
        return ar(72*s+k, n) if s < 3 else vr(184+k, n)
    def Areg(p, db, t, n=4, o=0): return R(p, 8*db+4*t+o, n)
    def Breg(p, sb, t, n=4, o=0): return R(p, 40+8*sb+4*t+o, n)
    def loads(p):
        r = []
        if p < NY:
            for n in range(8):
                r.append([("raw", f"s_add_u32 m0, s{S_LB}, {8192*(p%3)+1024*n}"),
                          ("raw", f"s_add_u32 s{S_T}, s{S_YA}, {(64*p+8*n)*4096}"),
                          ("vm", ("w", p), f"buffer_load_dwordx4 v{V_WD}, s[{S_W2}:{S_W2+3}], s{S_T} offen lds")])
            for db in range(5):
                g = [("raw", f"s_add_u32 s{S_T+1}, s{S_YB}, {db*54*1024+p*2048}")]
                if p == NY-1:
                    g += [("raw", f"s_cmp_eq_u32 s{S_WAVE}, 3"), ("raw", f"s_cselect_b32 s{S_T+1}, {U_SZ}, s{S_T+1}")]
                r.append(g+[("vm", ("a", p), f"buffer_load_dwordx4 {Areg(p,db,0)}, v{V_L16}, s[{S_U}:{S_U+3}], s{S_T+1} offen")])
                r.append([("vm", ("a", p), f"buffer_load_dwordx4 {Areg(p,db,1)}, v{V_L16}, s[{S_U}:{S_U+3}], s{S_T+1} offen offset:1024")])
        else:
            q = p-NY
            o = 2048*(q % 2)
            for sb in range(4):
                r.append([("vm", ("a", p), f"buffer_load_dwordx4 {Breg(p,sb,0)}, v{V_L16}, s[{S_OF}:{S_OF+3}], s{S_SA+sb} offen offset:{o}")])
                g = [("vm", ("a", p), f"buffer_load_dwordx4 {Breg(p,sb,1)}, v{V_L16}, s[{S_OF}:{S_OF+3}], s{S_SA+sb} offen offset:{o+1024}")]
                if q % 2: g.append(("raw", f"s_add_u32 s{S_SA+sb}, s{S_SA+sb}, 4096"))
                r.append(g)
            for db in range(5):
                r.append([("raw", f"s_add_u32 s{S_T+1}, s{S_SB}, {db*0x20000+q*2048}"),
                          ("vm", ("a", p), f"buffer_load_dwordx4 {Areg(p,db,0)}, v{V_L16}, s[{S_WOF}:{S_WOF+3}], s{S_T+1} offen")])
                r.append([("vm", ("a", p), f"buffer_load_dwordx4 {Areg(p,db,1)}, v{V_L16}, s[{S_WOF}:{S_WOF+3}], s{S_T+1} offen offset:1024")])
        return r
    def reads(p):
        return [("ds", ("r", p), f"ds_read_b64_tr_b16 {Breg(p,sb,t,2,2*hj)}, v{V_WA+sb} offset:{8192*(p%3)+2048*(2*t+hj)}")
                for sb in range(4) for t in range(2) for hj in range(2)]
    NP = NY+NS
    for p in range(3):
        for grp in loads(p):
            for it in grp: e.add(it)
    srd(e, S_X, 60, 61, 2048*1280)
    srd(e, S_B2, 66, 67, 4096)
    srd(e, S_OUT, 68, 69, 2048*1280)
    srd(e, S_OF, 72, 73, OF_SZ, OF_OFF)
    srd(e, S_WOF, 72, 73, WOF_SZ, WOF_OFF)
    if ts:
        srd(e, S_TS, 72, 73, 0x100000, TS_OFF+0x10000)
        e(f"s_lshl_b32 s88, s2, 2\ns_add_u32 s88, s88, s{S_WAVE}\ns_lshl_b32 s88, s88, 6")
    stamp(0)
    XR = 176
    e(f"""v_and_b32 v10, 15, v{V_LANE}
    v_lshrrev_b32 v11, 4, v{V_LANE}
    v_mul_u32_u24 v12, 1280, v10
    v_lshl_add_u32 v12, v11, 3, v12
    v_lshlrev_b32 v10, 1, v10
    s_lshl_b32 s{S_A}, s{S_RB}, 2
    s_add_u32 s{S_A}, s{S_A}, s{S_WAVE}
    s_lshl_b32 s{S_B}, s{S_A}, 5
    s_mul_i32 s{S_A}, s{S_A}, {16*1280}
    s_mul_i32 s{S_T}, s{S_CT}, 160
    s_add_u32 s{S_A}, s{S_A}, s{S_T}""")
    e.vm("e", f"buffer_load_ushort v13, v10, s[{S_B2}:{S_B2+3}], s{S_B} offen")
    for db in range(5):
        d = vr(XR+2*db, 2) if db < 4 else vr(8, 2)
        e.vm("e", f"buffer_load_dwordx2 {d}, v12, s[{S_X}:{S_X+3}], s{S_A} offen offset:{32*db}")
    e.wvm(("w", 0))
    for it in reads(0): e.add(it)
    def red_addr():
        r = [("raw", f"v_add_u32 v{V_WA}, s{S_LB}, v{V_L16}")]
        for k in range(1, 4):
            r += [("raw", f"s_add_u32 s{S_T+2}, s{S_WAVE}, {4-k}"), ("raw", f"s_and_b32 s{S_T+2}, s{S_T+2}, 3"),
                  ("raw", f"s_lshl_b32 s{S_T+2}, s{S_T+2}, 15"), ("raw", f"v_add_u32 v{V_WA+k}, s{S_T+2}, v{V_L16}")]
        return r
    def red_w(acc, base, tag):
        return [("ds", tag, f"ds_write_b128 v{V_WA}, {vr(acc+20*sb+4*db,4)} offset:{base+5120*(sb-1)+1024*db}") for sb in range(1, 4) for db in range(5)]
    def red_r(acc, base, tag):
        return [("ds", (tag, sb), f"ds_read_b128 {vr(acc+20*sb+4*db,4)}, v{V_WA+sb} offset:{base+5120*(sb-1)+1024*db}") for sb in range(1, 4) for db in range(5)]
    Y, Z = ACY, ACY+20
    ysum = [("raw", "v_lshlrev_b32 v13, 16, v13"), ("raw", f"s_mov_b32 s{S_B}, {fhex(-math.log2(math.e))}")]
    ysum += [("raw", f"v_add_f32 v{Y+k}, v{Y+k}, v{Y+20+k}") for k in range(20)]
    ysum += [("raw", f"v_add_f32 v{Y+40+k}, v{Y+40+k}, v{Y+60+k}") for k in range(20)]
    ysum += [("raw", f"v_add_f32 v{Y+k}, v{Y+k}, v13") for k in range(20)]
    ysum += [("raw", f"v_add_f32 v{Y+k}, v{Y+k}, v{Y+40+k}") for k in range(20)]
    ysum += [("raw", f"v_mul_f32 v{Z+k}, s{S_B}, v{Y+k}") for k in range(20)]
    ysum += [("raw", f"v_exp_f32 v{Z+k}, v{Z+k}") for k in range(20)]
    ysum += [("raw", f"v_add_f32 v{Z+k}, 1.0, v{Z+k}") for k in range(20)]
    ysum += [("raw", f"v_rcp_f32 v{Z+k}, v{Z+k}") for k in range(20)]
    ysum += [("raw", f"v_mul_f32 v{Y+k}, v{Y+k}, v{Z+k}") for k in range(20)]
    for k in range(10):
        src = XR+k if k < 8 else k
        ysum += [("raw", f"v_lshlrev_b32 v{Z+2*k}, 16, v{src}"), ("raw", f"v_and_b32 v{Z+2*k+1}, 0xffff0000, v{src}")]
    for p in range(NP):
        if p+1 < NY: e.wvm(("w", p+1))
        else: e.wvm(("a", p))
        if p < NY: e.wds(("r", p))
        gaps = [[] for _ in range(40)]
        if p+1 < NY:
            for k, it in enumerate(reads(p+1)): gaps[2*k].append(it)
        if p+3 < NP:
            for k, grp in enumerate(loads(p+3)): gaps[2*k+1] += grp
        q = p-NY
        if q == 0:
            for k, it in enumerate(red_addr()): gaps[2*(k//2)].append(it)
        if q == 1:
            for k, it in enumerate(red_w(ACY, 0, "yw")): gaps[2*k].append(it)
        if q == 3:
            gaps[0] += [("wait", None, "yw"), ("raw", "s_barrier")]
            for k, it in enumerate(red_r(ACY, 0, "yr")): gaps[2+2*k].append(it)
        if q == 4: gaps[0].append(("wait", None, "ALL"))
        if 5 <= q < 12:
            n = -(-len(ysum)//7)
            for k, it in enumerate(ysum[(q-5)*n:(q-4)*n]): gaps[2*(k*20//n)].append(it)
        acc = ACY if p < NY else ACS
        for m in range(40):
            db, sb, t = m//8, (m//2) % 4, m % 2
            if p == NP-1: sb, db = 3-m//10, (m//2) % 5
            d = vr(acc+20*sb+4*db, 4)
            c = "0" if (p in (0, NY) and t == 0) else d
            e(f"{MF} {d}, {Areg(p,db,t)}, {Breg(p,sb,t)}, {c}")
            for it in gaps[m]: e.add(it)
            if p == NP-1 and m >= 11 and m % 2 == 1:
                k = (m-11)//2; sb2, db2 = 3-k//5, k % 5
                e.ds("sw", f"ds_write_b128 v{V_WA}, {vr(ACS+20*sb2+4*db2,4)} offset:{15360+5120*(sb2-1)+1024*db2}")
        if p == NY-1: stamp(1)
    stamp(2)
    e.wds("ALL"); e("s_barrier")
    for it in red_r(ACS, 15360, "sr"): e.add(it)
    e.wds(("sr", 2))
    for k in range(20): e(f"v_add_f32 v{ACS+k}, v{ACS+k}, v{ACS+20+k}")
    for k in range(20): e(f"v_add_f32 v{ACS+k}, v{ACS+k}, v{ACS+40+k}")
    e.wds("ALL")
    for k in range(20): e(f"v_add_f32 v{ACS+k}, v{ACS+k}, v{ACS+60+k}")
    for db in range(5):
        for k in range(4*db, 4*db+4): e(f"v_fmac_f32 v{Z+k}, v{ACS+k}, v{Y+k}")
        e(f"v_cvt_pk_bf16_f32 v{60+2*db}, v{Z+4*db}, v{Z+4*db+1}\nv_cvt_pk_bf16_f32 v{61+2*db}, v{Z+4*db+2}, v{Z+4*db+3}")
        e(f"buffer_store_dwordx2 {vr(60+2*db,2)}, v12, s[{S_OUT}:{S_OUT+3}], s{S_A} offen offset:{32*db}")
    stamp(3)
    e(f"{name}_end:\ns_endpgm")
    return "\n".join(resolve(e.items)), kdesc(name, 512, 256, 96)
```

```python
from asmlib import *
XN_OFF, XN_SZ = 0x0, 0x280000
HT_OFF, HT_SZ = 0x280000, 0x280000
U_OFF, U_SZ = 0x500000, 0x21C000
WOF_OFF, WOF_SZ = 0x800000, 0x500000
OF_OFF, OF_SZ = 0x1000000, 0x1000000
TS_OFF = 0x2000000

def allreduce32(e, v, t, op="v_add_f32"):
    for k in (8, 4, 2, 1):
        e("s_nop 1")
        e(f"{op}_dpp v{v}, v{v}, v{v} row_ror:{k} row_mask:0xf bank_mask:0xf")
    e(f"v_mov_b32 v{t}, v{v}")
    e("s_nop 1")
    e(f"v_permlane16_swap_b32 v{t}, v{v}")
    e("s_nop 1")
    e(f"{op} v{v}, v{v}, v{t}")

def round_bf16(e, v):
    e(f"v_cvt_pk_bf16_f32 v{v}, v{v}, v{v}")
    e(f"v_and_b32 v{v}, 0xffff0000, v{v}")

def unpack(e, src, dst, n):
    for i in range(n):
        e(f"v_lshlrev_b32 v{dst+2*i}, 16, v{src+i}")
        e(f"v_and_b32 v{dst+2*i+1}, 0xffff0000, v{src+i}")

def layernorm(e, X, D, OUT, A, B, T):
    e(f"v_add_f32 v{A}, v{X}, v{X+1}")
    e(f"v_add_f32 v{B}, v{X+2}, v{X+3}")
    for i in range(4, 20, 2):
        e(f"v_add_f32 v{A}, v{A}, v{X+i}")
        e(f"v_add_f32 v{B}, v{B}, v{X+i+1}")
    e(f"v_add_f32 v{A}, v{A}, v{B}")
    allreduce32(e, A, T)
    e(f"v_mul_f32 v{A}, {fhex(1.0/640)}, v{A}")
    for i in range(20): e(f"v_sub_f32 v{D+i}, v{X+i}, v{A}")
    e(f"v_mul_f32 v{B}, v{D}, v{D}")
    e(f"v_mul_f32 v{T+1}, v{D+1}, v{D+1}")
    for i in range(2, 20, 2):
        e(f"v_fmac_f32 v{B}, v{D+i}, v{D+i}")
        e(f"v_fmac_f32 v{T+1}, v{D+i+1}, v{D+i+1}")
    e(f"v_add_f32 v{B}, v{B}, v{T+1}")
    allreduce32(e, B, T)
    e(f"v_mul_f32 v{B}, {fhex(1.0/640)}, v{B}")
    round_bf16(e, A)
    round_bf16(e, B)
    e(f"v_add_f32 v{B}, {fhex(1e-5)}, v{B}")
    round_bf16(e, B)
    e(f"v_sqrt_f32 v{B}, v{B}")
    e("s_nop 0")
    round_bf16(e, B)
    e(f"v_rcp_f32 v{B}, v{B}")
    for i in range(20): e(f"v_sub_f32 v{D+i}, v{X+i}, v{A}")
    for i in range(10): e(f"v_cvt_pk_bf16_f32 v{OUT+i}, v{D+2*i}, v{D+2*i+1}")
    unpack(e, OUT, D, 10)
    for i in range(20): e(f"v_mul_f32 v{D+i}, v{D+i}, v{B}")
    for i in range(10): e(f"v_cvt_pk_bf16_f32 v{OUT+i}, v{D+2*i}, v{D+2*i+1}")

def gen_prep(name, ts=False):
    e = Em()
    def stamp(idx):
        if not ts: return
        e(f"s_memtime s[56:57]\ns_memrealtime s[58:59]\ns_waitcnt lgkmcnt(0)\nv_mov_b32 v85, s56\nv_mov_b32 v86, {4*idx}\nv_mov_b32 v87, s58")
        e.vm("ts", f"buffer_store_dword v85, v86, s[52:55], s60 offen")
        e.vm("ts", f"buffer_store_dword v87, v86, s[52:55], s60 offen offset:32")
    e(khead(name))
    e(f"s_cmp_ge_u32 s2, 256\ns_cbranch_scc1 {name}_end")
    e("s_load_dwordx2 s[4:5], s[0:1], 0\ns_load_dwordx2 s[6:7], s[0:1], 24\ns_load_dwordx2 s[8:9], s[0:1], 96")
    e("""v_lshrrev_b32 v1, 5, v0
    v_and_b32 v2, 31, v0
    s_lshr_b32 s10, s2, 2
    s_lshl_b32 s10, s10, 5
    s_and_b32 s11, s2, 3
    s_lshl_b32 s11, s11, 2
    s_add_u32 s10, s10, s11
    v_and_b32 v3, 3, v1
    v_lshrrev_b32 v4, 2, v1
    v_lshl_add_u32 v3, v4, 4, v3
    v_add_u32 v3, s10, v3
    v_mul_u32_u24 v3, 1280, v3
    v_lshl_add_u32 v3, v2, 3, v3
    v_lshrrev_b32 v4, 6, v0
    s_nop 0
    v_readfirstlane_b32 s33, v4
    v_and_b32 v5, 63, v0""")
    e("s_waitcnt lgkmcnt(0)")
    srd(e, 12, 4, 5, 2048*1280)
    srd(e, 16, 6, 7, 640*8192)
    srd(e, 20, 8, 9, XN_SZ, XN_OFF or None)
    srd(e, 24, 8, 9, HT_SZ, HT_OFF)
    if ts:
        srd(e, 52, 8, 9, 0x100000, TS_OFF+0x20000)
        e("s_lshl_b32 s60, s2, 2\ns_add_u32 s60, s60, s33\ns_lshl_b32 s60, s60, 6")
    stamp(0)
    for j in range(5):
        e.vm("x", f"buffer_load_dwordx2 v[{10+2*j}:{11+2*j}], v3, s[12:15], 0 offen offset:{256*j}")
    e("""s_lshr_b32 s34, s2, 3
    s_lshl_b32 s34, s34, 2
    s_add_u32 s34, s34, s33
    s_mul_i32 s34, s34, 40960
    s_and_b32 s35, s2, 7
    s_lshl_b32 s35, s35, 10
    s_add_u32 s34, s34, s35
    v_min_u32 v6, 39, v5
    v_lshrrev_b32 v7, 3, v6
    v_and_b32 v6, 7, v6
    v_lshlrev_b32 v6, 7, v6
    v_lshl_add_u32 v6, v7, 13, v6""")
    e.vm("pf", "buffer_load_dword v84, v6, s[16:19], s34 offen")
    e.wvm("x")
    stamp(1)
    X, D, O1, O2 = 20, 40, 60, 70
    unpack(e, 10, X, 10)
    layernorm(e, X, D, O1, 80, 81, 82)
    unpack(e, O1, X, 10)
    layernorm(e, X, D, O2, 80, 81, 82)
    XS, HS = 0, 10240
    e(f"v_mul_u32_u24 v6, 1280, v1\nv_lshl_add_u32 v6, v2, 3, v6")
    for j in range(5):
        e.ds("w", f"ds_write_b64 v6, v[{O1+2*j}:{O1+2*j+1}] offset:{XS+256*j}")
        e.ds("w", f"ds_write_b64 v6, v[{O2+2*j}:{O2+2*j+1}] offset:{HS+256*j}")
    e(f"""v_and_b32 v7, 3, v0
    v_bfe_u32 v8, v0, 2, 2
    v_bfe_u32 v9, v0, 4, 1
    v_lshrrev_b32 v10, 5, v0
    v_lshl_add_u32 v11, v9, 2, v7
    v_mul_u32_u24 v11, 1280, v11
    v_lshl_add_u32 v11, v10, 6, v11
    v_lshl_add_u32 v11, v8, 3, v11
    v_add_u32 v11, {XS}, v11
    s_lshr_b32 s41, s2, 2
    s_lshl_b32 s41, s41, 1
    v_add_u32 v12, s41, v9
    v_mul_u32_u24 v12, 20, v12
    v_add_u32 v12, v12, v10
    v_lshlrev_b32 v12, 6, v12
    v_lshl_add_u32 v12, v8, 4, v12
    v_add_u32 v12, v12, v7
    v_add_u32 v12, s11, v12
    v_lshlrev_b32 v12, 4, v12""")
    e(f"""v_bfe_u32 v13, v5, 2, 2
    v_mul_u32_u24 v13, 1280, v13
    v_lshrrev_b32 v14, 4, v5
    v_lshl_add_u32 v13, v14, 5, v13
    v_and_b32 v15, 3, v5
    v_lshl_add_u32 v13, v15, 3, v13
    s_lshl_b32 s42, s33, 7
    v_add_u32 v13, s42, v13
    v_add_u32 v13, {HS}, v13
    s_lshl_b32 s43, s33, 2
    v_add_u32 v16, s43, v14
    v_lshlrev_b32 v16, 16, v16
    v_and_b32 v17, 15, v5
    v_lshl_add_u32 v16, v17, 4, v16
    s_lshl_b32 s44, s2, 8
    v_add_u32 v16, s44, v16""")
    stamp(2)
    e.wds("ALL")
    e("s_barrier")
    stamp(3)
    for n in range(2):
        e.ds(f"x{n}", f"ds_read2_b64 v[{20+4*n}:{23+4*n}], v11 offset0:{64*n} offset1:{64*n+4}")
    for n in range(2):
        for hj in range(2):
            e.ds(f"h{n}", f"ds_read_b64_tr_b16 v[{32+4*n+2*hj}:{33+4*n+2*hj}], v13 offset:{512*n+5120*hj}")
    e("s_mov_b32 s48, 8192\ns_mov_b32 s49, 0x100000\ns_mov_b32 s50, 0x200000\ns_mov_b32 s51, 16384")
    e.wds("x0"); e("buffer_store_dwordx4 v[20:23], v12, s[20:23], 0 offen")
    e.wds("x1"); e("buffer_store_dwordx4 v[24:27], v12, s[20:23], s48 offen")
    e.wds("h0"); e("buffer_store_dwordx4 v[32:35], v16, s[24:27], 0 offen")
    e.wds("h1"); e("buffer_store_dwordx4 v[36:39], v16, s[24:27], s49 offen")
    stamp(4)
    e(f"s_cmp_ge_u32 s33, 2\ns_cbranch_scc1 {name}_end")
    e("ds_read2_b64 v[28:31], v11 offset0:128 offset1:132")
    for hj in range(2):
        e(f"ds_read_b64_tr_b16 v[{40+2*hj}:{41+2*hj}], v13 offset:{1024+5120*hj}")
    e("s_waitcnt lgkmcnt(0)")
    e("buffer_store_dwordx4 v[28:31], v12, s[20:23], s51 offen")
    e("buffer_store_dwordx4 v[40:43], v16, s[24:27], s50 offen")
    e(f"{name}_end:\ns_endpgm")
    return "\n".join(resolve(e.items)), kdesc(name, 88, 88, 64)
```

```python
from asmlib import *
import math, sys

XN_OFF, HT_OFF, U_OFF, WOF_OFF, OF_OFF = 0x0, 0x280000, 0x500000, 0x800000, 0x1000000
WS_SZ = 0x2000000
TS_OFF = 0x2000000
NAME = "recurrent_scan__mha_block_cached__mixer_token_mlp__prompt_kernel"
MF = "v_mfma_f32_16x16x32_bf16"
V_LANE, V_KA, V_VA, V_DM, V_IDX, V_T, V_ONE = 1, 2, 6, 14, 16, 17, 28
V_PFA, V_PFD = 24, 25
V_Q, V_S, V_P, V_M, V_L = 32, 96, 160, 224, 240
A_O, A_K, A_V = 0, 128, 192
S_K, S_V, S_WQ, S_WS, S_W1, S_B1, S_W2, S_WO, S_X, S_DBG, S_B2, S_OUT, S_CODE, S_TS = 4, 8, 12, 16, 20, 24, 28, 32, 36, 60, 64, 68, 72, 84
S_W4K, S_KOFF, S_VOFF, S_CNT, S_WAVE, S_PASS, S_OST, S_STATE, S_PF = 40, 41, 42, 43, 44, 45, 57, 58, 59
S_CPF = 3
S_QB, S_XCD, S_UG, S_SLOT, S_TAG = 80, 81, 82, 83, 89
LDS_K, LDS_V, LDS_FLAG = 0, 65536, 131072
LAG = 10
NTQ = " nt"
SC = " sc1"

class Ctx:
    ts = False
    uid = 0
def lab(p):
    Ctx.uid += 1
    return f"L{p}_{Ctx.uid}"
def R(t): return [("raw", x.strip()) for x in t.strip("\n").split("\n") if x.strip()]

def stamp(e, idx):
    if Ctx.ts:
        e(f"s_memtime s[90:91]\ns_memrealtime s[92:93]\ns_waitcnt lgkmcnt(0)\nv_writelane_b32 v0, s90, {idx}\nv_writelane_b32 v0, s92, {32+idx}")

FL_OFF = 0xE00000
C_XN, C_H, C_O, C_U, C_W = 0, 1, 2, 3, 4
def signal(kind, sg, t):
    l = lab("sig")
    if kind == C_H:
        st = f"v_mov_b32 v{t}, 1\nv_lshlrev_b32 v{t+1}, 2, v{t+1}\ns_mov_b64 exec, 1\nbuffer_atomic_add v{t}, v{t+1}, s[{S_DBG}:{S_DBG+3}], 0 offen offset:128 sc1"
    else:
        st = f"v_mov_b32 v{t}, s{S_TAG}\nv_lshlrev_b32 v{t+1}, 7, v{t+1}\nv_add_u32 v{t+1}, {FL_OFF+kind*32768}, v{t+1}\ns_mov_b64 exec, 1\nbuffer_store_dword v{t}, v{t+1}, s[{S_WS}:{S_WS+3}], 0 offen sc1"
    return R(f"""s_bitcmp1_b32 s{S_STATE}, {kind}
    s_cbranch_scc1 {l}
    s_bitset1_b32 s{S_STATE}, {kind}
    v_mov_b32 v{t+1}, s{sg}
    {st}
    s_mov_b64 exec, -1
    {l}:""")
def flag_addr(a, kind, sg, n):
    r = R(f"v_min_u32 v{a}, {n-1}, v{V_LANE}\nv_lshlrev_b32 v{a}, 7, v{a}")
    if sg is not None: r += R(f"s_lshl_b32 s56, s{sg}, 12\ns_add_u32 s56, s56, {FL_OFF+kind*32768}\nv_add_u32 v{a}, s56, v{a}")
    else: r += R(f"v_add_u32 v{a}, {FL_OFF+kind*32768}, v{a}")
    return r
def poll_ld(d, a, srd=None):
    srd = S_WS if srd is None else srd
    return [("vm", "poll", f"buffer_load_dword v{d}, v{a}, s[{srd}:{srd+3}], 0 offen sc1")]
def spin(e, d, a, sleep, have=False, cmp=None, srd=None):
    l0, l1 = lab("spin"), lab("spun")
    srd = S_WS if srd is None else srd
    cmp = cmp or f"v_cmp_ne_u32 vcc, s{S_TAG}, v{d}"
    if have: e(f"{cmp}\ns_cbranch_vccz {l1}")
    e(f"""s_mov_b32 s56, 0x40000
    {l0}:
    buffer_load_dword v{d}, v{a}, s[{srd}:{srd+3}], 0 offen sc1
    s_waitcnt vmcnt(0)
    {cmp}
    s_cbranch_vccz {l1}
    s_sleep {sleep}
    s_sub_u32 s56, s56, 1
    s_cmp_lg_u32 s56, 0
    s_cbranch_scc1 {l0}
    {l1}:""")

def Sreg(kb, qb): return V_S + 16*kb + 4*qb
def Preg(par, qb, t): return V_P + 32*par + 8*qb + 4*t
def Qreg(qb, ks): return V_Q + 16*qb + 4*ks
def Kreg(kb, ks): return A_K + 16*kb + 4*ks
def Vreg(db, t): return A_V + 8*db + 4*t
def Oreg(db, qb): return A_O + 16*db + 4*qb

def allreduce32(e, v, t):
    for k in (8, 4, 2, 1):
        e(f"s_nop 1\nv_add_f32_dpp v{v}, v{v}, v{v} row_ror:{k} row_mask:0xf bank_mask:0xf")
    e(f"v_mov_b32 v{t}, v{v}\ns_nop 1\nv_permlane16_swap_b32 v{t}, v{v}\ns_nop 1\nv_add_f32 v{v}, v{v}, v{t}")
def round_bf16(e, v): e(f"v_cvt_pk_bf16_f32 v{v}, v{v}, v{v}\nv_and_b32 v{v}, 0xffff0000, v{v}")
def unpack(e, src, dst, n, smask):
    for i in range(n): e(f"v_lshlrev_b32 v{dst+2*i}, 16, v{src+i}\nv_and_b32 v{dst+2*i+1}, s{smask}, v{src+i}")
def pk(op, d, a, b, bc=False):
    return f"v_pk_{op}_f32 {vr(d,2)}, {vr(a,2)}, {vr(b,2)}" + (" op_sel_hi:[1,0]" if bc else "")
def layernorm(e, X, D, OUT, A, smask):
    B, T = A+2, A+4
    e(pk("add", A, X, X+2))
    for i in range(4, 20, 2): e(pk("add", A, A, X+i))
    e(f"v_add_f32 v{A}, v{A}, v{A+1}")
    allreduce32(e, A, T)
    e(f"v_mul_f32 v{A}, {fhex(-1.0/640)}, v{A}")
    for i in range(0, 20, 2): e(pk("add", D+i, X+i, A, True))
    e(pk("mul", B, D, D))
    for i in range(2, 20, 2): e(f"v_pk_fma_f32 {vr(B,2)}, {vr(D+i,2)}, {vr(D+i,2)}, {vr(B,2)}")
    e(f"v_add_f32 v{B}, v{B}, v{B+1}")
    allreduce32(e, B, T)
    e(f"v_mul_f32 v{B}, {fhex(1.0/640)}, v{B}")
    round_bf16(e, A); round_bf16(e, B)
    e(f"v_add_f32 v{B}, {fhex(1e-5)}, v{B}")
    round_bf16(e, B)
    e(f"v_sqrt_f32 v{B}, v{B}\ns_nop 0")
    round_bf16(e, B)
    e(f"v_rcp_f32 v{B}, v{B}")
    for i in range(0, 20, 2): e(pk("add", D+i, X+i, A, True))
    for i in range(10): e(f"v_cvt_pk_bf16_f32 v{OUT+i}, v{D+2*i}, v{D+2*i+1}")
    unpack(e, OUT, D, 10, smask)
    for i in range(0, 20, 2): e(pk("mul", D+i, D+i, B, True))
    for i in range(10): e(f"v_cvt_pk_bf16_f32 v{OUT+i}, v{D+2*i}, v{D+2*i+1}")

def dma_kv(which, slot, tag):
    base = (LDS_K if which == "K" else LDS_V) + 16384*slot
    s, off = (S_K, S_KOFF) if which == "K" else (S_V, S_VOFF)
    m0 = ("raw", f"s_add_u32 m0, s{S_W4K}, {base}")
    d = [("vm", tag, f"buffer_load_dwordx4 v{V_DM+(n&1)}, s[{s}:{s+3}], s{off} offen offset:{1024*n} lds") for n in range(4)]
    inc = ("raw", f"s_add_u32 s{off}, s{off}, 16384")
    return m0, d, inc
def k_reads(slot, tag):
    return [("ds", tag, f"ds_read_b128 {ar(Kreg(kb,ks),4)}, v{V_KA+ks} offset:{16384*slot+4096*kb}") for kb in range(4) for ks in range(4)]
def v_reads(slot, tag):
    return [("ds", (tag, db), f"ds_read_b64_tr_b16 {ar(Vreg(db,t)+2*hj,2)}, v{V_VA+db} offset:{16384*slot+4096*(2*t+hj)}")
            for db in range(8) for t in range(2) for hj in range(2)]

def attn_iter(e, i, do_qk=True, do_pv=True, first_pv=False, dma=True, wrap_in=True, extra=None, pf=False, endbar=True, late=None):
    NG = 132
    mf = [None]*NG
    gaps = [[] for _ in range(NG)]
    par = i & 1
    if do_qk:
        for n in range(64):
            kb, qb, ks = n//16, (n//4) % 4, n % 4
            c = vr(V_M+4*qb, 4) if ks == 0 else vr(Sreg(kb,qb), 4)
            mf[n] = f"{MF} {vr(Sreg(kb,qb),4)}, {ar(Kreg(kb,ks),4)}, {vr(Qreg(qb,ks),4)}, {c}"
    if do_pv:
        for m in range(64):
            db, qb, t = m//8, (m//2) % 4, m % 2
            c = "0" if (first_pv and t == 0) else ar(Oreg(db,qb), 4)
            mf[64+m] = f"{MF} {ar(Oreg(db,qb),4)}, {ar(Vreg(db,t),4)}, {vr(Preg(par,qb,t),4)}, {c}"
        for qb in range(4):
            mf[128+qb] = f"v_smfmac_f32_16x16x64_bf16 {vr(V_L+4*qb,4)}, {vr(V_ONE,4)}, {vr(Preg(par,qb,0),8)}, v{V_IDX}"
        for j, it in enumerate(v_reads(i % 4, ("V", i))): gaps[1+2*j].append(it)
        gaps[63].append(("wait", None, (("V", i), 5)))
        gaps[75].append(("wait", None, (("V", i), 7)))
    if do_qk and dma != "nok":
        kpos = [65,69,71,73,77,79,81,85,87,89,93,95,97,101,103,105]
        for p, it in zip(kpos, k_reads((i+2) % 4, ("K", i+2))): gaps[p].insert(0, it)
    if dma is True:
        m0, d, inc = dma_kv("K", (i+5) % 4, ("D", i))
        gaps[6].append(m0)
        for j in range(4): gaps[67+8*j].insert(0, d[j])
        gaps[91].append(inc)
        m0, d, inc = dma_kv("V", (i+3) % 4, ("D", i))
        gaps[95].append(m0)
        for j in range(4): gaps[99+8*j].insert(0, d[j])
        gaps[123].append(inc)
    if pf:
        k = i % 4
        sp = {1: S_W1, 2: S_W2, 3: S_WO, 0: S_CODE}[k]
        so = S_PF if k else S_CPF
        gaps[8].insert(0, ("vm", ("D", i), f"buffer_load_dword v{V_PFD}, v{V_PFA}, s[{sp}:{sp+3}], s{so} offen"))
        if k == 0: gaps[8].append(("raw", f"s_add_u32 s{S_PF}, s{S_PF}, 1024"))
    if extra:
        for pos, grp in extra: gaps[pos] = list(grp) + gaps[pos]
    if late:
        for pos, grp in late: gaps[pos] += list(grp)
    def expi(x): return ("raw", f"v_exp_f32 v{V_S+x}, v{V_S+x}")
    def cvti(c, p):
        x = 2*c; kb, qb, r = x//16, (x//4) % 4, x % 4
        return ("raw", f"v_cvt_pk_bf16_f32 v{Preg(p,qb,kb//2)+2*(kb%2)+r//2}, v{V_S+x}, v{V_S+x+1}")
    for x in range(64):
        n = 2*x + LAG
        if n < NG:
            if do_qk: gaps[n].append(expi(x))
        elif wrap_in: gaps[n-NG].append(expi(x))
    for c in range(32):
        n = 4*c + LAG + 3
        if n < NG:
            if do_qk: gaps[n].append(cvti(c, par ^ 1))
        elif wrap_in: gaps[n-NG].append(cvti(c, par))
    if do_qk and endbar:
        vt = ("D", i-2) if dma is True else "ALL"
        gaps[131].append(("wait", vt, "ALL"))
        gaps[131].append(("raw", "s_barrier"))
    for n in range(NG):
        if mf[n] is not None: e(mf[n])
        elif gaps[n]: e("s_nop 0")
        for it in gaps[n]: e.add(it)

def xlane(e, v, t, op):
    e(f"v_mov_b32 v{t}, v{v}\ns_nop 1\nv_permlane16_swap_b32 v{t}, v{v}\ns_nop 1\n{op} v{v}, v{v}, v{t}")
    e(f"v_mov_b32 v{t}, v{v}\ns_nop 1\nv_permlane32_swap_b32 v{t}, v{v}\ns_nop 1\n{op} v{v}, v{v}, v{t}")

class QP:
    V_WD, V_WA, V_XO = V_T, V_T+2, V_T+6
    S_WOFF, S_XOFF, S_TMP = 46, 47, 48
    @staticmethod
    def slot(j): return (j+2) % 4
    @classmethod
    def addr_dma(c, e, T):
        e(f"""v_lshrrev_b32 v{T}, 4, v{V_LANE}
        v_and_b32 v{T+1}, 15, v{V_LANE}
        v_lshlrev_b32 v{T+2}, 1, v{T}
        v_xor_b32 v{T+1}, v{T+1}, v{T+2}
        v_lshlrev_b32 v{T+1}, 4, v{T+1}
        v_lshl_add_u32 v{c.V_WD}, v{T}, 13, v{T+1}
        v_xor_b32 v{c.V_WD+1}, 128, v{c.V_WD}
        s_lshl_b32 s{c.S_WOFF}, s{S_WAVE}, 17""")
    @classmethod
    def wq_dma(c, j):
        return [[("raw", f"s_add_u32 m0, s{S_W4K}, {LDS_V+16384*c.slot(j)+1024*n}"),
                 ("raw", f"s_add_u32 s{c.S_TMP}, s{c.S_WOFF}, {j*64*8192+n*4*8192}"),
                 ("vm", ("W", j), f"buffer_load_dwordx4 v{c.V_WD+(n&1)}, s[{S_WQ}:{S_WQ+3}], s{c.S_TMP} offen lds")] for n in range(4)]

def qproj(e):
    c = QP
    V_WA, V_XO, S_XOFF, S_TMP, slot = c.V_WA, c.V_XO, c.S_XOFF, c.S_TMP, c.slot
    ACC = V_S
    def Xreg(j, qb, t): return A_O + 32*(j % 4) + 8*qb + 4*t
    def xn_ld(j):
        r = []
        for qb in range(4):
            r.append([("raw", f"s_add_u32 s{S_TMP+1}, s{S_XOFF}, {qb*20480+j*2048}"),
                      ("vm", ("X", j), f"buffer_load_dwordx4 {ar(Xreg(j,qb,0),4)}, v{V_XO}, s[{S_WS}:{S_WS+3}], s{S_TMP+1} offen{SC}")])
            r.append([("vm", ("X", j), f"buffer_load_dwordx4 {ar(Xreg(j,qb,1),4)}, v{V_XO}, s[{S_WS}:{S_WS+3}], s{S_TMP+1} offen offset:1024{SC}")])
        return r
    def Wreg(j, a, t): return (A_K if j % 2 == 0 else A_V) + 8*a + 4*t
    def w_reads(j):
        return [("ds", ("Wr", j), f"ds_read_b64_tr_b16 {ar(Wreg(j,a,t)+2*hj,2)}, v{V_WA+a//2} offset:{16384*slot(j)+4096*(2*t+hj)+8*(a&1)}")
                for a in range(8) for t in range(2) for hj in range(2)]
    def kv(which, tile, tag):
        m0, d, inc = dma_kv(which, tile % 4, tag)
        return [[m0, ("raw", "s_nop 0"), d[0]], [d[1]], [d[2]], [d[3], inc]]
    for j in range(4):
        for grp in xn_ld(j):
            for it in grp: e.add(it)
    for it in w_reads(0): e.add(it)
    for j in range(10):
        if 4 <= j+1 <= 9: e.wvm(("W", j+1))
        if j == 9: e.wvm("K0")
        e.wvm(("X", j)); e.wds("ALL"); e("s_barrier")
        grps = []
        if j+4 < 10: grps += c.wq_dma(j+4)
        if 1 <= j and j+3 < 10: grps += xn_ld(j+3)
        if j == 5: grps += kv("K", 0, "K0")
        if j == 6: grps += kv("K", 1, "K1")
        if j == 7: grps += kv("K", 2, ("D", -3)) + kv("V", 0, ("D", -3))
        if j == 8: grps += kv("K", 3, ("D", -2)) + kv("V", 1, ("D", -2))
        rd = w_reads(j+1) if j < 9 else k_reads(0, ("K", 0))
        gaps = [[] for _ in range(64)]
        for k, it in enumerate(rd): gaps[(k*56)//len(rd) if len(rd) == 32 else 2*k].append(it)
        free = [n for n in range(64) if not gaps[n]]
        for k, grp in enumerate(grps): gaps[free[(k*len(free))//max(len(grps),1)]] += grp
        if j == 1: gaps[63] += signal(C_H, S_QB, V_T+8)
        for m in range(64):
            a, qb, t = m//8, (m//2) % 4, m % 2
            d = vr(ACC+16*a+4*qb, 4)
            cc = "0" if (j == 0 and t == 0) else d
            e(f"{MF} {d}, {ar(Wreg(j,a,t),4)}, {ar(Xreg(j,qb,t),4)}, {cc}")
            for it in gaps[m]: e.add(it)
    e(f"s_mov_b32 s{S_TMP}, {fhex(math.log2(math.e)/math.sqrt(128.0))}\ns_mov_b32 s{S_TMP+1}, s{S_TMP}\ns_nop 7")
    for a in range(8):
        for qb in range(4):
            r = ACC+16*a+4*qb
            e(f"v_pk_mul_f32 {vr(r,2)}, {vr(r,2)}, s[{S_TMP}:{S_TMP+1}]\nv_pk_mul_f32 {vr(r+2,2)}, {vr(r+2,2)}, s[{S_TMP}:{S_TMP+1}]")
            q = Qreg(qb, a//2) + 2*(a & 1)
            e(f"v_cvt_pk_bf16_f32 v{q}, v{r}, v{r+1}\nv_cvt_pk_bf16_f32 v{q+1}, v{r+2}, v{r+3}")

class G1:
    S_FB, S_DT, S_A, S_B, S_T, S_LB = 46, 47, 48, 49, 50, 53
    V_WD, V_WA, V_L16, V_B1 = 14, 2, 15, 18
    @staticmethod
    def acc(fb, db):
        k = 5*fb+db
        return V_S+4*k if k < 16 else V_M+4*(k-16)
    @staticmethod
    def H(p, db, t):
        s, k = p % 4, 2*db+t
        if s == 0: return ar(A_K+4*k, 4)
        if s == 1: return vr(V_Q+4*k, 4)
        if s == 2: return ar(A_K+40+4*k, 4) if k < 6 else vr(V_Q+40+4*(k-6), 4)
        return ar(A_V+4*k, 4)
    @staticmethod
    def W(p, fb, t): return V_P + 32*(p % 2) + 8*fb + 4*t
    @classmethod
    def setup(c):
        T = V_T+3
        L = f"""s_lshr_b32 s{c.S_T}, s2, 3
        s_and_b32 s{c.S_A}, s2, 7
        s_mul_i32 s{c.S_A}, s{c.S_A}, 27
        s_add_u32 s{c.S_T}, s{c.S_T}, s{c.S_A}
        s_lshr_b32 s{c.S_FB}, s{c.S_T}, 3
        s_and_b32 s{c.S_DT}, s{c.S_T}, 7
        s_mul_i32 s{c.S_LB}, s{S_WAVE}, 24576
        s_mul_i32 s{c.S_A}, s{S_WAVE}, {512*3456}
        s_lshl_b32 s{c.S_T+1}, s{c.S_FB}, 7
        s_add_u32 s{c.S_A}, s{c.S_A}, s{c.S_T+1}
        s_mul_i32 s{c.S_B}, s{c.S_DT}, {5*65536}
        s_lshl_b32 s{c.S_T+1}, s{S_WAVE}, 14
        s_add_u32 s{c.S_B}, s{c.S_B}, s{c.S_T+1}
        v_lshrrev_b32 v{T}, 3, v{V_LANE}
        v_and_b32 v{T+1}, 7, v{V_LANE}
        v_and_b32 v{T+2}, 6, v{T}
        v_xor_b32 v{T+1}, v{T+1}, v{T+2}
        v_mul_u32_u24 v{T}, 3456, v{T}
        v_lshl_add_u32 v{c.V_WD}, v{T+1}, 4, v{T}
        v_lshlrev_b32 v{c.V_L16}, 4, v{V_LANE}
        v_lshrrev_b32 v{T}, 2, v{V_LANE}
        v_and_b32 v{T+2}, 6, v{T}
        v_bfe_u32 v{T+1}, v{V_LANE}, 1, 1
        v_xor_b32 v{T+1}, v{T+1}, v{T+2}
        v_lshlrev_b32 v{T+1}, 4, v{T+1}
        v_lshl_add_u32 v{T+1}, v{T}, 7, v{T+1}
        v_and_b32 v{T+2}, 1, v{V_LANE}
        v_lshl_add_u32 v{T+1}, v{T+2}, 3, v{T+1}
        v_add_u32 v{T+1}, s{c.S_LB}, v{T+1}"""
        for fb in range(4):
            L += f"""
            s_add_u32 s{c.S_T+1}, s{S_WAVE}, {fb}
            s_and_b32 s{c.S_T+1}, s{c.S_T+1}, 3
            s_lshl_b32 s{c.S_T+1}, s{c.S_T+1}, 5
            v_xor_b32 v{c.V_WA+fb}, s{c.S_T+1}, v{T+1}"""
        L += f"""
        v_lshrrev_b32 v{T}, 4, v{V_LANE}
        v_lshlrev_b32 v{T}, 3, v{T}
        s_lshl_b32 s{c.S_T+1}, s{c.S_FB}, 7
        s_lshl_b32 s{c.S_T+2}, s{S_WAVE}, 5
        s_add_u32 s{c.S_T+1}, s{c.S_T+1}, s{c.S_T+2}"""
        r = R(L)
        r.append(("vm", "b1", f"buffer_load_dwordx2 v[{c.V_B1}:{c.V_B1+1}], v{T}, s[{S_B1}:{S_B1+3}], s{c.S_T+1} offen"))
        return r
    @classmethod
    def wl(c, p):
        return [[("raw", f"s_add_u32 m0, s{c.S_LB}, {8192*(p%3)+1024*n}"),
                 ("raw", f"s_add_u32 s{c.S_T+1}, s{c.S_A}, {(64*p+8*n)*3456}"),
                 ("vm", ("w", p), f"buffer_load_dwordx4 v{c.V_WD}, s[{S_W1}:{S_W1+3}], s{c.S_T+1} offen lds")] for n in range(8)]
    @classmethod
    def hl(c, p):
        r = []
        for db in range(5):
            r.append([("raw", f"s_add_u32 s{c.S_T+2}, s{c.S_B}, {HT_OFF+db*65536+p*2048}"),
                      ("vm", ("h", p), f"buffer_load_dwordx4 {c.H(p,db,0)}, v{c.V_L16}, s[{S_WS}:{S_WS+3}], s{c.S_T+2} offen{SC}")])
            r.append([("vm", ("h", p), f"buffer_load_dwordx4 {c.H(p,db,1)}, v{c.V_L16}, s[{S_WS}:{S_WS+3}], s{c.S_T+2} offen offset:1024{SC}")])
        return r
    @classmethod
    def reads(c, p):
        return [("ds", ("r", p), f"ds_read_b64_tr_b16 {vr(c.W(p,fb,t)+2*hj,2)}, v{c.V_WA+fb} offset:{8192*(p%3)+2048*(2*t+hj)}")
                for fb in range(4) for t in range(2) for hj in range(2)]

def o_frag_items(k, tmp, pkr, va):
    qb, t = k//4, k % 4
    r = [("raw", f"v_accvgpr_read_b32 v{tmp+j}, a{Oreg(2*t+j//4,qb)+j%4}") for j in range(8)]
    r += [("raw", f"v_mul_f32 v{tmp+j}, v{tmp+j}, v{V_L+4*qb}") for j in range(8)]
    r += [("raw", f"v_cvt_pk_bf16_f32 v{pkr+j}, v{tmp+2*j}, v{tmp+2*j+1}") for j in range(4)]
    r.append(("vm", "o", f"buffer_store_dwordx4 {vr(pkr,4)}, v{va}, s[{S_WS}:{S_WS+3}], s{S_OST} offen offset:{1024*t}{SC}"))
    if t == 3: r.append(("raw", f"s_add_u32 s{S_OST}, s{S_OST}, 0x20000"))
    return r

def rowsum_check(e):
    l0 = lab("nof")
    e(f"s_nop 7\ns_mov_b32 s56, {fhex(2.0**40)}\ns_mov_b64 s[54:55], 0")
    for qb in range(4):
        l = V_L+4*qb
        e(f"v_add_f32 v{l}, v{l}, v{l+1}")
        xlane(e, l, l+1, "v_add_f32")
        e(f"v_cmp_nge_f32 vcc, s56, v{l}\nv_rcp_f32 v{l}, v{l}\ns_or_b64 s[54:55], s[54:55], vcc")
    e(f"""s_cmp_eq_u64 s[54:55], 0
    s_cbranch_scc1 {l0}
    v_mov_b32 v{V_L+1}, {LDS_FLAG}
    v_mov_b32 v{V_L+2}, 1
    ds_write_b32 v{V_L+1}, v{V_L+2}
    s_waitcnt lgkmcnt(0)
    {l0}:""")

S_REDO = 55
def tail_gemm1(e):
    c = G1
    su = c.setup()
    pos = [n for n in range(3, 64, 4)]
    per = -(-len(su)//len(pos))
    ex30 = [(p, su[k*per:(k+1)*per]) for k, p in enumerate(pos)]
    w = c.wl(0)+c.wl(1)+c.wl(2)
    wpos = [n for n in range(65, 131, 2) if n != 75][:24]
    attn_iter(e, 10, dma="nok", extra=list(zip(wpos, w)), endbar=False, late=ex30)
    h = c.hl(0)+c.hl(1)+c.hl(2)
    ex31 = [(64+2*k, g) for k, g in enumerate(h)]
    late31 = [(95, [("wait", ("w", 0), None)])] + [(97+2*k, [it]) for k, it in enumerate(c.reads(0))]
    attn_iter(e, 11, do_qk=False, dma=False, extra=ex31, late=late31)
    stamp(e, 7)
    rowsum_check(e)
    TMP, PK = V_T+3, V_ONE
    NO = [0]*8
    ko = 0
    for k in range(16):
        for it in o_frag_items(k, V_S+8*(k % 4), V_S+32+4*(k % 8), c.V_L16): e.add(it)
    PSIG = 4
    for p in range(8):
        if p < 7: e.wvm(("w", p+1))
        e.wvm(("h", p))
        if p == PSIG: e.wvm("o")
        e.wds(("r", p))
        gaps = [[] for _ in range(40)]
        if p < 7:
            for k, it in enumerate(c.reads(p+1)): gaps[2*k].append(it)
        if p+3 < 8:
            for k, grp in enumerate(c.wl(p+3)+c.hl(p+3)): gaps[2*k+1] += grp
        oi = []
        for _ in range(NO[p]):
            oi += o_frag_items(ko, TMP, PK, c.V_L16); ko += 1
        for k, it in enumerate(oi): gaps[(k*40)//len(oi)].append(it)
        if p == PSIG:
            l0 = lab("nosig")
            gaps[0] += R(f"s_barrier\nv_mov_b32 v{TMP}, {LDS_FLAG}")
            gaps[32] += [("ds", "fl", f"ds_read_b32 v{TMP+1}, v{TMP}")]
            gaps[39] += [("wait", None, "fl")] + R(f"v_readfirstlane_b32 s{S_REDO}, v{TMP+1}\ns_nop 3\ns_cmp_lg_u32 s{S_REDO}, 0\ns_cbranch_scc1 {l0}") + signal(C_O, S_SLOT, TMP+2) + R(f"{l0}:")
        for m in range(40):
            fb, db, t = m//10, (m//2) % 5, m % 2
            if p == 7: fb = 3-fb
            d = vr(c.acc(fb,db), 4)
            cc = "0" if (p == 0 and t == 0) else d
            e(f"{MF} {d}, {vr(c.W(p,fb,t),4)}, {c.H(p,db,t)}, {cc}")
            for it in gaps[m]: e.add(it)
            if p == 7 and m == 0: e(f"v_add_u32 v10, s{c.S_LB}, v{c.V_L16}")
            if p == 7 and m >= 11 and m % 2 == 1:
                k = (m-11)//2; fb2, db2 = 3-k//5, k % 5
                e(f"ds_write_b128 v10, {vr(c.acc(fb2,db2),4)} offset:{5120*(fb2-1)+1024*db2}")
    S_T, S_A, S_B = c.S_T, c.S_A, c.S_B
    for fb in range(1, 4):
        e(f"""s_add_u32 s{S_T}, s{S_WAVE}, {4-fb}
        s_and_b32 s{S_T}, s{S_T}, 3
        s_mul_i32 s{S_T}, s{S_T}, 24576
        v_add_u32 v{10+fb}, s{S_T}, v{c.V_L16}""")
    B = c.V_B1
    e(f"""v_lshlrev_b32 v20, 16, v{B}
    v_and_b32 v21, 0xffff0000, v{B}
    v_lshlrev_b32 v22, 16, v{B+1}
    v_and_b32 v23, 0xffff0000, v{B+1}
    s_mov_b32 s{S_A}, {fhex(-2*math.log2(math.e)*math.sqrt(2/math.pi))}
    s_mov_b32 s{S_B}, {fhex(-2*math.log2(math.e)*math.sqrt(2/math.pi)*0.044715)}
    v_mov_b32 v24, s{S_A}""")
    X = V_S
    e(f"s_lshl_b32 s{S_UG}, s{c.S_DT}, 5\ns_add_u32 s{S_UG}, s{S_UG}, s{c.S_FB}")
    for it in flag_addr(28, C_O, S_XCD, 32) + flag_addr(29, C_W, None, 40): e.add(it)
    e("s_waitcnt lgkmcnt(0)\ns_barrier")
    for it in poll_ld(26, 28) + poll_ld(27, 29): e.add(it)
    Rr = V_Q
    for fb in range(1, 4):
        for db in range(5): e(f"ds_read_b128 {vr(Rr+20*(fb-1)+4*db,4)}, v{10+fb} offset:{5120*(fb-1)+1024*db}")
    for k in range(0, 20, 2): e(pk("add", X+k, X+k, 20+k % 4))
    e(f"""s_mul_i32 s{S_T}, s{c.S_DT}, {5*54*1024}
    s_lshl_b32 s{S_T+1}, s{c.S_FB}, 11
    s_add_u32 s{S_T}, s{S_T}, s{S_T+1}
    s_lshr_b32 s{S_T+1}, s{S_WAVE}, 1
    s_lshl_b32 s{S_T+1}, s{S_T+1}, 10
    s_add_u32 s{S_T}, s{S_T}, s{S_T+1}
    s_and_b32 s{S_T+1}, s{S_WAVE}, 1
    s_lshl_b32 s{S_T+1}, s{S_T+1}, 3
    s_add_u32 s{S_T}, s{S_T}, s{S_T+1}
    s_add_u32 s{S_T}, s{S_T}, {U_OFF}
    s_waitcnt lgkmcnt(5)""")
    for k in range(0, 20, 2): e(pk("add", Rr+k, Rr+k, Rr+20+k))
    for k in range(0, 20, 2): e(pk("add", X+k, X+k, Rr+k))
    e("s_waitcnt lgkmcnt(0)")
    for k in range(0, 20, 2): e(pk("add", X+k, X+k, Rr+40+k))
    Z = X+20
    for k in range(0, 20, 2): e(pk("mul", Z+k, X+k, X+k))
    for k in range(20): e(f"v_fma_f32 v{Z+k}, v{Z+k}, s{S_B}, v24")
    for k in range(0, 20, 2): e(pk("mul", Z+k, Z+k, X+k))
    for k in range(20): e(f"v_exp_f32 v{Z+k}, v{Z+k}")
    for k in range(20): e(f"v_add_f32 v{Z+k}, 1.0, v{Z+k}")
    for k in range(20): e(f"v_rcp_f32 v{Z+k}, v{Z+k}")
    e("s_nop 0")
    for k in range(0, 20, 2): e(pk("mul", X+k, X+k, Z+k))
    for k in range(10): e(f"v_cvt_pk_bf16_f32 v{Z+20+k}, v{X+2*k}, v{X+2*k+1}")
    for db in range(5):
        e(f"buffer_store_dwordx2 {vr(Z+20+2*db,2)}, v{c.V_L16}, s[{S_WS}:{S_WS+3}], s{S_T} offen{SC}")
        e(f"s_add_u32 s{S_T}, s{S_T}, {54*1024}")
    stamp(e, 8)
    e(f"s_cmp_lg_u32 s{S_REDO}, 0\ns_cbranch_scc1 K_redo\ns_waitcnt vmcnt(5)\ns_branch K_final")

def tail_plain(e):
    attn_iter(e, 10, dma="nok", endbar=False)
    attn_iter(e, 11, do_qk=False, dma=False)
    stamp(e, 7)
    rowsum_check(e)
    e(f"v_lshlrev_b32 v{V_T}, 4, v{V_LANE}\ns_barrier")
    e(f"""s_cmp_lg_u32 s{S_PASS}, 0
    s_cbranch_scc1 K_plain_o
    s_sub_u32 s46, s2, 216
    s_lshl_b32 s46, s46, 2
    s_add_u32 s46, s46, s{S_WAVE}
    s_lshl_b32 s46, s46, 2
    s_lshl_b32 s47, s{S_WAVE}, 15
    v_lshrrev_b32 v20, 4, v{V_LANE}
    v_and_b32 v21, 15, v{V_LANE}
    v_lshlrev_b32 v22, 1, v20
    v_xor_b32 v21, v21, v22
    v_mul_u32_u24 v20, 1280, v20
    v_lshl_add_u32 v22, v21, 4, v20
    v_xor_b32 v21, 8, v21
    v_lshl_add_u32 v23, v21, 4, v20
    s_sub_u32 s48, s47, {LDS_V}""")
    for db in range(8): e(f"v_add_u32 v{V_VA+db}, s48, v{V_VA+db}")
    for n in range(4):
        e(f"""s_add_u32 s49, s46, {n}
        s_mul_i32 s50, s49, 52429
        s_lshr_b32 s50, s50, 18
        s_mul_i32 s51, s50, 5
        s_sub_u32 s51, s49, s51
        s_mul_i32 s52, s50, {32*1280}
        s_lshl_b32 s53, s51, 8
        s_add_u32 s52, s52, s53
        s_lshl_b32 s50, s50, 10
        s_lshl_b32 s51, s51, 20
        s_add_u32 s50, s50, s51
        s_add_u32 s{76+n}, s50, {WOF_OFF}""")
        for pc in range(8):
            e(f"s_add_u32 m0, s47, {8192*n+1024*pc}\ns_add_u32 s53, s52, {4*1280*pc}")
            e(f"buffer_load_dwordx4 v{22+(pc&1)}, s[{S_WO}:{S_WO+3}], s53 offen lds")
    e("K_plain_o:")
    for k in range(16):
        for it in o_frag_items(k, V_P+8*(k % 4), V_P+32+4*(k % 8), V_T): e.add(it)
    e(f"""s_cmp_lg_u32 s{S_PASS}, 0
    s_cbranch_scc1 K_plain_done
    s_waitcnt vmcnt(16)""")
    for n in range(4):
        for db in range(8):
            for hj in range(2):
                e.ds(("t", n, db), f"ds_read_b64_tr_b16 {vr(V_Q+32*n+4*db+2*hj,2)}, v{V_VA+db} offset:{8192*n+4096*hj}")
        for db in range(8):
            e.wds(("t", n, db))
            e(f"buffer_store_dwordx4 {vr(V_Q+32*n+4*db,4)}, v{V_T}, s[{S_WS}:{S_WS+3}], s{76+n} offen{SC}")
            e(f"s_add_u32 s{76+n}, s{76+n}, 0x20000")
    e(f"""v_mov_b32 v{V_T+1}, {LDS_FLAG}
    ds_read_b32 v{V_T+2}, v{V_T+1}
    s_waitcnt lgkmcnt(0)
    v_readfirstlane_b32 s{S_REDO}, v{V_T+2}
    s_nop 3
    s_cmp_lg_u32 s{S_REDO}, 0
    s_cbranch_scc1 K_redo
    K_plain_done:
    s_waitcnt vmcnt(0)
    s_barrier""")
    for it in signal(C_O, S_SLOT, V_T+1) + signal(C_W, S_UG, V_T+1): e.add(it)
    e("v_mov_b32 v26, 0\nv_mov_b32 v27, 0")
    for it in flag_addr(28, C_O, S_XCD, 32) + flag_addr(29, C_W, None, 40): e.add(it)
    stamp(e, 8)

def final(e):
    S_RB, S_CT, S_LB, S_A, S_B, S_T = 41, 42, 43, 46, 47, 48
    S_YA, S_YB, S_SB, S_SA = 52, 53, 54, 76
    V_L16, V_WD, V_WA = 2, 3, 4
    ACS, ACY = 16, 96
    e("K_final:")
    e(f"""s_and_b32 s50, s2, 7
    s_lshr_b32 s51, s2, 3
    s_lshr_b32 s52, s51, 3
    s_lshl_b32 s50, s50, 2
    s_add_u32 s{S_RB}, s50, s52
    s_and_b32 s{S_CT}, s51, 7
    s_lshl_b32 s{S_LB}, s{S_WAVE}, 15
    v_lshlrev_b32 v{V_L16}, 4, v{V_LANE}""")
    e(f"""v_lshrrev_b32 v10, 3, v{V_LANE}
    v_and_b32 v11, 7, v{V_LANE}
    v_and_b32 v12, 6, v10
    v_xor_b32 v11, v11, v12
    v_lshlrev_b32 v10, 12, v10
    v_lshl_add_u32 v{V_WD}, v11, 4, v10
    v_lshrrev_b32 v10, 2, v{V_LANE}
    v_and_b32 v12, 6, v10
    v_bfe_u32 v11, v{V_LANE}, 1, 1
    v_xor_b32 v11, v11, v12
    v_lshlrev_b32 v11, 4, v11
    v_lshl_add_u32 v11, v10, 7, v11
    v_and_b32 v12, 1, v{V_LANE}
    v_lshl_add_u32 v11, v12, 3, v11
    v_add_u32 v11, s{S_LB}, v11""")
    e(f"""s_mul_i32 s{S_YA}, s{S_WAVE}, {7*64*4096}
    s_lshl_b32 s{S_T}, s{S_RB}, 7
    s_add_u32 s{S_YA}, s{S_YA}, s{S_T}
    s_mul_i32 s{S_YB}, s{S_CT}, {5*54*1024}
    s_mul_i32 s{S_T}, s{S_WAVE}, {7*2048}
    s_add_u32 s{S_YB}, s{S_YB}, s{S_T}
    s_lshl_b32 s{S_T+1}, s{S_RB}, 19
    s_lshl_b32 s{S_T}, s{S_WAVE}, 15
    s_add_u32 s{S_T+1}, s{S_T+1}, s{S_T}
    s_add_u32 s{S_T+1}, s{S_T+1}, {OF_OFF}
    s_mul_i32 s{S_SB}, s{S_CT}, {5*0x20000}
    s_add_u32 s{S_SB}, s{S_SB}, s{S_T}""")
    for sb in range(4):
        e(f"""s_add_u32 s{S_T}, s{S_WAVE}, {sb}
        s_and_b32 s{S_T}, s{S_T}, 3
        s_lshl_b32 s{S_T+2}, s{S_T}, 5
        v_xor_b32 v{V_WA+sb}, s{S_T+2}, v11
        s_lshl_b32 s{S_T}, s{S_T}, 17
        s_add_u32 s{S_SA+sb}, s{S_T+1}, s{S_T}""")
    seq = [("S", q) for q in range(7)] + [("Y", q) for q in range(7)] + [("S", q) for q in range(7, 16)]
    NP = len(seq); Y0 = 7; Y1 = 14
    def Rg(p, k, n=4):
        s = p % 4
        return ar(72*s+k, n) if s < 3 else vr(184+k, n)
    def Areg(p, db, t, n=4, o=0): return Rg(p, 8*db+4*t+o, n)
    def Breg(p, sb, t, n=4, o=0): return Rg(p, 40+8*sb+4*t+o, n)
    WSR = f"s[{S_WS}:{S_WS+3}]"
    def loads(p):
        kind, q = seq[p]
        r = []
        if kind == "Y":
            for n in range(8):
                r.append([("raw", f"s_add_u32 m0, s{S_LB}, {8192*(q%3)+1024*n}"),
                          ("raw", f"s_add_u32 s{S_T}, s{S_YA}, {(64*q+8*n)*4096}"),
                          ("vm", ("w", p), f"buffer_load_dwordx4 v{V_WD}, s[{S_W2}:{S_W2+3}], s{S_T} offen lds")])
            for db in range(5):
                g = [("raw", f"s_add_u32 s{S_T+1}, s{S_YB}, {U_OFF+db*54*1024+q*2048}")]
                if q == 6: g += R(f"s_cmp_eq_u32 s{S_WAVE}, 3\ns_cselect_b32 s{S_T+1}, {WS_SZ}, s{S_T+1}")
                r.append(g+[("vm", ("a", p), f"buffer_load_dwordx4 {Areg(p,db,0)}, v{V_L16}, {WSR}, s{S_T+1} offen{SC}")])
                r.append([("vm", ("a", p), f"buffer_load_dwordx4 {Areg(p,db,1)}, v{V_L16}, {WSR}, s{S_T+1} offen offset:1024{SC}")])
        else:
            o = 2048*(q % 2)
            for sb in range(4):
                r.append([("vm", ("a", p), f"buffer_load_dwordx4 {Breg(p,sb,0)}, v{V_L16}, {WSR}, s{S_SA+sb} offen offset:{o}{SC}")])
                g = [("vm", ("a", p), f"buffer_load_dwordx4 {Breg(p,sb,1)}, v{V_L16}, {WSR}, s{S_SA+sb} offen offset:{o+1024}{SC}")]
                if q % 2: g.append(("raw", f"s_add_u32 s{S_SA+sb}, s{S_SA+sb}, 4096"))
                r.append(g)
            for db in range(5):
                r.append([("raw", f"s_add_u32 s{S_T+1}, s{S_SB}, {WOF_OFF+db*0x20000+q*2048}"),
                          ("vm", ("a", p), f"buffer_load_dwordx4 {Areg(p,db,0)}, v{V_L16}, {WSR}, s{S_T+1} offen{SC}")])
                r.append([("vm", ("a", p), f"buffer_load_dwordx4 {Areg(p,db,1)}, v{V_L16}, {WSR}, s{S_T+1} offen offset:1024{SC}")])
        return r
    def reads(p):
        q = seq[p][1]
        return [("ds", ("r", p), f"ds_read_b64_tr_b16 {Breg(p,sb,t,2,2*hj)}, v{V_WA+sb} offset:{8192*(q%3)+2048*(2*t+hj)}")
                for sb in range(4) for t in range(2) for hj in range(2)]
    spin(e, 26, 28, 8, have=True)
    spin(e, 27, 29, 8, have=True)
    stamp(e, 9)
    for p in range(3):
        for grp in loads(p):
            for it in grp: e.add(it)
    XR = 176
    e(f"""v_and_b32 v10, 15, v{V_LANE}
    v_lshrrev_b32 v11, 4, v{V_LANE}
    v_mul_u32_u24 v12, 1280, v10
    v_lshl_add_u32 v12, v11, 3, v12
    v_lshlrev_b32 v10, 1, v10
    s_lshl_b32 s{S_A}, s{S_RB}, 2
    s_add_u32 s{S_A}, s{S_A}, s{S_WAVE}
    s_lshl_b32 s{S_B}, s{S_A}, 5
    s_mul_i32 s{S_A}, s{S_A}, {16*1280}
    s_mul_i32 s{S_T}, s{S_CT}, 160
    s_add_u32 s{S_A}, s{S_A}, s{S_T}""")
    e.vm("e", f"buffer_load_ushort v13, v10, s[{S_B2}:{S_B2+3}], s{S_B} offen")
    for db in range(5):
        d = vr(XR+2*db, 2) if db < 4 else vr(8, 2)
        e.vm("e", f"buffer_load_dwordx2 {d}, v12, s[{S_X}:{S_X+3}], s{S_A} offen offset:{32*db}")
    def red_addr():
        r = R(f"v_add_u32 v{V_WA}, s{S_LB}, v{V_L16}")
        for k in range(1, 4):
            r += R(f"s_add_u32 s{S_T+2}, s{S_WAVE}, {4-k}\ns_and_b32 s{S_T+2}, s{S_T+2}, 3\ns_lshl_b32 s{S_T+2}, s{S_T+2}, 15\nv_add_u32 v{V_WA+k}, s{S_T+2}, v{V_L16}")
        return r
    def red_w(acc, base, tag):
        return [("ds", tag, f"ds_write_b128 v{V_WA}, {vr(acc+20*sb+4*db,4)} offset:{base+5120*(sb-1)+1024*db}") for sb in range(1, 4) for db in range(5)]
    def red_r(acc, base, tag):
        return [("ds", (tag, sb), f"ds_read_b128 {vr(acc+20*sb+4*db,4)}, v{V_WA+sb} offset:{base+5120*(sb-1)+1024*db}") for sb in range(1, 4) for db in range(5)]
    Y, Z = ACY, ACY+20
    ysum = R(f"v_lshlrev_b32 v13, 16, v13\ns_mov_b32 s{S_B}, {fhex(-math.log2(math.e))}")
    ysum += [("raw", f"v_add_f32 v{Y+k}, v{Y+k}, v{Y+20+k}") for k in range(20)]
    ysum += [("raw", f"v_add_f32 v{Y+40+k}, v{Y+40+k}, v{Y+60+k}") for k in range(20)]
    ysum += [("raw", f"v_add_f32 v{Y+k}, v{Y+k}, v13") for k in range(20)]
    ysum += [("raw", f"v_add_f32 v{Y+k}, v{Y+k}, v{Y+40+k}") for k in range(20)]
    ysum += [("raw", f"v_mul_f32 v{Z+k}, s{S_B}, v{Y+k}") for k in range(20)]
    ysum += [("raw", f"v_exp_f32 v{Z+k}, v{Z+k}") for k in range(20)]
    ysum += [("raw", f"v_add_f32 v{Z+k}, 1.0, v{Z+k}") for k in range(20)]
    ysum += [("raw", f"v_rcp_f32 v{Z+k}, v{Z+k}") for k in range(20)]
    ysum += [("raw", f"v_mul_f32 v{Y+k}, v{Y+k}, v{Z+k}") for k in range(20)]
    for k in range(10):
        src = XR+k if k < 8 else k
        ysum += R(f"v_lshlrev_b32 v{Z+2*k}, 16, v{src}\nv_and_b32 v{Z+2*k+1}, 0xffff0000, v{src}")
    for p in range(NP):
        kind, q = seq[p]
        nxtY = p+1 < NP and seq[p+1][0] == "Y"
        if p == Y0-3:
            e.wvm("poll")
            spin(e, 10, 11, 8, have=True)
        if nxtY: e.wvm(("w", p+1))
        e.wvm(("a", p))
        if kind == "Y": e.wds(("r", p))
        gaps = [[] for _ in range(40)]
        if nxtY:
            for k, it in enumerate(reads(p+1)): gaps[2*k].append(it)
        if p == Y0-4:
            gaps[0] += flag_addr(11, C_U, S_CT, 27) + poll_ld(10, 11)
        if p == 0:
            gaps[0] += R("s_barrier") + signal(C_U, S_UG, 14)
        if p+3 < NP:
            for k, grp in enumerate(loads(p+3)): gaps[2*k+1] += grp
        z = p-Y1
        if z == 0:
            for k, it in enumerate(red_addr()): gaps[2*(k//2)].append(it)
            for k, it in enumerate(red_w(ACY, 0, "yw")[:8]): gaps[24+2*k].append(it)
        if z == 1:
            for k, it in enumerate(red_w(ACY, 0, "yw")[8:]): gaps[2*k].append(it)
        if z == 2:
            gaps[0] += [("wait", None, "yw"), ("raw", "s_barrier")]
            for k, it in enumerate(red_r(ACY, 0, "yr")): gaps[2+2*k].append(it)
        if z == 3: gaps[0].append(("wait", None, "ALL"))
        if 3 <= z < 8:
            n = -(-len(ysum)//5)
            for k, it in enumerate(ysum[(z-3)*n:(z-2)*n]): gaps[2*(k*20//n)].append(it)
        acc = ACY if kind == "Y" else ACS
        for m in range(40):
            db, sb, t = m//8, (m//2) % 4, m % 2
            if p == NP-1: sb, db = 3-m//10, (m//2) % 5
            d = vr(acc+20*sb+4*db, 4)
            cc = "0" if (q == 0 and t == 0) else d
            e(f"{MF} {d}, {Areg(p,db,t)}, {Breg(p,sb,t)}, {cc}")
            for it in gaps[m]: e.add(it)
            if p == NP-1 and m >= 11 and m % 2 == 1:
                k = (m-11)//2; sb2, db2 = 3-k//5, k % 5
                e.ds("sw", f"ds_write_b128 v{V_WA}, {vr(ACS+20*sb2+4*db2,4)} offset:{15360+5120*(sb2-1)+1024*db2}")
        if p == Y0-1: stamp(e, 10)
        if p == Y1-1: stamp(e, 11)
    stamp(e, 12)
    e.wds("ALL"); e("s_barrier")
    for it in red_r(ACS, 15360, "sr"): e.add(it)
    e.wds(("sr", 2))
    for k in range(0, 20, 2): e(pk("add", ACS+k, ACS+k, ACS+20+k))
    for k in range(0, 20, 2): e(pk("add", ACS+k, ACS+k, ACS+40+k))
    e.wds("ALL")
    for k in range(0, 20, 2): e(pk("add", ACS+k, ACS+k, ACS+60+k))
    for db in range(5):
        for k in range(4*db, 4*db+4, 2): e(f"v_pk_fma_f32 {vr(Z+k,2)}, {vr(ACS+k,2)}, {vr(Y+k,2)}, {vr(Z+k,2)}")
        e(f"v_cvt_pk_bf16_f32 v{60+2*db}, v{Z+4*db}, v{Z+4*db+1}\nv_cvt_pk_bf16_f32 v{61+2*db}, v{Z+4*db+2}, v{Z+4*db+3}")
        e(f"buffer_store_dwordx2 {vr(60+2*db,2)}, v12, s[{S_OUT}:{S_OUT+3}], s{S_A} offen offset:{32*db}")
    stamp(e, 13)
    if Ctx.ts:
        e(f"""s_lshl_b32 s88, s2, 2
        s_add_u32 s88, s88, s{S_WAVE}
        s_lshl_b32 s88, s88, 8
        v_lshlrev_b32 v10, 2, v{V_LANE}
        buffer_store_dword v0, v10, s[{S_TS}:{S_TS+3}], s88 offen""")
    e("K_end:\ns_endpgm")

def gen(ts=False):
    Ctx.ts = ts; Ctx.uid = 0
    e = Em()
    e(khead(NAME))
    e("s_cmp_ge_u32 s2, 256\ns_cbranch_scc1 K_exit")
    for s, off in ((S_X,0),(S_WQ,24),(S_WS,96),(S_DBG,88),(S_K,8),(S_V,16),(S_WO,32)):
        e(f"s_load_dwordx2 s[{s}:{s+1}], s[0:1], {off}")
    e(f"s_getpc_b64 s[{S_CODE}:{S_CODE+1}]\nK_pc:")
    e(f"""v_and_b32 v{V_LANE}, 63, v0
    v_lshrrev_b32 v{V_T}, 6, v0
    s_and_b32 s50, s2, 7
    v_readfirstlane_b32 s{S_WAVE}, v{V_T}
    s_lshr_b32 s51, s2, 3
    s_lshr_b32 s52, s51, 3
    s_and_b32 s51, s51, 7
    s_lshl_b32 s53, s52, 3
    s_add_u32 s53, s53, s50
    s_lshl_b32 s54, s51, 5
    s_add_u32 s53, s53, s54
    s_lshl_b32 s50, s50, 2
    s_add_u32 s50, s50, s52""")
    LN_R, LN_L, LN_X = 32, 33, 36
    e(f"""v_lshrrev_b32 v{LN_R}, 5, v0
    v_and_b32 v{LN_L}, 31, v0
    s_lshr_b32 s54, s53, 2
    s_lshl_b32 s54, s54, 5
    s_and_b32 s55, s53, 3
    s_lshl_b32 s55, s55, 2
    s_add_u32 s54, s54, s55
    v_and_b32 v34, 3, v{LN_R}
    v_lshrrev_b32 v35, 2, v{LN_R}
    v_lshl_add_u32 v34, v35, 4, v34
    v_add_u32 v34, s54, v34
    v_mul_u32_u24 v34, 1280, v34
    v_lshl_add_u32 v34, v{LN_L}, 3, v34
    s_mov_b32 s{S_X+2}, {2048*1280}
    s_mov_b32 s{S_X+3}, 0x20000
    s_mov_b32 s{S_CODE+2}, K_last-K_pc
    s_mov_b32 s{S_CODE+3}, 0x20000
    s_lshl_b32 s56, s50, 8
    s_sub_u32 s{S_WQ+2}, {640*8192}, s56
    s_mov_b32 s{S_WQ+3}, 0x20000
    s_lshl_b32 s{S_W4K}, s{S_WAVE}, 12""")
    QP.addr_dma(e, 40)
    e(f"""s_lshr_b32 s{S_CPF}, s2, 3
    s_lshl_b32 s49, s{S_CPF}, 1
    s_add_u32 s49, s49, s{S_WAVE}
    s_and_b32 s49, s49, 15
    s_lshl_b32 s49, s49, 13
    s_lshl_b32 s{S_CPF}, s{S_CPF}, 2
    s_add_u32 s{S_CPF}, s{S_CPF}, s{S_WAVE}
    v_lshlrev_b32 v35, 7, v{V_LANE}
    s_mov_b32 s{S_DBG+2}, 256
    s_mov_b32 s{S_DBG+3}, 0x20000
    s_waitcnt lgkmcnt(0)""")
    for j in range(5):
        e.vm("x", f"buffer_load_dwordx2 v[{LN_X+2*j}:{LN_X+2*j+1}], v34, s[{S_X}:{S_X+3}], 0 offen offset:{256*j} nt")
    e(f"s_add_u32 s{S_WQ}, s{S_WQ}, s56\ns_addc_u32 s{S_WQ+1}, s{S_WQ+1}, 0")
    e(f"""s_or_b32 s48, s2, s{S_WAVE}
    s_cmp_lg_u32 s48, 0
    s_cbranch_scc1 K_notag
    s_memrealtime s[90:91]
    v_mov_b32 v47, 0
    s_waitcnt lgkmcnt(0)
    s_or_b32 s90, s90, 1
    v_mov_b32 v46, s90
    s_mov_b64 exec, 1
    buffer_store_dword v46, v47, s[{S_DBG}:{S_DBG+3}], 0 offen sc1
    s_mov_b64 exec, -1
    K_notag:""")
    e(f"""s_cmp_lt_u32 s{S_WAVE}, 2
    s_cbranch_scc1 K_nopf
    v_lshrrev_b32 v46, 1, v{V_LANE}
    v_and_b32 v47, 1, v{V_LANE}
    v_lshlrev_b32 v47, 7, v47
    v_lshl_add_u32 v46, v46, 17, v47
    s_lshl_b32 s48, s51, 1
    s_add_u32 s48, s48, s{S_WAVE}
    s_sub_u32 s48, s48, 2
    s_lshl_b32 s48, s48, 13
    buffer_load_dword v{V_PFD}, v46, s[{S_WQ}:{S_WQ+3}], s48 offen{NTQ}
    s_add_u32 s48, s48, {32*16*8192}
    buffer_load_dword v{V_PFD}, v46, s[{S_WQ}:{S_WQ+3}], s48 offen{NTQ}
    buffer_load_dword v{V_PFD}, v35, s[{S_CODE}:{S_CODE+3}], s49 offen
    K_nopf:""")
    for s, off in ((S_W1,48),(S_B1,56),(S_W2,64),(S_B2,72),(S_OUT,80)):
        e(f"s_load_dwordx2 s[{s}:{s+1}], s[0:1], {off}")
    e(f"""s_lshl_b32 s52, s50, 19
    s_add_u32 s{S_K}, s{S_K}, s52
    s_addc_u32 s{S_K+1}, s{S_K+1}, 0
    s_add_u32 s{S_V}, s{S_V}, s52
    s_addc_u32 s{S_V+1}, s{S_V+1}, 0""")
    for s, sz in ((S_K,524288),(S_V,524288),(S_WS,WS_SZ),(S_WO,4096*1280),(S_W1,2048*3456),(S_B1,3456),(S_W2,1728*4096),(S_B2,4096),(S_OUT,2048*1280)):
        e(f"s_mov_b32 s{s+2}, {sz}\ns_mov_b32 s{s+3}, 0x20000")
    if ts:
        e(f"s_add_u32 s{S_TS}, s{S_WS}, {TS_OFF}\ns_addc_u32 s{S_TS+1}, s{S_WS+1}, 0\ns_mov_b32 s{S_TS+2}, 0x100000\ns_mov_b32 s{S_TS+3}, 0x20000")
    e(f"""s_mov_b32 s{S_PASS}, 0
    s_cmp_ge_u32 s2, 216
    s_cselect_b32 s{S_STATE}, {1<<C_U}, {1<<C_W}
    s_cmp_lg_u32 s{S_WAVE}, 0
    s_cselect_b32 s{S_STATE}, -1, s{S_STATE}
    s_mov_b32 s{S_QB}, s51
    s_and_b32 s{S_XCD}, s2, 7
    s_sub_u32 s{S_UG}, s2, 216
    s_mov_b32 s{S_SLOT}, s53
    s_mov_b32 s49, 0xffff0000
    s_mul_i32 s{S_CPF}, s{S_CPF}, 1024
    s_and_b32 s{S_CPF}, s{S_CPF}, 0xffff
    s_add_u32 s{S_CPF}, s{S_CPF}, K_tail-K_pc""")
    XS, HS = 0, 10240
    A0 = 116
    e(f"""v_mul_u32_u24 v{A0}, 1280, v{LN_R}
    v_lshl_add_u32 v{A0}, v{LN_L}, 3, v{A0}
    v_and_b32 v46, 3, v0
    v_bfe_u32 v47, v0, 2, 2
    v_bfe_u32 v48, v0, 4, 1
    v_lshl_add_u32 v{A0+1}, v48, 2, v46
    v_mul_u32_u24 v{A0+1}, 1280, v{A0+1}
    v_lshl_add_u32 v{A0+1}, v{LN_R}, 6, v{A0+1}
    v_lshl_add_u32 v{A0+1}, v47, 3, v{A0+1}
    s_lshr_b32 s54, s53, 2
    s_lshl_b32 s54, s54, 1
    v_add_u32 v{A0+2}, s54, v48
    v_mul_u32_u24 v{A0+2}, 20, v{A0+2}
    v_add_u32 v{A0+2}, v{A0+2}, v{LN_R}
    v_lshlrev_b32 v{A0+2}, 6, v{A0+2}
    v_lshl_add_u32 v{A0+2}, v47, 4, v{A0+2}
    v_add_u32 v{A0+2}, v{A0+2}, v46
    v_add_u32 v{A0+2}, s55, v{A0+2}
    v_lshlrev_b32 v{A0+2}, 4, v{A0+2}
    v_bfe_u32 v{A0+3}, v{V_LANE}, 2, 2
    v_mul_u32_u24 v{A0+3}, 1280, v{A0+3}
    v_lshrrev_b32 v46, 4, v0
    v_lshl_add_u32 v{A0+3}, v46, 5, v{A0+3}
    v_and_b32 v47, 3, v{V_LANE}
    v_lshl_add_u32 v{A0+3}, v47, 3, v{A0+3}
    v_lshlrev_b32 v{A0+4}, 16, v46
    v_and_b32 v47, 15, v{V_LANE}
    v_lshl_add_u32 v{A0+4}, v47, 4, v{A0+4}
    s_lshl_b32 s54, s53, 8
    s_add_u32 s54, s54, {HT_OFF}
    v_add_u32 v{A0+4}, s54, v{A0+4}
    v_mov_b32 v46, {LDS_FLAG}
    v_mov_b32 v47, 0
    s_waitcnt lgkmcnt(0)
    ds_write_b32 v46, v47""")
    if ts: e("v_mov_b32 v0, 0")
    stamp(e, 0)
    e(f"s_cmp_lt_u32 s{S_WAVE}, 2\ns_cbranch_scc1 K_w0\ns_waitcnt vmcnt(3)\ns_branch K_w1\nK_w0:\ns_waitcnt vmcnt(0)\nK_w1:")
    stamp(e, 1)
    X, D, O1, O2, TA = 50, 70, 90, 100, 110
    WSR = f"s[{S_WS}:{S_WS+3}]"
    e("v_mov_b32 v48, 0")
    e(f"buffer_load_dword v49, v48, s[{S_DBG}:{S_DBG+3}], 0 offen sc1")
    unpack(e, LN_X, X, 10, 49)
    layernorm(e, X, D, O1, TA, 49)
    for j in range(5): e(f"ds_write_b64 v{A0}, v[{O1+2*j}:{O1+2*j+1}] offset:{XS+256*j}")
    e(f"s_waitcnt lgkmcnt(0)\ns_barrier\ns_cmp_ge_u32 s{S_WAVE}, 2\ns_cbranch_scc1 K_noxs")
    for n in range(5): e(f"ds_read2_b64 v[{124+4*n}:{127+4*n}], v{A0+1} offset0:{32*n} offset1:{32*n+4}")
    for n in range(5):
        e(f"s_mov_b32 s54, {4096*n}\ns_waitcnt lgkmcnt({4-n})")
        e(f"buffer_store_dwordx4 v[{124+4*n}:{127+4*n}], v{A0+2}, {WSR}, s54 offen{SC}")
    e("K_noxs:")
    e.vm("xs", "s_nop 0")
    for j in range(4):
        for grp in QP.wq_dma(j):
            for it in grp: e.add(it)
    unpack(e, O1, X, 10, 49)
    layernorm(e, X, D, O2, TA, 49)
    for j in range(5): e(f"ds_write_b64 v{A0}, v[{O2+2*j}:{O2+2*j+1}] offset:{HS+256*j}")
    l0 = lab("w23")
    e(f"s_cmp_ge_u32 s{S_WAVE}, 2\ns_cbranch_scc1 {l0}")
    e.wvm("xs")
    spin(e, 49, 48, 1, have=True, cmp="v_cmp_eq_u32 vcc, 0, v49", srd=S_DBG)
    e(f"v_readfirstlane_b32 s{S_TAG}, v49\n{l0}:\ns_waitcnt lgkmcnt(0)\ns_barrier")
    for it in signal(C_XN, S_SLOT, 46): e.add(it)
    stamp(e, 2)
    for n in range(3):
        for hj in range(2): e(f"ds_read_b64_tr_b16 v[{124+4*n+2*hj}:{125+4*n+2*hj}], v{A0+3} offset:{HS+512*n+5120*hj}")
    e(f"s_mov_b32 s54, 0x100000\ns_mov_b32 s55, 0x200000\ns_cmp_ge_u32 s{S_WAVE}, 2\ns_cselect_b32 s55, {WS_SZ}, s55\ns_waitcnt lgkmcnt(0)")
    e.vm("hs", f"buffer_store_dwordx4 v[124:127], v{A0+4}, {WSR}, 0 offen{SC}")
    e.vm("hs", f"buffer_store_dwordx4 v[128:131], v{A0+4}, {WSR}, s54 offen{SC}")
    e.vm("hs", f"buffer_store_dwordx4 v[132:135], v{A0+4}, {WSR}, s55 offen{SC}")
    l0 = lab("w01")
    e(f"s_cmp_lt_u32 s{S_WAVE}, 2\ns_cbranch_scc1 {l0}")
    e.wvm("xs")
    spin(e, 49, 48, 1, have=True, cmp="v_cmp_eq_u32 vcc, 0, v49", srd=S_DBG)
    e(f"v_readfirstlane_b32 s{S_TAG}, v49\n{l0}:")
    e("K_start:")
    e(f"""s_and_b32 s50, s2, 7
    s_lshr_b32 s51, s2, 3
    s_lshr_b32 s52, s51, 3
    s_lshl_b32 s50, s50, 2
    s_add_u32 s50, s50, s52
    s_and_b32 s51, s51, 7
    s_mov_b32 s{S_KOFF}, s{S_W4K}
    s_mov_b32 s{S_VOFF}, s{S_W4K}
    s_lshl_b32 s55, s51, 4
    s_lshl_b32 s54, s{S_WAVE}, 2
    s_add_u32 s55, s55, s54
    s_mul_i32 s{QP.S_XOFF}, s55, 20480
    s_lshl_b32 s{S_OST}, s55, 17
    s_lshl_b32 s54, s50, 12
    s_add_u32 s{S_OST}, s{S_OST}, s54
    s_add_u32 s{S_OST}, s{S_OST}, {OF_OFF}
    s_lshl_b32 s{S_PF}, s2, 2
    s_add_u32 s{S_PF}, s{S_PF}, s{S_WAVE}
    s_mul_i32 s{S_PF}, s{S_PF}, {56*128}""")
    T = V_Q
    e(f"""v_and_b32 v{T}, 15, v{V_LANE}
    v_lshrrev_b32 v{T+1}, 4, v{V_LANE}
    v_and_b32 v{T+2}, 7, v{V_LANE}
    v_lshlrev_b32 v{V_PFA}, 7, v{T+2}
    v_lshlrev_b32 v{T+2}, 1, v{T+2}
    v_xor_b32 v{T+2}, v{T+2}, v{T+1}
    v_lshlrev_b32 v{T+2}, 4, v{T+2}
    v_lshl_add_u32 v{V_KA}, v{T}, 8, v{T+2}
    v_xor_b32 v{V_KA+1}, 64, v{V_KA}
    v_xor_b32 v{V_KA+2}, 128, v{V_KA}
    v_xor_b32 v{V_KA+3}, 192, v{V_KA}
    v_lshlrev_b32 v{T+2}, 1, v{T+1}
    v_xor_b32 v{T+2}, v{T+2}, v{T}
    v_lshlrev_b32 v{T+2}, 4, v{T+2}
    v_lshl_add_u32 v{V_DM}, v{T+1}, 8, v{T+2}
    v_xor_b32 v{V_DM+1}, 128, v{V_DM}
    v_lshrrev_b32 v{T+2}, 2, v{V_LANE}
    v_and_b32 v{T+3}, 7, v{T+2}
    v_lshlrev_b32 v{T+3}, 1, v{T+3}
    v_bfe_u32 v{T+4}, v{V_LANE}, 1, 1
    v_xor_b32 v{T+4}, v{T+3}, v{T+4}
    v_lshlrev_b32 v{T+4}, 4, v{T+4}
    v_lshl_add_u32 v{T+4}, v{T+2}, 8, v{T+4}
    v_and_b32 v{T+5}, 1, v{V_LANE}
    v_lshl_add_u32 v{T+4}, v{T+5}, 3, v{T+4}
    v_add_u32 v{V_VA}, {LDS_V}, v{T+4}""")
    for db in range(1, 8): e(f"v_xor_b32 v{V_VA+db}, {32*db}, v{V_VA}")
    e(f"""v_and_b32 v{T+4}, 3, v{V_LANE}
    v_xor_b32 v{T+3}, v{T+3}, v{T+4}
    v_lshlrev_b32 v{T+3}, 4, v{T+3}
    v_lshl_add_u32 v{QP.V_WA}, v{T+2}, 8, v{T+3}
    v_add_u32 v{QP.V_WA}, {LDS_V}, v{QP.V_WA}
    v_xor_b32 v{QP.V_WA+1}, 64, v{QP.V_WA}
    v_xor_b32 v{QP.V_WA+2}, 128, v{QP.V_WA}
    v_xor_b32 v{QP.V_WA+3}, 192, v{QP.V_WA}
    v_lshlrev_b32 v{QP.V_XO}, 4, v{V_LANE}
    v_mov_b32 v{T+6}, 0x3f803f80
    v_cmp_gt_u32 vcc, 2, v{T}
    v_mov_b32 v{T+7}, 0x44444444
    v_mov_b32 v{T+8}, 0xeeeeeeee
    v_cndmask_b32 v{V_ONE}, 0, v{T+6}, vcc
    v_cmp_eq_u32 vcc, 1, v{T+5}
    v_mov_b32 v{V_ONE+1}, v{V_ONE}
    v_mov_b32 v{V_ONE+2}, v{V_ONE}
    v_mov_b32 v{V_ONE+3}, v{V_ONE}
    v_cndmask_b32 v{V_IDX}, v{T+7}, v{T+8}, vcc""")
    l0 = lab("nopoll")
    e(f"""s_cmp_lg_u32 s{S_WAVE}, 0
    s_cbranch_scc1 {l0}""")
    for it in flag_addr(T+1, C_XN, S_QB, 32): e.add(it)
    spin(e, T+2, T+1, 1)
    e(f"{l0}:")
    e.wvm(("W", 3))
    e("s_barrier")
    stamp(e, 3)
    qproj(e)
    stamp(e, 4)
    e.wds("ALL")
    e(f"s_cmp_lg_u32 s{S_PASS}, 0\ns_cbranch_scc1 K_truemax")
    for qb in range(4):
        for ks in range(4):
            c = "0" if ks == 0 else vr(Sreg(0,qb), 4)
            e(f"{MF} {vr(Sreg(0,qb),4)}, {ar(Kreg(0,ks),4)}, {vr(Qreg(qb,ks),4)}, {c}")
    e("s_nop 7")
    for qb in range(4):
        s, m = Sreg(0,qb), V_M+4*qb
        e(f"v_max3_f32 v{m}, v{s}, v{s+1}, v{s+2}\nv_max_f32 v{m}, v{m}, v{s+3}")
    e("K_setm:")
    for qb in range(4):
        m = V_M+4*qb
        xlane(e, m, V_T, "v_max_f32")
        e(f"v_sub_f32 v{m}, 0, v{m}\nv_mov_b32 v{m+1}, v{m}\nv_mov_b32 v{m+2}, v{m}\nv_mov_b32 v{m+3}, v{m}")
    for k in range(16): e(f"v_mov_b32 v{V_L+k}, 0")
    e.wvm("K1"); e("s_barrier")
    attn_iter(e, -1, do_pv=False, wrap_in=False)
    attn_iter(e, 0, first_pv=True, pf=True)
    stamp(e, 5)
    e(f"s_sub_u32 s{S_PF}, s{S_PF}, 1024\ns_mov_b32 s{S_CNT}, 7")
    e.mark("loop0")
    for i in range(1, 5): attn_iter(e, i, pf=True)
    e.mark("loop1")
    for i in range(5, 9): attn_iter(e, i, pf=True)
    e.mark("loop2")
    e("K_tail:")
    stamp(e, 6)
    attn_iter(e, 9, dma=False, late=[(6, R(f"v_and_b32 v{V_T+1}, 7, v{V_LANE}\nv_lshl_add_u32 v{V_T+1}, v{V_T+1}, 2, 64")), (7, R(f"v_add_u32 v{V_T+1}, 64, v{V_T+1}")), (8, poll_ld(V_T, V_T+1, S_DBG))])
    e(f"""s_cmp_ge_u32 s2, 216
    s_cbranch_scc1 K_plain
    s_cmp_lg_u32 s{S_PASS}, 0
    s_cbranch_scc1 K_plain""")
    spin(e, V_T, V_T+1, 8, have=True, cmp=f"v_cmp_ne_u32 vcc, 32, v{V_T}", srd=S_DBG)
    tail_gemm1(e)
    e("K_plain:")
    tail_plain(e)
    final(e)
    e(f"""K_redo:
    s_mov_b32 s{S_PASS}, 1
    s_waitcnt vmcnt(0) lgkmcnt(0)
    s_barrier""")
    for it in signal(C_U, S_UG, V_T+8) + signal(C_W, S_UG, V_T+8): e.add(it)
    QP.addr_dma(e, 40)
    for j in range(4):
        for grp in QP.wq_dma(j):
            for it in grp: e.add(it)
    e("s_waitcnt vmcnt(0)\ns_branch K_start")
    e(f"""K_truemax:
    s_waitcnt vmcnt(0)
    s_barrier
    s_mov_b32 s{S_KOFF}, s{S_W4K}
    s_mov_b32 s{S_CNT}, 32""")
    for qb in range(4): e(f"v_mov_b32 v{V_M+4*qb}, 0xff800000")
    e("K_mloop:")
    m0, d, inc = dma_kv("K", 0, "fb")
    e.add(m0); e("s_nop 0")
    for it in d: e.add(it)
    e.add(inc)
    e("s_waitcnt vmcnt(0)\ns_barrier")
    for it in k_reads(0, "fb"): e.add(it)
    e("s_waitcnt lgkmcnt(0)\ns_barrier")
    for n in range(64):
        kb, qb, ks = n//16, (n//4) % 4, n % 4
        c = "0" if ks == 0 else vr(Sreg(kb,qb), 4)
        e(f"{MF} {vr(Sreg(kb,qb),4)}, {ar(Kreg(kb,ks),4)}, {vr(Qreg(qb,ks),4)}, {c}")
    e("s_nop 7")
    for kb in range(4):
        for qb in range(4):
            s, m = Sreg(kb,qb), V_M+4*qb
            e(f"v_max3_f32 v{m}, v{m}, v{s}, v{s+1}\nv_max3_f32 v{m}, v{m}, v{s+2}, v{s+3}")
    e(f"s_sub_u32 s{S_CNT}, s{S_CNT}, 1\ns_cmp_lg_u32 s{S_CNT}, 0\ns_cbranch_scc1 K_mloop")
    e(f"s_mov_b32 s{S_KOFF}, s{S_W4K}")
    m0, d, inc = dma_kv("K", 0, "fb")
    e.add(m0); e("s_nop 0")
    for it in d: e.add(it)
    e(f"s_add_u32 s{S_KOFF}, s{S_KOFF}, 65536")
    e("s_waitcnt vmcnt(0)\ns_barrier")
    for it in k_reads(0, "fb"): e.add(it)
    e("s_waitcnt lgkmcnt(0)\ns_branch K_setm")
    e("K_exit:\ns_endpgm\nK_last:")
    lines = resolve(e.items)
    i0, i1, i2 = (lines.index(("mark", m)) for m in ("loop0", "loop1", "loop2"))
    b1, b2 = lines[i0+1:i1], lines[i1+1:i2]
    assert b1 == b2, [(x, y) for x, y in zip(b1, b2) if x != y][:5]
    loop = [".p2align 6", "K_loop:"] + b2 + [f"s_sub_u32 s{S_CNT}, s{S_CNT}, 1", f"s_cmp_lg_u32 s{S_CNT}, 0", "s_cbranch_scc1 K_loop"]
    lines = lines[:i0] + loop + lines[i2+1:]
    ref = open("recurrent_scan__mha_block_cached__mixer_token_mlp__prompt.s.ref").read().split("\n")
    head = [l for l in ref if l.startswith(";") and "@launch" not in l]
    out = head + [f"; @launch grid=(256,1,1) block=(256,1,1) lds={131072+64}", '.amdgcn_target "amdgcn-amd-amdhsa--gfx950"', ".text"]
    out += lines + ['.section .rodata,"a"', kdesc(NAME, 512, 256, 96)]
    return "\n".join(out) + "\n"

if __name__ == "__main__":
    open("f_nt.s", "w").write(gen(False))
    open("f_ts.s", "w").write(gen(True))
```

```python
from asmlib import *
import math, sys

XN_OFF, HT_OFF, U_OFF, WOF_OFF, OF_OFF = 0x0, 0x280000, 0x500000, 0x800000, 0x1000000
PART_OFF = 0x2000000
WS_SZ = 0x4000000
TS_OFF = 0x4000000
NAME = "recurrent_scan__mha_block_cached__mixer_token_mlp__prompt_kernel"
MF = "v_mfma_f32_16x16x32_bf16"
V_LANE, V_KA, V_VA, V_DM, V_IDX, V_T, V_ONE = 1, 2, 6, 14, 16, 17, 28
V_PFA, V_PFD = 24, 25
V_HPD, V_HPA, V_P1A, V_PHA = 20, 21, 22, 23
S_G1, S_P1, S_PH = 78, 79, 77
V_Q, V_S, V_P, V_M, V_L = 32, 96, 160, 224, 240
A_O, A_K, A_V = 0, 128, 192
S_K, S_V, S_WQ, S_WS, S_W1, S_B1, S_W2, S_WO, S_X, S_DBG, S_B2, S_OUT, S_CODE, S_TS = 4, 8, 12, 16, 20, 24, 28, 32, 36, 60, 64, 68, 72, 84
S_W4K, S_KOFF, S_VOFF, S_CNT, S_WAVE, S_PASS, S_OST, S_STATE, S_PF = 40, 41, 42, 43, 44, 45, 57, 58, 59
S_CPF = 3
S_QB, S_XCD, S_UG, S_SLOT, S_TAG = 80, 81, 82, 83, 88
LDS_K, LDS_V, LDS_SP, LDS_FLAG, LDS_SZ = 0, 65536, 131072, 98304, 163840
LAG = 10
NTQ = ""
SC = " sc1"

class Ctx:
    ts = False
    fine = None
    uid = 0
def lab(p):
    Ctx.uid += 1
    return f"L{p}_{Ctx.uid}"
def R(t): return [("raw", x.strip()) for x in t.strip("\n").split("\n") if x.strip()]

def stamp(e, idx):
    if Ctx.ts:
        e(f"s_memtime s[84:85]\ns_memrealtime s[86:87]\ns_waitcnt lgkmcnt(0)\nv_writelane_b32 v0, s84, {idx}\nv_writelane_b32 v0, s86, {32+idx}")

FL_OFF = 0xE00000
C_XN, C_H, C_O, C_U, C_P = 0, 1, 2, 3, 4
def signal(kind, sg, t):
    l = lab("sig")
    if kind == C_H:
        st = f"v_mov_b32 v{t}, 1\nv_lshlrev_b32 v{t+1}, 2, v{t+1}\ns_mov_b64 exec, 1\nbuffer_atomic_add v{t}, v{t+1}, s[{S_DBG}:{S_DBG+3}], 0 offen offset:128 sc1"
    else:
        st = f"v_mov_b32 v{t}, s{S_TAG}\nv_lshlrev_b32 v{t+1}, 7, v{t+1}\nv_add_u32 v{t+1}, {FL_OFF+kind*32768}, v{t+1}\ns_mov_b64 exec, 1\nbuffer_store_dword v{t}, v{t+1}, s[{S_WS}:{S_WS+3}], 0 offen sc1"
    return R(f"""s_bitcmp1_b32 s{S_STATE}, {kind}
    s_cbranch_scc1 {l}
    s_bitset1_b32 s{S_STATE}, {kind}
    v_mov_b32 v{t+1}, s{sg}
    {st}
    s_mov_b64 exec, -1
    {l}:""")
def flag_addr(a, kind, sg, n):
    r = R(f"v_min_u32 v{a}, {n-1}, v{V_LANE}\nv_lshlrev_b32 v{a}, 7, v{a}")
    if sg is not None: r += R(f"s_lshl_b32 s56, s{sg}, 12\ns_add_u32 s56, s56, {FL_OFF+kind*32768}\nv_add_u32 v{a}, s56, v{a}")
    else: r += R(f"v_add_u32 v{a}, {FL_OFF+kind*32768}, v{a}")
    return r
def poll_ld(d, a, srd=None):
    srd = S_WS if srd is None else srd
    return [("vm", "poll", f"buffer_load_dword v{d}, v{a}, s[{srd}:{srd+3}], 0 offen sc1")]
def spin_items(*a, **k):
    t = Em(); spin(t, *a, **k); return t.items
def spin(e, d, a, sleep, have=False, cmp=None, srd=None):
    l0, l1 = lab("spin"), lab("spun")
    srd = S_WS if srd is None else srd
    cmp = cmp or f"v_cmp_ne_u32 vcc, s{S_TAG}, v{d}"
    if have: e(f"{cmp}\ns_cbranch_vccz {l1}")
    e(f"""s_mov_b32 s56, 0x40000
    {l0}:
    buffer_load_dword v{d}, v{a}, s[{srd}:{srd+3}], 0 offen sc1
    s_waitcnt vmcnt(0)
    {cmp}
    s_cbranch_vccz {l1}
    s_sleep {sleep}
    s_sub_u32 s56, s56, 1
    s_cmp_lg_u32 s56, 0
    s_cbranch_scc1 {l0}
    {l1}:""")

def Sreg(kb, qb): return V_S + 16*kb + 4*qb
def Preg(par, qb, t): return V_P + 32*par + 8*qb + 4*t
def Qreg(qb, ks): return V_Q + 16*qb + 4*ks
def Kreg(kb, ks): return A_K + 16*kb + 4*ks
def Vreg(db, t): return A_V + 8*db + 4*t
def Oreg(db, qb): return A_O + 16*db + 4*qb

def allreduce32(e, v, t):
    for k in (8, 4, 2, 1):
        e(f"s_nop 1\nv_add_f32_dpp v{v}, v{v}, v{v} row_ror:{k} row_mask:0xf bank_mask:0xf")
    e(f"v_mov_b32 v{t}, v{v}\ns_nop 1\nv_permlane16_swap_b32 v{t}, v{v}\ns_nop 1\nv_add_f32 v{v}, v{v}, v{t}")
def round_bf16(e, v): e(f"v_cvt_pk_bf16_f32 v{v}, v{v}, v{v}\nv_and_b32 v{v}, 0xffff0000, v{v}")
def unpack(e, src, dst, n, smask):
    for i in range(n): e(f"v_lshlrev_b32 v{dst+2*i}, 16, v{src+i}\nv_and_b32 v{dst+2*i+1}, s{smask}, v{src+i}")
def pk(op, d, a, b, bc=False):
    return f"v_pk_{op}_f32 {vr(d,2)}, {vr(a,2)}, {vr(b,2)}" + (" op_sel_hi:[1,0]" if bc else "")
def layernorm(e, X, D, OUT, A, smask):
    B, T = A+2, A+4
    e(pk("add", A, X, X+2))
    for i in range(4, 20, 2): e(pk("add", A, A, X+i))
    e(f"v_add_f32 v{A}, v{A}, v{A+1}")
    allreduce32(e, A, T)
    e(f"v_mul_f32 v{A}, {fhex(-1.0/640)}, v{A}")
    for i in range(0, 20, 2): e(pk("add", D+i, X+i, A, True))
    e(pk("mul", B, D, D))
    for i in range(2, 20, 2): e(f"v_pk_fma_f32 {vr(B,2)}, {vr(D+i,2)}, {vr(D+i,2)}, {vr(B,2)}")
    e(f"v_add_f32 v{B}, v{B}, v{B+1}")
    allreduce32(e, B, T)
    e(f"v_mul_f32 v{B}, {fhex(1.0/640)}, v{B}")
    round_bf16(e, A); round_bf16(e, B)
    e(f"v_add_f32 v{B}, {fhex(1e-5)}, v{B}")
    round_bf16(e, B)
    e(f"v_sqrt_f32 v{B}, v{B}\ns_nop 0")
    round_bf16(e, B)
    e(f"v_rcp_f32 v{B}, v{B}")
    for i in range(0, 20, 2): e(pk("add", D+i, X+i, A, True))
    for i in range(10): e(f"v_cvt_pk_bf16_f32 v{OUT+i}, v{D+2*i}, v{D+2*i+1}")
    unpack(e, OUT, D, 10, smask)
    for i in range(0, 20, 2): e(pk("mul", D+i, D+i, B, True))
    for i in range(10): e(f"v_cvt_pk_bf16_f32 v{OUT+i}, v{D+2*i}, v{D+2*i+1}")

def dma_kv(which, slot, tag):
    base = (LDS_K if which == "K" else LDS_V) + 16384*slot
    s, off = (S_K, S_KOFF) if which == "K" else (S_V, S_VOFF)
    m0 = ("raw", f"s_add_u32 m0, s{S_W4K}, {base}")
    d = [("vm", tag, f"buffer_load_dwordx4 v{V_DM+(n&1)}, s[{s}:{s+3}], s{off} offen offset:{1024*n} lds") for n in range(4)]
    inc = ("raw", f"s_add_u32 s{off}, s{off}, 16384")
    return m0, d, inc
def k_reads(slot, tag):
    return [("ds", tag, f"ds_read_b128 {ar(Kreg(kb,ks),4)}, v{V_KA+ks} offset:{16384*slot+4096*kb}") for kb in range(4) for ks in range(4)]
def v_reads(slot, tag):
    return [("ds", (tag, db), f"ds_read_b64_tr_b16 {ar(Vreg(db,t)+2*hj,2)}, v{V_VA+db} offset:{16384*slot+4096*(2*t+hj)}")
            for db in range(8) for t in range(2) for hj in range(2)]

def attn_iter(e, i, do_qk=True, do_pv=True, first_pv=False, dma=True, wrap_in=True, extra=None, pf=False, endbar=True, late=None, sm_first=False):
    NG = 132
    mf = [None]*NG
    gaps = [[] for _ in range(NG)]
    par = i & 1
    if do_qk:
        for n in range(64):
            kb, qb, ks = n//16, (n//4) % 4, n % 4
            c = vr(V_M+4*qb, 4) if ks == 0 else vr(Sreg(kb,qb), 4)
            mf[n] = f"{MF} {vr(Sreg(kb,qb),4)}, {ar(Kreg(kb,ks),4)}, {vr(Qreg(qb,ks),4)}, {c}"
    if do_pv:
        for m in range(64):
            db, qb, t = m//8, (m//2) % 4, m % 2
            c = "0" if (first_pv and t == 0) else ar(Oreg(db,qb), 4)
            mf[64+m] = f"{MF} {ar(Oreg(db,qb),4)}, {ar(Vreg(db,t),4)}, {vr(Preg(par,qb,t),4)}, {c}"
        for qb in range(4):
            mf[128+qb] = f"v_smfmac_f32_16x16x64_bf16 {vr(V_L+4*qb,4)}, {vr(V_ONE,4)}, {vr(Preg(par,qb,0),8)}, v{V_IDX}"
        if sm_first: mf[64:132] = mf[128:132] + mf[64:128]
        for j, it in enumerate(v_reads(i % 4, ("V", i))): gaps[1+2*j].append(it)
        gaps[63].append(("wait", None, (("V", i), 5)))
        gaps[75].append(("wait", None, (("V", i), 7)))
    if do_qk and dma != "nok":
        kpos = [65,69,71,73,77,79,81,85,87,89,93,95,97,101,103,105]
        for p, it in zip(kpos, k_reads((i+2) % 4, ("K", i+2))): gaps[p].insert(0, it)
    if dma is True:
        m0, d, inc = dma_kv("K", (i+5) % 4, ("D", i))
        gaps[6].append(m0)
        for j in range(4): gaps[67+8*j].insert(0, d[j])
        gaps[91].append(inc)
        m0, d, inc = dma_kv("V", (i+3) % 4, ("D", i))
        gaps[95].append(m0)
        for j in range(4): gaps[99+8*j].insert(0, d[j])
        gaps[123].append(inc)
    if pf:
        k = i % 4
        def ld(va, sp, so, d=V_PFD, fl=""): return ("vm", ("D", i), f"buffer_load_dword v{d}, v{va}, s[{sp}:{sp+3}], {so} offen{fl}")
        if k == 0:
            gaps[8].insert(0, ld(V_PFA, S_CODE, f"s{S_CPF}"))
            gaps[111].insert(0, ld(V_PFA, S_W2, f"s{S_PF}"))
            gaps[119].insert(0, ld(V_PFA, S_X, f"s{S_PF}"))
            gaps[119].append(("raw", f"s_add_u32 s{S_PF}, s{S_PF}, 1024"))
        if k == 1:
            gaps[8].insert(0, ld(V_HPA, S_DBG, "0", V_HPD, " sc1"))
            gaps[111] += R(f"s_cmp_le_u32 s{S_CNT}, 2\ns_cselect_b32 s56, s{S_P1}, {0x1000000}")
            gaps[119].insert(0, ld(V_P1A, S_W1, "s56"))
            gaps[119].append(("raw", f"s_sub_u32 s{S_P1}, s{S_P1}, {8*3456}"))
        if k == 0 and i > 0:
            gaps[109].insert(0, ("raw", f"v_cmp_gt_u32 vcc, 32, v{V_HPD}"))
            gaps[113] = R(f"s_cmp_eq_u64 vcc, 0\ns_cselect_b32 s56, s{S_PH}, {WS_SZ}") + gaps[113]
            gaps[117] = R(f"s_cmp_le_u32 s{S_CNT}, 3\ns_cselect_b32 s56, s56, {WS_SZ}") + gaps[117]
            gaps[121] = R(f"s_cmp_ge_u32 s{S_CNT}, 2\ns_cselect_b32 s56, s56, {WS_SZ}") + gaps[121]
        if k == 0:
            if i == 0: gaps[121].insert(0, ("raw", f"s_mov_b32 s56, {WS_SZ}"))
            gaps[127].insert(0, ("vm", ("D", i+1), f"buffer_load_dword v{V_PFD}, v{V_PHA}, s[{S_WS}:{S_WS+3}], s56 offen"))
            gaps[127].append(("raw", f"s_sub_u32 s{S_PH}, s{S_PH}, 5120"))
    if extra:
        for pos, grp in extra: gaps[pos] = list(grp) + gaps[pos]
    if late:
        for pos, grp in late: gaps[pos] += list(grp)
    def expi(x): return ("raw", f"v_exp_f32 v{V_S+x}, v{V_S+x}")
    def cvti(c, p):
        x = 2*c; kb, qb, r = x//16, (x//4) % 4, x % 4
        return ("raw", f"v_cvt_pk_bf16_f32 v{Preg(p,qb,kb//2)+2*(kb%2)+r//2}, v{V_S+x}, v{V_S+x+1}")
    for x in range(64):
        n = 2*x + LAG
        if n < NG:
            if do_qk: gaps[n].append(expi(x))
        elif wrap_in: gaps[n-NG].append(expi(x))
    for c in range(32):
        n = 4*c + LAG + 3
        if n < NG:
            if do_qk: gaps[n].append(cvti(c, par ^ 1))
        elif wrap_in: gaps[n-NG].append(cvti(c, par))
    if do_qk and endbar:
        if endbar is True:
            vt = ("D", i-2) if dma is True else "poll"
            gaps[131].append(("wait", vt, "ALL"))
        gaps[131].append(("raw", "s_barrier"))
    for n in range(NG):
        if mf[n] is not None: e(mf[n])
        elif gaps[n]: e("s_nop 0")
        for it in gaps[n]: e.add(it)

def xlane(e, v, t, op):
    e(f"v_mov_b32 v{t}, v{v}\ns_nop 1\nv_permlane16_swap_b32 v{t}, v{v}\ns_nop 1\n{op} v{v}, v{v}, v{t}")
    e(f"v_mov_b32 v{t}, v{v}\ns_nop 1\nv_permlane32_swap_b32 v{t}, v{v}\ns_nop 1\n{op} v{v}, v{v}, v{t}")

class QP:
    V_WD, V_WA, V_XO = V_T, V_T+2, V_T+6
    V_WL, V_OD, V_OA, V_OF = V_Q, V_Q+4, V_Q+9, V_Q+12
    S_WOFF, S_XOFF, S_TMP, S_WOS, S_WOD = 46, 47, 48, 76, 77
    @staticmethod
    def slot(j): return (j+6) % 8
    @classmethod
    def addr_dma(c, e, T):
        e(f"""v_lshrrev_b32 v{T}, 4, v{V_LANE}
        v_and_b32 v{T+1}, 15, v{V_LANE}
        v_lshlrev_b32 v{T+2}, 1, v{T}
        v_xor_b32 v{T+1}, v{T+1}, v{T+2}
        v_lshlrev_b32 v{T+1}, 4, v{T+1}
        v_lshl_add_u32 v{c.V_WD}, v{T}, 13, v{T+1}
        v_xor_b32 v{c.V_WD+1}, 128, v{c.V_WD}
        s_lshl_b32 s{c.S_WOFF}, s{S_WAVE}, 17
        s_lshl_b32 s{S_W4K}, s{S_WAVE}, 12""")
    @classmethod
    def wq_dma(c, j):
        r = [R(f"s_add_u32 m0, s{S_W4K}, {16384*c.slot(j)}")]
        for n in range(4):
            r.append([("raw", f"s_add_u32 s{c.S_TMP}, s{c.S_WOFF}, {j*64*8192+n*32768-1024*n}"),
                      ("vm", ("W", j), f"buffer_load_dwordx4 v{c.V_WD+(n&1)}, s[{S_WQ}:{S_WQ+3}], s{c.S_TMP} offen offset:{1024*n} lds")])
        return r
    @classmethod
    def wq_tiles(c, e, t0, t1):
        for j in range(t0, t1):
            for g in c.wq_dma(j):
                for it in g: e.add(it)
    @staticmethod
    def Wreg(j, a, t): return (A_K if j % 2 == 0 else A_V) + 8*a + 4*t
    @classmethod
    def w_reads(c, j):
        sl = c.slot(j)
        va = c.V_WL if sl < 4 else c.V_WA
        return [("ds", ("Wr", j), f"ds_read_b64_tr_b16 {ar(c.Wreg(j,a,t)+2*hj,2)}, v{va+a//2} offset:{16384*(sl%4)+4096*(2*t+hj)+8*(a&1)}")
                for a in range(8) for t in range(2) for hj in range(2)]

def qproj(e):
    c = QP
    V_XO, S_XOFF, S_TMP = c.V_XO, c.S_XOFF, c.S_TMP
    ACC = V_S
    WSR = f"s[{S_WS}:{S_WS+3}]"
    def Xreg(j, qb, t): return A_O + 32*(j % 4) + 8*qb + 4*t
    def xn_ld(j):
        r = []
        for qb in range(4):
            r.append([("raw", f"s_add_u32 s{S_TMP+1}, s{S_XOFF}, {qb*20480+j*2048}"),
                      ("vm", ("X", j), f"buffer_load_dwordx4 {ar(Xreg(j,qb,0),4)}, v{V_XO}, {WSR}, s{S_TMP+1} offen{SC}")])
            r.append([("vm", ("X", j), f"buffer_load_dwordx4 {ar(Xreg(j,qb,1),4)}, v{V_XO}, {WSR}, s{S_TMP+1} offen offset:1024{SC}")])
        return r
    def kv(which, tile, tag):
        m0, d, inc = dma_kv(which, tile % 4, tag)
        return [[m0], [d[0]], [d[1]], [d[2]], [d[3], inc]]
    wo_dma = []
    for n in range(5):
        wo_dma += [R(f"s_mul_i32 s{S_TMP}, s{S_WAVE}, 5120\ns_add_u32 m0, s{S_TMP}, {LDS_SP+1024*n}"),
                   [("vm", "wo", f"buffer_load_dwordx4 v{c.V_OD+n}, s[{S_WO}:{S_WO+3}], s{c.S_WOS} offen lds")]]
    wo_rd = [[("ds", "wor", f"ds_read_b64_tr_b16 {vr(c.V_OF+4*f+2*hj,2)}, v{c.V_OA} offset:{32*f+2560*hj}")] for f in range(5) for hj in range(2)]
    wo_st = [[("vm", "wos", f"buffer_store_dwordx4 {vr(c.V_OF+4*f,4)}, v{V_XO}, {WSR}, s{c.S_WOD} offen{SC}"),
              ("raw", f"s_add_u32 s{c.S_WOD}, s{c.S_WOD}, 0x20000")] for f in range(5)]
    for j in range(2):
        for grp in xn_ld(j):
            for it in grp: e.add(it)
    for j in range(10):
        if j == 9: e.wvm("K0")
        e.wait(("X", j), "ALL")
        if j in (1, 4, 7, 9): e("s_barrier")
        if Ctx.fine == "q": stamp(e, 14+j)
        grps = []
        if j == 0: grps += xn_ld(2) + xn_ld(3) + [[("vm", "hs", f"buffer_store_dwordx4 v[{76+4*n}:{79+4*n}], v88, {WSR}, s{50+n} offen{SC}")] for n in range(3)]
        if j == 1: grps += c.wq_dma(8)
        if j == 2: grps += c.wq_dma(9)
        if j == 3: grps += wo_dma
        if 1 <= j and j+3 < 10: grps += xn_ld(j+3)
        if j == 4: grps += kv("K", 0, "K0")
        if j == 5: grps += kv("K", 1, "K1")
        if j == 6: grps += wo_rd
        if j == 7: grps += wo_st + kv("K", 2, ("D", -3)) + kv("V", 0, ("D", -3))
        if j == 8: grps += kv("K", 3, ("D", -2)) + kv("V", 1, ("D", -2))
        rd = [] if j == 0 else (c.w_reads(j+1) if j < 9 else k_reads(0, ("K", 0)))
        gaps = [[] for _ in range(64)]
        for k, it in enumerate(rd): gaps[(k*56)//len(rd) if len(rd) == 32 else 2*k].append(it)
        free = [n for n in range(60) if not gaps[n]]
        for k, grp in enumerate(grps): gaps[free[(k*len(free))//max(len(grps),1)]] += grp
        for m in range(64):
            a, qb, t = m//8, (m//2) % 4, m % 2
            d = vr(ACC+16*a+4*qb, 4)
            cc = "0" if (j == 0 and t == 0) else d
            e(f"{MF} {d}, {ar(c.Wreg(j,a,t),4)}, {ar(Xreg(j,qb,t),4)}, {cc}")
            for it in gaps[m]: e.add(it)
    e(f"s_mov_b32 s{S_TMP}, {fhex(math.log2(math.e)/math.sqrt(128.0))}\ns_mov_b32 s{S_TMP+1}, s{S_TMP}\ns_nop 7")
    for a in range(8):
        for qb in range(4):
            r = ACC+16*a+4*qb
            e(f"v_pk_mul_f32 {vr(r,2)}, {vr(r,2)}, s[{S_TMP}:{S_TMP+1}]\nv_pk_mul_f32 {vr(r+2,2)}, {vr(r+2,2)}, s[{S_TMP}:{S_TMP+1}]")
            q = Qreg(qb, a//2) + 2*(a & 1)
            e(f"v_cvt_pk_bf16_f32 v{q}, v{r}, v{r+1}\nv_cvt_pk_bf16_f32 v{q+1}, v{r+2}, v{r+3}")

class G1:
    S_FB, S_DT, S_A, S_B, S_T, S_LB = 46, 47, 48, 49, 50, 53
    V_WD, V_WA, V_L16, V_B1 = 14, 2, 15, 18
    @staticmethod
    def acc(fb, db):
        k = 5*fb+db
        return V_S+4*k if k < 16 else V_M+4*(k-16)
    @staticmethod
    def H(p, db, t):
        s, k = p % 4, 2*db+t
        if s == 0: return ar(A_K+4*k, 4)
        if s == 1: return vr(V_Q+4*k, 4)
        if s == 2: return ar(A_K+40+4*k, 4) if k < 6 else vr(V_Q+40+4*(k-6), 4)
        return ar(A_V+4*k, 4)
    @staticmethod
    def W(p, fb, t): return V_P + 32*(p % 2) + 8*fb + 4*t
    V_WH = 6
    @staticmethod
    def reg(p): return LDS_SP if p == 0 else 32768*(p % 3)
    @classmethod
    def setup1(c):
        T = V_T+3
        return R(f"""s_and_b32 s{c.S_FB}, s{S_UG}, 31
        s_lshr_b32 s{c.S_DT}, s{S_UG}, 5
        s_lshl_b32 s{c.S_LB}, s{S_WAVE}, 13
        s_mul_i32 s{c.S_A}, s{S_WAVE}, {512*3456}
        s_lshl_b32 s{c.S_T+1}, s{c.S_FB}, 7
        s_add_u32 s{c.S_A}, s{c.S_A}, s{c.S_T+1}
        s_mul_i32 s{c.S_B}, s{c.S_DT}, {5*65536}
        s_lshl_b32 s{c.S_T+1}, s{S_WAVE}, 14
        s_add_u32 s{c.S_B}, s{c.S_B}, s{c.S_T+1}
        v_lshrrev_b32 v{T}, 3, v{V_LANE}
        v_and_b32 v{T+1}, 7, v{V_LANE}
        v_and_b32 v{T+2}, 6, v{T}
        v_xor_b32 v{T+1}, v{T+1}, v{T+2}
        v_mul_u32_u24 v{T}, 3456, v{T}
        v_lshl_add_u32 v{c.V_WD}, v{T+1}, 4, v{T}
        v_lshlrev_b32 v{c.V_L16}, 4, v{V_LANE}""")
    @classmethod
    def setup2(c):
        T = V_T+3
        L = f"""v_lshrrev_b32 v{T}, 2, v{V_LANE}
        v_and_b32 v{T+2}, 6, v{T}
        v_bfe_u32 v{T+1}, v{V_LANE}, 1, 1
        v_xor_b32 v{T+1}, v{T+1}, v{T+2}
        v_lshlrev_b32 v{T+1}, 4, v{T+1}
        v_lshl_add_u32 v{T+1}, v{T}, 7, v{T+1}
        v_and_b32 v{T+2}, 1, v{V_LANE}
        v_lshl_add_u32 v{T+1}, v{T+2}, 3, v{T+1}
        v_add_u32 v{T+1}, s{c.S_LB}, v{T+1}"""
        for fb in range(4):
            L += f"""
            s_add_u32 s{c.S_T}, s{S_WAVE}, {fb}
            s_and_b32 s{c.S_T}, s{c.S_T}, 3
            s_lshl_b32 s{c.S_T}, s{c.S_T}, 5
            v_xor_b32 v{c.V_WA+fb}, s{c.S_T}, v{T+1}"""
        L += f"""
        v_lshrrev_b32 v{T}, 4, v{V_LANE}
        v_lshlrev_b32 v{T}, 3, v{T}
        s_lshl_b32 s{c.S_T}, s{c.S_FB}, 2
        s_add_u32 s{c.S_T}, s{c.S_T}, s{S_WAVE}
        s_lshl_b32 s{c.S_T}, s{c.S_T}, 5"""
        r = R(L)
        r.append(("vm", "b1", f"buffer_load_dwordx2 v[{c.V_B1}:{c.V_B1+1}], v{T}, s[{S_B1}:{S_B1+3}], s{c.S_T} offen"))
        return r
    @classmethod
    def sethi(c, off): return [("raw", f"v_add_u32 v{c.V_WH+fb}, {off}, v{c.V_WA+fb}") for fb in range(4)]
    @classmethod
    def wl(c, p):
        r = []
        for n in range(8):
            g = R(f"s_add_u32 m0, s{c.S_LB}, {c.reg(p)+1024*n}") if n % 4 == 0 else []
            g += [("raw", f"s_add_u32 s{c.S_T+1}, s{c.S_A}, {(64*p+8*n)*3456-1024*(n%4)}"),
                  ("vm", ("w", p), f"buffer_load_dwordx4 v{c.V_WD}, s[{S_W1}:{S_W1+3}], s{c.S_T+1} offen offset:{1024*(n%4)} lds")]
            r.append(g)
        return r
    @classmethod
    def hl(c, p):
        r = []
        for db in range(5):
            r.append([("raw", f"s_add_u32 s{c.S_T+2}, s{c.S_B}, {HT_OFF+db*65536+p*2048}"),
                      ("vm", ("h", p), f"buffer_load_dwordx4 {c.H(p,db,0)}, v{c.V_L16}, s[{S_WS}:{S_WS+3}], s{c.S_T+2} offen{SC}")])
            r.append([("vm", ("h", p), f"buffer_load_dwordx4 {c.H(p,db,1)}, v{c.V_L16}, s[{S_WS}:{S_WS+3}], s{c.S_T+2} offen offset:1024{SC}")])
        return r
    @classmethod
    def reads(c, p):
        va, o = (c.V_WA, c.reg(p)) if c.reg(p) < 65536 else (c.V_WH, 0)
        return [("ds", ("r", p), f"ds_read_b64_tr_b16 {vr(c.W(p,fb,t)+2*hj,2)}, v{va+fb} offset:{o+2048*(2*t+hj)}")
                for fb in range(4) for t in range(2) for hj in range(2)]

def o_frag_items(k, tmp, pkr, va):
    qb, t = k//4, k % 4
    r = [("raw", f"v_accvgpr_read_b32 v{tmp+j}, a{Oreg(2*t+j//4,qb)+j%4}") for j in range(8)]
    r += [("raw", f"v_mul_f32 v{tmp+j}, v{tmp+j}, v{V_L+4*qb}") for j in range(8)]
    r += [("raw", f"v_cvt_pk_bf16_f32 v{pkr+j}, v{tmp+2*j}, v{tmp+2*j+1}") for j in range(4)]
    r.append(("vm", "o", f"buffer_store_dwordx4 {vr(pkr,4)}, v{va}, s[{S_WS}:{S_WS+3}], s{S_OST} offen offset:{1024*t}{SC}"))
    if t == 3: r.append(("raw", f"s_add_u32 s{S_OST}, s{S_OST}, 0x20000"))
    return r

def rowsum_items():
    ch = []
    for qb in range(4):
        l = V_L+4*qb
        ch.append([f"v_add_f32 v{l}, v{l}, v{l+1}", f"v_mov_b32 v{l+1}, v{l}", f"v_permlane16_swap_b32 v{l+1}, v{l}", f"v_add_f32 v{l}, v{l}, v{l+1}",
                   f"v_mov_b32 v{l+1}, v{l}", f"v_permlane32_swap_b32 v{l+1}, v{l}", f"v_add_f32 v{l}, v{l}, v{l+1}"])
    r = [("raw", ch[qb][k]) for k in range(7) for qb in range(4)]
    L = V_L
    r += R(f"""s_mov_b32 s56, {fhex(2.0**40)}
    v_cmp_nge_f32 s[54:55], s56, v{L}
    v_cmp_nge_f32 vcc, s56, v{L+4}
    s_or_b64 s[54:55], s[54:55], vcc
    v_cmp_nge_f32 vcc, s56, v{L+8}
    s_or_b64 s[54:55], s[54:55], vcc
    v_cmp_nge_f32 vcc, s56, v{L+12}
    s_or_b64 s[54:55], s[54:55], vcc
    v_rcp_f32 v{L}, v{L}
    s_or_b32 s54, s54, s55
    v_rcp_f32 v{L+4}, v{L+4}
    s_lshl_b32 s55, s{S_WAVE}, 2
    v_rcp_f32 v{L+8}, v{L+8}
    s_add_u32 s55, s55, {LDS_FLAG}
    v_rcp_f32 v{L+12}, v{L+12}
    v_mov_b32 v{L+1}, s55
    v_mov_b32 v{L+2}, s54""")
    r.append(("ds", "flw", f"ds_write_b32 v{L+1}, v{L+2}"))
    return r
def flag_read(t):
    return R(f"v_mov_b32 v{t}, {LDS_FLAG}") + [("ds", "fl", f"ds_read_b128 {vr(t+1,4)}, v{t}")]
def flag_eval(t):
    return [("wait", None, "fl")] + R(f"v_or3_b32 v{t+1}, v{t+1}, v{t+2}, v{t+3}\nv_or_b32 v{t+1}, v{t+1}, v{t+4}\ns_nop 0\nv_readfirstlane_b32 s{S_REDO}, v{t+1}\ns_nop 3")

S_REDO, S_LATE = 55, 54
def tail_gemm1(e):
    c = G1
    w = c.wl(1)+c.wl(2)
    late30 = list(zip(range(3, 64, 4), w))
    h = c.hl(0)+c.hl(1)+c.hl(2)
    ex30 = list(zip(range(67, 131, 4), h[:16]))
    su = c.setup2()
    late30 += [(65+4*(k//2), [it]) for k, it in enumerate(su)]
    attn_iter(e, 10, dma="nok", extra=ex30, endbar="bar", late=late30)
    ex31 = [(65+4*k, g) for k, g in enumerate(h[16:])]
    late31 = [(64+k, [it]) for k, it in enumerate(c.sethi(LDS_SP))] + [(70, [("wait", ("w", 0), None)])] + [(71+4*k if k < 15 else 129, [it]) for k, it in enumerate(c.reads(0))]
    late31 += [(76+k, [it]) for k, it in enumerate(rowsum_items())]
    attn_iter(e, 11, do_qk=False, dma=False, extra=ex31, late=late31, sm_first=True)
    stamp(e, 7)
    TMP, PK = V_T+3, V_ONE
    NO = [9, 7, 0, 0, 0, 0, 0, 0]
    ko = 0
    PSIG = 3
    fsu = FS.setup(c.S_T, 56, 76)
    for p in range(8):
        if p == 6:
            e.wvm("poll")
            e(f"v_cmp_ne_u32 vcc, s{S_TAG}, v{FS.V_FD}\ns_nop 1\ns_cmp_lg_u64 vcc, 0\ns_cselect_b32 s{S_LATE}, {WS_SZ}, 0\nv_add_u32 v{FS.V_SD}, s{S_LATE}, v{FS.V_SD}")
        if p < 7: e.wvm(("w", p+1))
        e.wvm(("h", p))
        if p == PSIG: e.wvm("o")
        e.wds("ALL" if p == 0 else ("r", p))
        if Ctx.fine == "g": stamp(e, 14+p)
        gaps = [[] for _ in range(40)]
        if p == PSIG: gaps[0] += R("s_barrier") + flag_read(23)
        if p == 6: gaps[0] += R("s_barrier")
        if p < 7:
            for k, it in enumerate(c.reads(p+1)): gaps[2*k].append(it)
        if p == 5: gaps[0] += poll_ld(FS.V_FD, FS.V_FA)
        if 1 <= p <= 5:
            for k, grp in enumerate(c.wl(p+2)+c.hl(p+2)): gaps[2*k+1] += grp
        oi = c.sethi(65536) if p == 0 else []
        for _ in range(NO[p]):
            oi += o_frag_items(ko, TMP, PK, c.V_L16); ko += 1
        g0 = 4 if p == 0 else 0
        for k, it in enumerate(oi): gaps[g0+(k*(40-g0))//len(oi)].append(it)
        if p == PSIG:
            l0 = lab("nosig")
            gaps[6] += flag_eval(23) + R(f"s_cmp_lg_u32 s{S_REDO}, 0\ns_cbranch_scc1 {l0}") + signal(C_O, S_SLOT, TMP) + R(f"{l0}:")
        if p in (2, 4):
            part = fsu[0] if p == 2 else fsu[1]
            for k, g in enumerate(part): gaps[(k*40)//len(part)] += g
        if p >= 6:
            for k, g in enumerate(FS.dma(p-6)):
                if len(g) > 1 and g[1][1] == "s_nop 0":
                    gaps[4*k+1].append(g[0]); g = g[2:]
                gaps[4*k+2 if p == 7 else 4*k+3] += g
        if p == 6:
            B = c.V_B1
            pre = R(f"""v_lshlrev_b32 v20, 16, v{B}
            v_and_b32 v21, 0xffff0000, v{B}
            v_lshlrev_b32 v22, 16, v{B+1}
            v_and_b32 v23, 0xffff0000, v{B+1}
            v_add_u32 v10, s{c.S_LB}, v{c.V_L16}""")
            for fb in range(1, 4):
                pre += R(f"s_add_u32 s{c.S_T}, s{S_WAVE}, {4-fb}\ns_and_b32 s{c.S_T}, s{c.S_T}, 3\ns_lshl_b32 s{c.S_T}, s{c.S_T}, 13\nv_add_u32 v{10+fb}, s{c.S_T}, v{c.V_L16}")
            U = FS.S_US; t = c.S_T
            pre += R(f"""s_mul_i32 s{U}, s{c.S_DT}, {5*54*1024}
            s_lshl_b32 s{t}, s{c.S_FB}, 11
            s_add_u32 s{U}, s{U}, s{t}
            s_add_u32 s{U}, s{U}, {U_OFF}""")
            for k, it in enumerate(pre): gaps[2+(k*38)//len(pre)].append(it)
        for m in range(40):
            fb, db, t = m//10, (m//2) % 5, m % 2
            if p == 7: fb = 3-fb
            d = vr(c.acc(fb,db), 4)
            cc = "0" if (p == 0 and t == 0) else d
            e(f"{MF} {d}, {vr(c.W(p,fb,t),4)}, {c.H(p,db,t)}, {cc}")
            if p == 7 and m >= 11 and m % 2 == 1:
                k = (m-11)//2; fb2, db2 = 3-k//5, k % 5
                kk = 5*(fb2-1)+db2
                e(f"ds_write_b128 v10, {vr(c.acc(fb2,db2),4)} offset:{32768*(kk//8)+1024*(kk%8)}")
            for it in gaps[m]: e.add(it)
    X, Rr = V_S, V_Q
    e("s_waitcnt lgkmcnt(0)\ns_barrier")
    for fb in range(1, 4):
        for db in range(5):
            kk = 5*(fb-1)+db
            e(f"ds_read_b128 {vr(Rr+20*(fb-1)+4*db,4)}, v{10+fb} offset:{32768*(kk//8)+1024*(kk%8)}")
    for k in range(0, 20, 2): e(pk("add", X+k, X+k, 20+k % 4))
    e("s_waitcnt lgkmcnt(5)")
    for k in range(0, 20, 2): e(pk("add", Rr+k, Rr+k, Rr+20+k))
    for k in range(0, 20, 2): e(pk("add", X+k, X+k, Rr+k))
    e("s_waitcnt lgkmcnt(0)")
    for k in range(0, 20, 2): e(pk("add", X+k, X+k, Rr+40+k))
    stamp(e, 8)
    e(f"s_cmp_lg_u32 s{S_REDO}, 0\ns_cbranch_scc1 K_redo_u\ns_cmp_lg_u32 s{S_LATE}, 0\ns_cbranch_scc1 K_late\ns_branch K_final")

LDS_OWN = 4*36864
def gelu_items(va, st):
    X = V_S; Z = X+20; K0, K1, A = Z+30, Z+31, Z+32
    r = R(f"""v_mov_b32 v{K0}, {fhex(-2*math.log2(math.e)*math.sqrt(2/math.pi))}
    v_mov_b32 v{K1}, {fhex(-2*math.log2(math.e)*math.sqrt(2/math.pi)*0.044715)}
    s_lshr_b32 s{st}, s{S_WAVE}, 1
    s_lshl_b32 s{st}, s{st}, 10
    v_add_u32 v{A}, s{st}, v{va}
    s_and_b32 s{st}, s{S_WAVE}, 1
    s_lshl_b32 s{st}, s{st}, 3
    s_add_u32 s{st}, s{st}, {LDS_OWN}
    v_add_u32 v{A}, s{st}, v{A}""")
    r += [("raw", f"v_mul_f32 v{Z+k}, v{X+k}, v{X+k}") for k in range(20)]
    r += [("raw", f"v_fma_f32 v{Z+k}, v{Z+k}, v{K1}, v{K0}") for k in range(20)]
    r += [("raw", f"v_mul_f32 v{Z+k}, v{Z+k}, v{X+k}") for k in range(20)]
    r += [("raw", f"v_exp_f32 v{Z+k}, v{Z+k}") for k in range(20)]
    r += [("raw", f"v_add_f32 v{Z+k}, 1.0, v{Z+k}") for k in range(20)]
    r += [("raw", f"v_rcp_f32 v{Z+k}, v{Z+k}") for k in range(20)]
    r += [("raw", f"v_mul_f32 v{X+k}, v{X+k}, v{Z+k}") for k in range(20)]
    r += [("raw", f"v_cvt_pk_bf16_f32 v{Z+20+k}, v{X+2*k}, v{X+2*k+1}") for k in range(10)]
    r += [("ds", "uw", f"ds_write_b64 v{A}, {vr(Z+20+2*db,2)} offset:{2048*db}") for db in range(5)]
    return r
def u_out(va, st):
    X = V_S; A = X+52
    rd = R(f"s_lshl_b32 s{st}, s{S_WAVE}, 10\ns_add_u32 s{st}, s{st}, {LDS_OWN}\nv_add_u32 v{A}, s{st}, v{va}")
    rd = [rd] + [[("ds", "ur", f"ds_read_b128 {vr(X+4*n,4)}, v{A} offset:{4096*n}")] for n in range(3)]
    U = FS.S_US
    sto = [R(f"s_lshr_b32 s{st}, s{S_WAVE}, 1\ns_mul_i32 s{st}, s{st}, {54*1024}\ns_add_u32 s{U}, s{U}, s{st}"),
           R(f"s_and_b32 s{st}, s{S_WAVE}, 1\ns_lshl_b32 s{st}, s{st}, 10\ns_add_u32 s{U}, s{U}, s{st}"), [("wait", None, "ur")]]
    for n in range(3):
        g = [("vm", "us", f"buffer_store_dwordx4 {vr(X+4*n,4)}, v{va}, s[{S_WS}:{S_WS+3}], s{U} offen{SC}")]
        if n == 0: g += R(f"s_add_u32 s{U}, s{U}, {2*54*1024}")
        if n == 1: g += R(f"s_add_u32 s{U}, s{U}, {2*54*1024}\ns_cmp_ge_u32 s{S_WAVE}, 2\ns_cselect_b32 s{U}, {WS_SZ}, s{U}")
        sto.append(g)
    return rd, sto

def tail_plain(e):
    attn_iter(e, 10, dma="nok", endbar="bar")
    attn_iter(e, 11, do_qk=False, dma=False, late=[(76+k, [it]) for k, it in enumerate(rowsum_items())], sm_first=True)
    stamp(e, 7)
    e(f"v_lshlrev_b32 v{V_T}, 4, v{V_LANE}\ns_nop 7")
    for k in range(16):
        for it in o_frag_items(k, V_P+8*(k % 4), V_P+32+4*(k % 8), V_T): e.add(it)
    for part in FS.setup(50, 51, 52):
        for g in part:
            for it in g: e.add(it)
    e("s_waitcnt vmcnt(0) lgkmcnt(0)\ns_barrier")
    for it in flag_read(19) + flag_eval(19): e.add(it)
    e(f"""s_cmp_lg_u32 s{S_PASS}, 0
    s_cbranch_scc1 K_plain_done
    s_cmp_lg_u32 s{S_REDO}, 0
    s_cbranch_scc1 K_redo
    K_plain_done:
    s_barrier""")
    for it in signal(C_O, S_SLOT, V_T+1): e.add(it)
    e(f"s_mov_b32 s{FS.S_US}, {WS_SZ}")
    stamp(e, 8)

class FS:
    S_SO, S_M0, S_G, S_KQ = 89, 98, 99, 100
    V_SD, V_FA, V_FD = 29, 28, 26
    STG = 36864
    S_US = 79
    S_RB, S_CT, S_XA = 41, 42, 43
    XR, V_B2, V_XO = 240, 250, 251
    @staticmethod
    def slot(s): return 3 - s % 4
    @classmethod
    def setup(c, t0, t1, t2):
        L = f"""s_lshr_b32 s{c.S_KQ}, s{S_XCD}, 1
        s_and_b32 s{t0}, s{S_XCD}, 1
        s_lshl_b32 s{t0}, s{t0}, 5
        s_lshr_b32 s{t1}, s2, 3
        s_add_u32 s{t0}, s{t0}, s{t1}
        s_lshl_b32 s{c.S_G}, s{t0}, 2
        s_add_u32 s{c.S_G}, s{c.S_G}, s{c.S_KQ}
        s_lshr_b32 s{t1}, s{t0}, 3
        s_lshl_b32 s{t1}, s{t1}, 5
        s_lshl_b32 s{t2}, s{c.S_KQ}, 1
        s_add_u32 s{t1}, s{t1}, s{t2}
        s_lshl_b32 s{t1}, s{t1}, 7
        s_add_u32 s{t1}, s{t1}, {FL_OFF+C_O*32768}
        v_bfe_u32 v{c.V_FA}, v{V_LANE}, 1, 2
        v_and_b32 v{c.V_SD}, 1, v{V_LANE}
        v_lshl_add_u32 v{c.V_FA}, v{c.V_FA}, 3, v{c.V_SD}
        v_lshlrev_b32 v{c.V_FA}, 7, v{c.V_FA}
        v_add_u32 v{c.V_FA}, s{t1}, v{c.V_FA}
        v_lshlrev_b32 v{c.V_SD}, 4, v{V_LANE}
        s_lshr_b32 s{c.S_RB}, s{t0}, 2
        s_lshl_b32 s{c.S_RB}, s{c.S_RB}, 1
        s_lshr_b32 s{t2}, s{c.S_KQ}, 1
        s_add_u32 s{c.S_RB}, s{c.S_RB}, s{t2}
        s_and_b32 s{c.S_CT}, s{t0}, 3
        s_lshl_b32 s{c.S_CT}, s{c.S_CT}, 1
        s_and_b32 s{t2}, s{c.S_KQ}, 1
        s_add_u32 s{c.S_CT}, s{c.S_CT}, s{t2}
        v_and_b32 v{c.V_B2}, 15, v{V_LANE}
        v_lshrrev_b32 v252, 4, v{V_LANE}
        v_mul_u32_u24 v{c.V_XO}, 1280, v{c.V_B2}
        v_lshl_add_u32 v{c.V_XO}, v252, 3, v{c.V_XO}
        s_lshl_b32 s{c.S_XA}, s{c.S_RB}, 2
        s_add_u32 s{c.S_XA}, s{c.S_XA}, s{S_WAVE}
        s_lshl_b32 s{t2}, s{c.S_XA}, 4
        v_add_lshl_u32 v252, v{c.V_B2}, s{t2}, 1
        s_mul_i32 s{c.S_XA}, s{c.S_XA}, {16*1280}
        s_mul_i32 s{t2}, s{c.S_CT}, 160
        s_add_u32 s{c.S_XA}, s{c.S_XA}, s{t2}
        s_lshl_b32 s{t2}, s{c.S_KQ}, 15
        s_and_b32 s{t1}, s{t0}, 3
        s_mul_i32 s{t1}, s{t1}, {10*0x20000}
        s_add_u32 s{t1}, s{t1}, s{t2}
        s_add_u32 s{t1}, s{t1}, {WOF_OFF-8*0x20000}
        s_lshr_b32 s{t0}, s{t0}, 2
        s_lshl_b32 s{t0}, s{t0}, 20
        s_add_u32 s{t0}, s{t0}, s{t2}
        s_add_u32 s{t0}, s{t0}, {OF_OFF}
        s_mul_i32 s{c.S_M0}, s{S_WAVE}, 9"""
        p0 = [[it] for it in R(L)]
        p1 = []
        for n in range(9):
            so = c.S_SO+n
            p1 += [R(f"s_add_u32 s{t2}, s{c.S_M0}, {n}"), R(f"s_cmp_lt_u32 s{t2}, 16\ns_cselect_b32 s{so}, s{t0}, s{t1}"),
                   R(f"s_and_b32 s101, s{t2}, 1\ns_lshl_b32 s101, s101, 10"), R(f"s_add_u32 s{so}, s{so}, s101\ns_sub_u32 s{so}, s{so}, {1024*(n%4)}"),
                   R(f"s_lshr_b32 s{t2}, s{t2}, 1\ns_lshl_b32 s{t2}, s{t2}, 17\ns_add_u32 s{so}, s{so}, s{t2}")]
        p1.append(R(f"s_lshl_b32 s{c.S_M0}, s{c.S_M0}, 10"))
        return p0, p1
    @classmethod
    def xloads(c):
        r = [("vm", "e", f"buffer_load_ushort v{c.V_B2}, v252, s[{S_B2}:{S_B2+3}], 0 offen")]
        return r + [("vm", "e", f"buffer_load_dwordx2 {vr(c.XR+2*db,2)}, v{c.V_XO}, s[{S_X}:{S_X+3}], s{c.S_XA} offen offset:{32*db}") for db in range(5)]
    @classmethod
    def dma(c, s, tag=None):
        r = []
        for n in range(9):
            g = R(f"s_add_u32 m0, s{c.S_M0}, {c.STG*c.slot(s)+1024*n}\ns_nop 0") if n % 4 == 0 else []
            t = f"buffer_load_dwordx4 v{c.V_SD}, s[{S_WS}:{S_WS+3}], s{c.S_SO+n} offen offset:{1024*(n%4)}{SC} lds"
            g.append(("vm", ("sd", s), t) if tag is None else ("raw", t))
            if n == 8: g += R(f"v_add_u32 v{c.V_SD}, 2048, v{c.V_SD}")
            r.append(g)
        return r

def final(e):
    c = FS
    S_RB, S_CT, S_A, S_L0, S_B, S_T = c.S_RB, c.S_CT, c.S_XA, 40, 76, 46
    S_YA, S_YB, S_PO, S_PI = 52, 53, 54, 55
    V_L16, V_WD, V_WA, V_WH, V_L8, V_SR = 2, 3, 4, 8, 12, 216
    V_XO, V_B2, XR = c.V_XO, c.V_B2, c.XR
    V_SD2, V_PA, V_PD = 220, 221, 222
    ACS, ACY = 16, 96
    WSR = f"s[{S_WS}:{S_WS+3}]"
    e(f"K_late:\nv_lshlrev_b32 v{c.V_SD}, 4, v{V_LANE}")
    spin(e, c.V_FD, c.V_FA, 4)
    for s in range(2):
        for g in c.dma(s):
            for it in g: e.add(it)
    e("K_final:")
    stamp(e, 9)
    e(f"v_mov_b32 v{V_SD2}, v{c.V_SD}")
    c.V_SD, keep = V_SD2, c.V_SD
    e(f"""v_lshlrev_b32 v{V_L16}, 4, v{V_LANE}
    s_lshr_b32 s{S_T}, s{S_WAVE}, 1
    s_lshl_b32 s{S_T}, s{S_T}, 13
    v_add_u32 v{V_SR}, s{S_T}, v{V_L16}
    s_and_b32 s{S_T}, s{S_WAVE}, 1
    s_mul_i32 s{S_T}, s{S_T}, 10240
    s_add_u32 s{S_T}, s{S_T}, 16384
    v_add_u32 v{V_SR+1}, s{S_T}, v{V_L16}
    v_add_u32 v{V_SR+2}, {2*c.STG}, v{V_SR}
    v_add_u32 v{V_SR+3}, {2*c.STG}, v{V_SR+1}""")
    def SA(s, db, t): return ar(72*(s % 2)+8*db+4*t, 4)
    def SB(s, sb, t): return ar(72*(s % 2)+40+8*sb+4*t, 4)
    def sreads(s):
        sl = c.slot(s); hi = 2*(sl//2); o = c.STG*(sl % 2)
        r = []
        for k in range(5):
            for t in range(2):
                if k < 4: r.append(("ds", ("sr", s), f"ds_read_b128 {SB(s,k,t)}, v{V_SR+hi} offset:{o+2048*k+1024*t}"))
                r.append(("ds", ("sr", s), f"ds_read_b128 {SA(s,k,t)}, v{V_SR+1+hi} offset:{o+2048*k+1024*t}"))
        return r
    YB = [c.STG*c.slot(12+y) for y in range(3)]
    YLO = YB[2]
    PSZ = 10240
    ysetup = R(f"""v_lshrrev_b32 v14, 3, v{V_LANE}
    v_and_b32 v15, 7, v{V_LANE}
    v_and_b32 v{V_WD}, 6, v14
    v_xor_b32 v15, v15, v{V_WD}
    v_lshlrev_b32 v14, 12, v14
    v_lshl_add_u32 v{V_WD}, v15, 4, v14
    v_lshrrev_b32 v14, 2, v{V_LANE}
    v_and_b32 v{V_WH}, 6, v14
    v_bfe_u32 v15, v{V_LANE}, 1, 1
    v_xor_b32 v15, v15, v{V_WH}
    v_lshlrev_b32 v15, 4, v15
    v_lshl_add_u32 v15, v14, 7, v15
    v_and_b32 v14, 1, v{V_LANE}
    v_lshl_add_u32 v15, v14, 3, v15
    s_lshl_b32 s{S_L0}, s{S_WAVE}, 13
    v_add_u32 v15, s{S_L0}, v15
    v_add_u32 v15, {YLO}, v15
    v_lshlrev_b32 v{V_L8}, 3, v{V_LANE}
    s_mul_i32 s{S_YA}, s{S_WAVE}, {7*64*4096}
    s_lshl_b32 s{S_T}, s{S_RB}, 7
    s_add_u32 s{S_YA}, s{S_YA}, s{S_T}
    s_mul_i32 s{S_YB}, s{S_CT}, {5*54*1024}
    s_mul_i32 s{S_T}, s{S_WAVE}, {7*2048}
    s_add_u32 s{S_YB}, s{S_YB}, s{S_T}""")
    for sb in range(4):
        ysetup += R(f"""s_add_u32 s{S_T}, s{S_WAVE}, {sb}
        s_and_b32 s{S_T}, s{S_T}, 3
        s_lshl_b32 s{S_T}, s{S_T}, 5
        v_xor_b32 v{V_WA+sb}, s{S_T}, v15
        v_add_u32 v{V_WH+sb}, {YB[0]-YLO}, v{V_WA+sb}""")
    ysetup += R(f"""s_and_b32 s{S_T}, s{c.S_G}, 0xfc
    s_add_u32 s{S_T}, s{S_T}, s{S_WAVE}
    s_lshl_b32 s{S_T}, s{S_T}, 2
    s_add_u32 s{S_T}, s{S_T}, s{c.S_KQ}
    s_mul_i32 s{S_PO}, s{S_T}, {PSZ}
    s_add_u32 s{S_PO}, s{S_PO}, {PART_OFF}
    s_mul_i32 s{S_PI}, s{c.S_G}, {4*PSZ}
    s_mul_i32 s{S_T}, s{S_WAVE}, 2560
    s_add_u32 s{S_PI}, s{S_PI}, s{S_T}
    s_add_u32 s{S_PI}, s{S_PI}, {PART_OFF}
    s_mov_b32 s{S_B}, {fhex(-math.log2(math.e))}""")
    def XF(k): return 224+k if k < 16 else 252+(k-16)
    def YA(p, db, t):
        k = 8*db+4*t
        return [ar(144+k, 4), ar(184+k, 4), vr(176+k, 4), ar(k, 4)][p % 4]
    def YBr(p, sb, t, n=4, o=0): return ar((224 if p % 2 == 0 else 40)+8*sb+4*t+o, n)
    def yloads(p):
        r = []
        for n in range(8):
            g = R(f"s_add_u32 m0, s{S_L0}, {YB[p%3]+1024*n}") if n % 4 == 0 else []
            r.append(g+[("raw", f"s_add_u32 s{S_T}, s{S_YA}, {(64*p+8*n)*4096-1024*(n%4)}"),
                        ("vm", ("w", p), f"buffer_load_dwordx4 v{V_WD}, s[{S_W2}:{S_W2+3}], s{S_T} offen offset:{1024*(n%4)} lds")])
        for db in range(5):
            g = [("raw", f"s_add_u32 s{S_T+1}, s{S_YB}, {U_OFF+db*54*1024+p*2048}")]
            if p == 6: g += R(f"s_cmp_eq_u32 s{S_WAVE}, 3\ns_cselect_b32 s{S_T+1}, {WS_SZ}, s{S_T+1}")
            r.append(g+[("vm", ("a", p), f"buffer_load_dwordx4 {YA(p,db,0)}, v{V_L16}, {WSR}, s{S_T+1} offen{SC}")])
            r.append([("vm", ("a", p), f"buffer_load_dwordx4 {YA(p,db,1)}, v{V_L16}, {WSR}, s{S_T+1} offen offset:1024{SC}")])
        return r
    def yreads(p):
        y = p % 3
        va, o = (V_WH, 0) if y == 0 else (V_WA, YB[y]-YLO)
        return [("ds", ("r", p), f"ds_read_b64_tr_b16 {YBr(p,sb,t,2,2*hj)}, v{va+sb} offset:{o+2048*(2*t+hj)}")
                for sb in range(4) for t in range(2) for hj in range(2)]
    V_OW, V_OW8, S_OWN = 13, 223, 50
    ysetup += R(f"""v_add_u32 v{V_OW}, {LDS_OWN}, v{V_L16}
    v_add_u32 v{V_OW8}, {LDS_OWN}, v{V_L8}""")
    own = R(f"s_cmp_eq_u32 s{S_WAVE}, s{c.S_KQ}\ns_cselect_b64 s[{S_OWN}:{S_OWN+1}], -1, 0\ns_cselect_b32 s{S_PO}, {WS_SZ}, s{S_PO}")
    def pstore(sb):
        b = ACS+20*sb
        r = [[("raw", f"v_cvt_pk_bf16_f32 v{b+j}, v{b+2*j}, v{b+2*j+1}")] for j in range(10)]
        r.insert(4, [("vm", "ps", f"buffer_store_dwordx4 {vr(b,4)}, v{V_L16}, {WSR}, s{S_PO} offen{SC}")])
        r.insert(9, [("vm", "ps", f"buffer_store_dwordx4 {vr(b+4,4)}, v{V_L16}, {WSR}, s{S_PO} offen offset:1024{SC}")])
        r.append([("vm", "ps", f"buffer_store_dwordx2 {vr(b+8,2)}, v{V_L8}, {WSR}, s{S_PO} offen offset:2048{SC}"), ("raw", f"s_add_u32 s{S_PO}, s{S_PO}, 2560")])
        r.append(R(f"s_mov_b64 exec, s[{S_OWN}:{S_OWN+1}]") +
                 [("ds", "ow", f"ds_write_b128 v{V_OW}, {vr(b,4)} offset:{2560*sb}"), ("ds", "ow", f"ds_write_b128 v{V_OW}, {vr(b+4,4)} offset:{2560*sb+1024}"),
                  ("ds", "ow", f"ds_write_b64 v{V_OW8}, {vr(b+8,2)} offset:{2560*sb+2048}")] + R("s_mov_b64 exec, -1"))
        return r
    gl = gelu_items(V_L16, S_T+2)
    urd, ust = u_out(V_L16, S_T+2)
    y01 = yloads(0) + yloads(1)
    e.wvm(("sd", 0)); e("s_barrier")
    for it in sreads(0): e.add(it)
    for g in c.dma(2):
        for it in g: e.add(it)
    for s in range(16):
        if s == 13:
            e.wvm("poll")
            spin(e, V_PD, V_PA, 4, have=True)
        if s == 7: e.wvm("us")
        if s < 15: e.wait(("sd", s+1), "ALL")
        else: e.wait(("w", 0), "ALL")
        if s < 15: e("s_barrier")
        if Ctx.fine == "f": stamp(e, 14+s)
        gaps = [[] for _ in range(40)]
        rd = sreads(s+1) if s < 15 else yreads(0)
        for k, it in enumerate(rd): gaps[2*k if s < 15 else k].append(it)
        dm = (c.dma(3) if s == 0 else []) + (c.dma(s+4) if s+4 < 16 else [])
        st = 2 if s == 0 else 4
        for k, g in enumerate(dm):
            if g[0][0] == "raw":
                gaps[st*k+2-st//2].append(g[0]); g = g[2:]
            gaps[st*k+3] = list(g) + gaps[st*k+3]
        if s >= 12:
            part = y01[:8] if s == 12 else (y01[8:18] if s == 13 else (y01[18:28] if s == 14 else y01[28:]))
            for k, g in enumerate(part): gaps[4*k+1 if s < 15 else 2*k+1] += g
        if s < 4:
            cut = [0, 49, 89, 127, len(gl)]
            part = gl[cut[s]:cut[s+1]]
            for k, it in enumerate(part): gaps[(k*38)//len(part)].append(it)
        if s == 4:
            for k, g in enumerate(urd): gaps[4*k+1] += g
            for k, g in enumerate(ust): gaps[4*k+17] += g
        if s == 7: gaps[1] += signal(C_U, S_UG, 14)
        if 8 <= s < 12:
            n = -(-len(ysetup)//4)
            for k, it in enumerate(ysetup[(s-8)*n:(s-7)*n]): gaps[2*k].append(it)
        if s == 6:
            for k, it in enumerate(flag_addr(V_PA, C_U, S_CT, 27)): gaps[2*k].append(it)
        if s == 12: gaps[0] += poll_ld(V_PD, V_PA); gaps[39] += own
        if s == 15:
            for sb in range(2):
                for k, g in enumerate(pstore(sb)): gaps[18+10*sb+(k*10)//14] += g
        for m in range(40):
            sb, db, t = m//10, (m//2) % 5, m % 2
            d = vr(ACS+20*sb+4*db, 4)
            cc = "0" if (s == 0 and t == 0) else d
            e(f"{MF} {d}, {SA(s,db,t)}, {SB(s,sb,t)}, {cc}")
            for it in gaps[m]: e.add(it)
    stamp(e, 10)
    V_RW, V_RR = V_SR, V_WA
    PL, SS = ACS, ACS+48
    def psum(src):
        r = []
        for j in range(10):
            x = PL+12*src+j
            if src == 0: r += R(f"v_lshlrev_b32 v{SS+2*j}, 16, v{x}\nv_and_b32 v{SS+2*j+1}, 0xffff0000, v{x}")
            else: r += R(f"v_lshlrev_b32 v{SS+20}, 16, v{x}\nv_and_b32 v{x}, 0xffff0000, v{x}\nv_add_f32 v{SS+2*j}, v{SS+2*j}, v{SS+20}\nv_add_f32 v{SS+2*j+1}, v{SS+2*j+1}, v{x}")
        return r
    for p in range(7):
        if p < 6: e.wvm(("w", p+1))
        e.wait(("a", p), "ALL")
        if Ctx.fine == "g": stamp(e, 24+p)
        gaps = [[] for _ in range(40)]
        if p < 6:
            for k, it in enumerate(yreads(p+1)): gaps[2*k].append(it)
        sh = 0
        if p == 0:
            for k, g in enumerate(pstore(2)): gaps[k//2] += g
            for k, g in enumerate(pstore(3)): gaps[7+k//2] += g
            sh = 4
        if p == 3: gaps[16] += poll_ld(V_PD, V_PA)
        if p+2 < 7:
            for k, g in enumerate(yloads(p+2)): gaps[min(2*k+1+sh, 39)] += g
        if p == 3:
            gaps[36] += [("wait", "poll", None)] + spin_items(V_PD, V_PA, 2, have=True)
            for k in range(1, 4):
                b = PL+12*k
                gaps[36+k] += R(f"s_add_u32 s{S_T+2}, s{c.S_KQ}, {k}\ns_and_b32 s{S_T+2}, s{S_T+2}, 3\ns_mul_i32 s{S_T+2}, s{S_T+2}, {PSZ}\ns_add_u32 s{S_T+2}, s{S_T+2}, s{S_PI}")
                gaps[36+k] += [("vm", "pl", f"buffer_load_dwordx4 {vr(b,4)}, v{V_L16}, {WSR}, s{S_T+2} offen{SC}"),
                               ("vm", "pl", f"buffer_load_dwordx4 {vr(b+4,4)}, v{V_L16}, {WSR}, s{S_T+2} offen offset:1024{SC}"),
                               ("vm", "pl", f"buffer_load_dwordx2 {vr(b+8,2)}, v{V_L8}, {WSR}, s{S_T+2} offen offset:2048{SC}")]
        if p == 5:
            for k, it in enumerate(c.xloads()): gaps[4*k+1].append(it)
        if p == 1:
            gaps[0] += R("s_barrier") + signal(C_P, c.S_G, 14)
            gaps[2] += R(f"s_mul_i32 s{S_T+2}, s{S_WAVE}, 2560\nv_add_u32 v{V_OW}, s{S_T+2}, v{V_OW}\nv_add_u32 v{V_OW8}, s{S_T+2}, v{V_OW8}")
            gaps[32] += [("ds", "or", f"ds_read_b128 {vr(PL,4)}, v{V_OW}")]
            gaps[34] += [("ds", "or", f"ds_read_b128 {vr(PL+4,4)}, v{V_OW} offset:1024")]
            gaps[36] += [("ds", "or", f"ds_read_b64 {vr(PL+8,2)}, v{V_OW8} offset:2048")]
        if p == 2:
            pa = R(f"""v_min_u32 v{V_PA}, 2, v{V_LANE}
            v_add_u32 v{V_PA}, s{c.S_KQ}, v{V_PA}
            v_add_u32 v{V_PA}, 1, v{V_PA}
            v_and_b32 v{V_PA}, 3, v{V_PA}
            s_and_b32 s{S_T+2}, s{c.S_G}, 0xfc
            v_add_u32 v{V_PA}, s{S_T+2}, v{V_PA}
            v_lshlrev_b32 v{V_PA}, 7, v{V_PA}
            v_add_u32 v{V_PA}, {FL_OFF+C_P*32768}, v{V_PA}""") + psum(0)
            for k, it in enumerate(pa): gaps[(k*40)//len(pa)].append(it)
        if p == 5:
            ps = psum(1) + psum(2)[:20]
            for k, it in enumerate(ps): gaps[(k*40)//len(ps)].append(it)
        if p == 6:
            ra = R(f"v_add_u32 v{V_RW}, s{S_L0}, v{V_L16}\nv_add_u32 v{V_RW+1}, {YB[0]}, v{V_RW}\nv_add_u32 v{V_RW}, {YLO}, v{V_RW}")
            for k in range(1, 4):
                ra += R(f"s_add_u32 s{S_T}, s{S_WAVE}, {4-k}\ns_and_b32 s{S_T}, s{S_T}, 3\ns_lshl_b32 s{S_T}, s{S_T}, 13\ns_add_u32 s{S_T}, s{S_T}, {YB[k-1]}\nv_add_u32 v{V_RR+k}, s{S_T}, v{V_L16}")
            ra += psum(2)[20:] + psum(3)[:20]
            for k, it in enumerate(ra): gaps[(k*40)//len(ra)].append(it)
        for m in range(40):
            db, sb, t = m//8, (m//2) % 4, m % 2
            if p == 6: sb, db = 3-m//10, (m//2) % 5
            d = vr(ACY+20*sb+4*db, 4)
            cc = "0" if (p == 0 and t == 0) else d
            e(f"{MF} {d}, {YA(p,db,t)}, {YBr(p,sb,t)}, {cc}")
            if p == 6 and m >= 11 and m % 2 == 1:
                k = (m-11)//2; sb2, db2 = 3-k//5, k % 5
                va, o = (V_RW+1, 0) if sb2 == 1 else (V_RW, YB[sb2-1]-YLO)
                e.ds("yw", f"ds_write_b128 v{va}, {vr(ACY+20*sb2+4*db2,4)} offset:{o+1024*db2}")
            for it in gaps[m]: e.add(it)
    stamp(e, 11)
    Y, Z = ACY, ACY+20
    for it in psum(3)[20:]: e.add(it)
    e.wds("ALL"); e("s_barrier")
    for sb in range(1, 4):
        for db in range(5): e.ds(("yr", sb), f"ds_read_b128 {vr(ACY+20*sb+4*db,4)}, v{V_RR+sb} offset:{1024*db}")
    e.wvm("e")
    e(f"v_lshlrev_b32 v14, 16, v{V_B2}\nv_lshlrev_b32 v15, 16, v{V_B2}\ns_mov_b32 s{S_B+1}, s{S_B}")
    for k in range(10): e(f"v_lshlrev_b32 v{XF(2*k)}, 16, v{XR+k}\nv_and_b32 v{XF(2*k+1)}, 0xffff0000, v{XR+k}")
    for k in range(0, 20, 2): e(pk("add", Y+k, Y+k, 14))
    for sb in range(1, 4):
        e.wds(("yr", sb))
        for k in range(0, 20, 2): e(pk("add", Y+k, Y+k, Y+20*sb+k))
    for k in range(0, 20, 2): e(f"v_pk_mul_f32 {vr(Z+k,2)}, {vr(Y+k,2)}, s[{S_B}:{S_B+1}]")
    for k in range(20): e(f"v_exp_f32 v{Z+k}, v{Z+k}")
    for k in range(0, 20, 2): e(pk("mul", Y+k, Y+k, SS+k))
    for k in range(0, 20, 2): e(f"v_pk_add_f32 {vr(Z+k,2)}, {vr(Z+k,2)}, 1.0 op_sel_hi:[1,0]")
    for db in range(5):
        for k in range(4*db, 4*db+4): e(f"v_rcp_f32 v{Z+k}, v{Z+k}")
        if db:
            d0 = db-1
            e(f"v_cvt_pk_bf16_f32 v{Z+20+2*d0}, v{XF(4*d0)}, v{XF(4*d0+1)}\nv_cvt_pk_bf16_f32 v{Z+21+2*d0}, v{XF(4*d0+2)}, v{XF(4*d0+3)}")
            e(f"buffer_store_dwordx2 {vr(Z+20+2*d0,2)}, v{V_XO}, s[{S_OUT}:{S_OUT+3}], s{S_A} offen offset:{32*d0}")
        else: e("s_nop 0")
        for k in range(4*db, 4*db+4, 2): e(f"v_pk_fma_f32 {vr(XF(k),2)}, {vr(Y+k,2)}, {vr(Z+k,2)}, {vr(XF(k),2)}")
    e(f"v_cvt_pk_bf16_f32 v{Z+28}, v{XF(16)}, v{XF(17)}\nv_cvt_pk_bf16_f32 v{Z+29}, v{XF(18)}, v{XF(19)}")
    e(f"buffer_store_dwordx2 {vr(Z+28,2)}, v{V_XO}, s[{S_OUT}:{S_OUT+3}], s{S_A} offen offset:128")
    stamp(e, 12)
    c.V_SD = keep
    if Ctx.ts:
        e(f"""s_add_u32 s4, s{S_WS}, {TS_OFF}
        s_addc_u32 s5, s{S_WS+1}, 0
        s_mov_b32 s6, 0x100000
        s_mov_b32 s7, 0x20000
        s_lshl_b32 s8, s2, 2
        s_add_u32 s8, s8, s{S_WAVE}
        s_lshl_b32 s8, s8, 8
        v_lshlrev_b32 v10, 2, v{V_LANE}
        buffer_store_dword v0, v10, s[4:7], s8 offen""")
    e("K_end:\ns_endpgm")

def gen(ts=False):
    Ctx.ts = ts; Ctx.uid = 0
    e = Em()
    WSR = f"s[{S_WS}:{S_WS+3}]"
    LN_R, LN_L, LT, LN_X, X, D, O1, O2, TA, A0, TG, SB = 96, 97, 98, 100, 110, 130, 150, 160, 170, 176, 182, 184
    XS, HS = LDS_SP, LDS_SP+10240
    e(khead(NAME))
    e("s_cmp_ge_u32 s2, 256\ns_cbranch_scc1 K_exit")
    for s, off in ((S_X,0),(S_DBG,88),(S_WQ,24),(S_WS,96),(S_K,8),(S_V,16),(S_WO,32)):
        e(f"s_load_dwordx2 s[{s}:{s+1}], s[0:1], {off}")
    e(f"s_getpc_b64 s[{S_CODE}:{S_CODE+1}]\nK_pc:")
    e(f"""v_and_b32 v{V_LANE}, 63, v0
    v_lshrrev_b32 v{V_T}, 6, v0
    s_mov_b32 s{S_CODE+2}, K_last-K_pc
    v_readfirstlane_b32 s{S_WAVE}, v{V_T}
    s_mov_b32 s{S_CODE+3}, 0x20000
    s_lshr_b32 s51, s2, 3
    v_lshlrev_b32 v{LT}, 7, v{V_LANE}
    s_cmp_lt_u32 s{S_WAVE}, 2
    s_cbranch_scc1 K_nocp
    s_lshl_b32 s49, s51, 1
    s_add_u32 s49, s49, s{S_WAVE}
    s_and_b32 s49, s49, 15
    s_lshl_b32 s49, s49, 13
    buffer_load_dword v{V_PFD}, v{LT}, s[{S_CODE}:{S_CODE+3}], s49 offen
    K_nocp:
    s_and_b32 s{S_XCD}, s2, 7
    s_lshr_b32 s52, s51, 3
    s_and_b32 s{S_QB}, s51, 7
    s_lshl_b32 s53, s52, 3
    s_add_u32 s53, s53, s{S_XCD}
    s_lshl_b32 s54, s{S_QB}, 5
    s_add_u32 s{S_SLOT}, s53, s54""")
    e(f"""v_lshrrev_b32 v{LN_R}, 5, v0
    v_and_b32 v{LN_L}, 31, v0
    s_lshr_b32 s54, s{S_SLOT}, 2
    s_lshl_b32 s54, s54, 5
    s_and_b32 s55, s{S_SLOT}, 3
    s_lshl_b32 s55, s55, 2
    s_add_u32 s54, s54, s55
    v_and_b32 v{LT}, 3, v{LN_R}
    v_lshrrev_b32 v{LT+1}, 2, v{LN_R}
    v_lshl_add_u32 v{LT}, v{LT+1}, 4, v{LT}
    v_add_u32 v{LT}, s54, v{LT}
    v_mul_u32_u24 v{LT}, 1280, v{LT}
    v_lshl_add_u32 v{LT}, v{LN_L}, 3, v{LT}
    s_mov_b32 s{S_X+2}, {2048*1280}
    s_mov_b32 s{S_X+3}, 0x20000
    s_mov_b32 s{S_DBG+2}, 256
    s_mov_b32 s{S_DBG+3}, 0x20000
    v_mov_b32 v{TG}, 0
    s_memrealtime s[90:91]
    s_waitcnt lgkmcnt(0)""")
    for j in range(5):
        e(f"buffer_load_dwordx2 v[{LN_X+2*j}:{LN_X+2*j+1}], v{LT}, s[{S_X}:{S_X+3}], 0 offen offset:{256*j}")
    e(f"""s_lshl_b32 s48, s2, 2
    s_add_u32 s48, s48, s{S_WAVE}
    s_cmp_lg_u32 s48, 1
    s_cbranch_scc1 K_notag
    s_or_b32 s90, s90, 1
    v_mov_b32 v{TG+1}, s90
    s_mov_b64 exec, 1
    buffer_store_dword v{TG+1}, v{TG}, s[{S_DBG}:{S_DBG+3}], 0 offen sc1
    s_mov_b64 exec, -1
    K_notag:
    s_lshl_b32 s50, s{S_XCD}, 2
    s_add_u32 s50, s50, s52
    s_lshl_b32 s56, s50, 8
    s_sub_u32 s{S_WQ+2}, {640*8192}, s56
    s_mov_b32 s{S_WQ+3}, 0x20000
    s_add_u32 s{S_WQ}, s{S_WQ}, s56
    s_addc_u32 s{S_WQ+1}, s{S_WQ+1}, 0""")
    e(f"""s_cmp_lt_u32 s{S_WAVE}, 2
    s_cbranch_scc1 K_nopf
    v_lshrrev_b32 v{LT}, 1, v{V_LANE}
    v_and_b32 v{LT+1}, 1, v{V_LANE}
    v_lshlrev_b32 v{LT+1}, 7, v{LT+1}
    v_lshl_add_u32 v{LT}, v{LT}, 17, v{LT+1}
    s_lshl_b32 s48, s{S_QB}, 1
    s_add_u32 s48, s48, s{S_WAVE}
    s_sub_u32 s48, s48, 2
    s_lshl_b32 s48, s48, 13
    buffer_load_dword v{V_PFD}, v{LT}, s[{S_WQ}:{S_WQ+3}], s48 offen{NTQ}
    s_add_u32 s48, s48, {32*16*8192}
    buffer_load_dword v{V_PFD}, v{LT}, s[{S_WQ}:{S_WQ+3}], s48 offen{NTQ}
    K_nopf:""")
    for s, off in ((S_W1,48),(S_B1,56),(S_W2,64),(S_B2,72),(S_OUT,80)):
        e(f"s_load_dwordx2 s[{s}:{s+1}], s[0:1], {off}")
    e(f"""s_mov_b32 s{S_WS+2}, {WS_SZ}
    s_mov_b32 s{S_WS+3}, 0x20000
    s_mov_b32 s{S_PASS}, 0
    s_lshr_b32 s48, s2, 5
    s_lshr_b32 s53, s{S_XCD}, 1
    s_mul_i32 s53, s53, 7
    s_add_u32 s53, s53, s48
    s_cmp_lt_u32 s48, 7
    s_cselect_b32 s{S_G1}, 1, 0
    s_cmp_lt_u32 s53, 27
    s_cselect_b32 s{S_G1}, s{S_G1}, 0
    s_and_b32 s48, s{S_XCD}, 1
    s_lshl_b32 s48, s48, 2
    s_and_b32 s{S_UG}, s{S_QB}, 3
    s_add_u32 s{S_UG}, s{S_UG}, s48
    s_lshl_b32 s{S_UG}, s{S_UG}, 5
    s_add_u32 s{S_UG}, s{S_UG}, s53
    s_cmp_eq_u32 s{S_G1}, 0
    s_cselect_b32 s{S_STATE}, {1<<C_U}, 0
    s_cmp_lg_u32 s{S_WAVE}, 0
    s_cselect_b32 s{S_STATE}, -1, s{S_STATE}
    s_mov_b32 s49, 0xffff0000""")
    e(f"""v_mul_u32_u24 v{A0}, 1280, v{LN_R}
    v_lshl_add_u32 v{A0}, v{LN_L}, 3, v{A0}
    v_add_u32 v{A0}, {XS}, v{A0}
    v_and_b32 v{SB}, 3, v{V_LANE}
    v_bfe_u32 v{SB+1}, v{V_LANE}, 2, 2
    v_bfe_u32 v{SB+2}, v{V_LANE}, 4, 1
    v_lshrrev_b32 v{SB+3}, 5, v{V_LANE}
    v_lshl_add_u32 v{A0+1}, v{SB+2}, 2, v{SB}
    v_mul_u32_u24 v{A0+1}, 1280, v{A0+1}
    v_lshl_add_u32 v{A0+1}, v{SB+3}, 6, v{A0+1}
    v_lshl_add_u32 v{A0+1}, v{SB+1}, 3, v{A0+1}
    v_add_u32 v{A0+1}, {XS}, v{A0+1}
    s_lshr_b32 s54, s{S_SLOT}, 2
    s_lshl_b32 s54, s54, 1
    v_add_u32 v{A0+2}, s54, v{SB+2}
    v_mul_u32_u24 v{A0+2}, 20, v{A0+2}
    v_add_u32 v{A0+2}, v{A0+2}, v{SB+3}
    v_lshlrev_b32 v{A0+2}, 6, v{A0+2}
    v_lshl_add_u32 v{A0+2}, v{SB+1}, 4, v{A0+2}
    v_add_u32 v{A0+2}, v{A0+2}, v{SB}
    v_add_u32 v{A0+2}, s55, v{A0+2}
    v_lshlrev_b32 v{A0+2}, 4, v{A0+2}""")
    QP.addr_dma(e, SB+4)
    if ts: e("v_mov_b32 v0, 0")
    stamp(e, 0)
    e(f"s_cmp_lt_u32 s{S_WAVE}, 2\ns_cbranch_scc1 K_w0\ns_waitcnt vmcnt(2)\ns_branch K_w1\nK_w0:\ns_waitcnt vmcnt(0)\nK_w1:")
    stamp(e, 1)
    e(f"buffer_load_dword v{TG+1}, v{TG}, s[{S_DBG}:{S_DBG+3}], 0 offen sc1")
    unpack(e, LN_X, X, 10, 49)
    layernorm(e, X, D, O1, TA, 49)
    e("s_waitcnt lgkmcnt(0)")
    for j in range(5): e(f"ds_write_b64 v{A0}, v[{O1+2*j}:{O1+2*j+1}] offset:{256*j}")
    if Ctx.fine == "s": stamp(e, 14)
    e(f"s_waitcnt lgkmcnt(0)\ns_barrier\ns_cmp_lg_u32 s{S_WAVE}, 0\ns_cbranch_scc1 K_noxs")
    for n in range(10): e(f"ds_read2_b64 v[{SB+4*n}:{SB+4*n+3}], v{A0+1} offset0:{16*n} offset1:{16*n+4}")
    for n in range(10):
        if n % 2 == 0: e(f"s_mov_b32 s54, {2048*n}")
        e(f"s_waitcnt lgkmcnt({9-n})\nbuffer_store_dwordx4 v[{SB+4*n}:{SB+4*n+3}], v{A0+2}, {WSR}, s54 offen offset:{2048*(n%2)}{SC}")
    e("K_noxs:")
    e.vm("xs", "s_nop 0")
    if Ctx.fine == "s": stamp(e, 15)
    QP.wq_tiles(e, 0, 4)
    if Ctx.fine == "s": stamp(e, 16)
    unpack(e, O1, X, 10, 49)
    layernorm(e, X, D, O2, TA, 49)
    for j in range(5): e(f"ds_write_b64 v{A0}, v[{O2+2*j}:{O2+2*j+1}] offset:{10240+256*j}")
    if Ctx.fine == "s": stamp(e, 17)
    l0 = lab("w0")
    e(f"s_cmp_lg_u32 s{S_WAVE}, 0\ns_cbranch_scc1 {l0}")
    e.wvm("xs")
    spin(e, TG+1, TG, 1, have=True, cmp=f"v_cmp_eq_u32 vcc, 0, v{TG+1}", srd=S_DBG)
    e(f"v_readfirstlane_b32 s{S_TAG}, v{TG+1}\ns_nop 1")
    for it in signal(C_XN, S_SLOT, LT): e.add(it)
    e(f"{l0}:")
    stamp(e, 2)
    QP.wq_tiles(e, 4, 8)
    if Ctx.fine == "s": stamp(e, 18)
    e(f"""s_lshl_b32 s50, s{S_XCD}, 2
    s_lshr_b32 s52, s2, 6
    s_add_u32 s50, s50, s52
    s_lshl_b32 s52, s50, 19
    s_add_u32 s{S_K}, s{S_K}, s52
    s_addc_u32 s{S_K+1}, s{S_K+1}, 0
    s_add_u32 s{S_V}, s{S_V}, s52
    s_addc_u32 s{S_V+1}, s{S_V+1}, 0""")
    for s, sz in ((S_K,524288),(S_V,524288),(S_WO,4096*1280),(S_W1,2048*3456),(S_B1,3456),(S_W2,1728*4096),(S_B2,4096),(S_OUT,2048*1280)):
        e(f"s_mov_b32 s{s+2}, {sz}\ns_mov_b32 s{s+3}, 0x20000")
    e(f"""s_lshr_b32 s{S_CPF}, s2, 3
    s_lshl_b32 s{S_CPF}, s{S_CPF}, 2
    s_add_u32 s{S_CPF}, s{S_CPF}, s{S_WAVE}
    s_lshl_b32 s{S_CPF}, s{S_CPF}, 10
    s_and_b32 s{S_CPF}, s{S_CPF}, 0xffff
    s_add_u32 s{S_CPF}, s{S_CPF}, K_tail-K_pc
    v_bfe_u32 v{A0+3}, v{V_LANE}, 2, 2
    v_mul_u32_u24 v{A0+3}, 1280, v{A0+3}
    v_lshrrev_b32 v{LT}, 4, v{V_LANE}
    s_lshl_b32 s54, s{S_WAVE}, 2
    v_add_u32 v{LT}, s54, v{LT}
    v_lshl_add_u32 v{A0+3}, v{LT}, 5, v{A0+3}
    v_and_b32 v{LT+1}, 3, v{V_LANE}
    v_lshl_add_u32 v{A0+3}, v{LT+1}, 3, v{A0+3}
    v_add_u32 v{A0+3}, {HS}, v{A0+3}
    v_lshlrev_b32 v{A0+4}, 16, v{LT}
    v_and_b32 v{LT+1}, 15, v{V_LANE}
    v_lshl_add_u32 v{A0+4}, v{LT+1}, 4, v{A0+4}""")
    e.wvm(("W", 1))
    spin(e, TG+1, TG, 1, have=True, cmp=f"v_cmp_eq_u32 vcc, 0, v{TG+1}", srd=S_DBG)
    e(f"v_readfirstlane_b32 s{S_TAG}, v{TG+1}")
    e("K_start:")
    e(f"""s_lshl_b32 s50, s{S_XCD}, 2
    s_lshr_b32 s52, s2, 6
    s_add_u32 s50, s50, s52
    s_mov_b32 s{S_KOFF}, s{S_W4K}
    s_mov_b32 s{S_VOFF}, s{S_W4K}
    s_lshl_b32 s55, s{S_QB}, 4
    s_lshl_b32 s54, s{S_WAVE}, 2
    s_add_u32 s55, s55, s54
    s_mul_i32 s{QP.S_XOFF}, s55, 20480
    s_lshl_b32 s{S_OST}, s55, 17
    s_lshl_b32 s54, s50, 12
    s_add_u32 s{S_OST}, s{S_OST}, s54
    s_add_u32 s{S_OST}, s{S_OST}, {OF_OFF}
    s_lshl_b32 s{S_PF}, s2, 2
    s_add_u32 s{S_PF}, s{S_PF}, s{S_WAVE}
    s_lshr_b32 s54, s{S_PF}, 3
    s_and_b32 s55, s{S_PF}, 7
    s_mul_i32 s{QP.S_WOS}, s54, {32*1280}
    s_mul_i32 s53, s55, 160
    s_add_u32 s{QP.S_WOS}, s{QP.S_WOS}, s53
    s_mul_i32 s{QP.S_WOD}, s55, {5*0x20000}
    s_lshl_b32 s54, s54, 10
    s_add_u32 s{QP.S_WOD}, s{QP.S_WOD}, s54
    s_add_u32 s{QP.S_WOD}, s{QP.S_WOD}, {WOF_OFF}
    s_mul_i32 s{S_PF}, s{S_PF}, {56*128}""")
    T = 64
    e(f"""v_lshrrev_b32 v{T+2}, 2, v{V_LANE}
    v_and_b32 v{T+3}, 7, v{T+2}
    v_lshlrev_b32 v{T+3}, 1, v{T+3}
    v_and_b32 v{T+4}, 3, v{V_LANE}
    v_xor_b32 v{T+5}, v{T+3}, v{T+4}
    v_lshlrev_b32 v{T+5}, 4, v{T+5}
    v_lshl_add_u32 v{QP.V_WL}, v{T+2}, 8, v{T+5}
    v_xor_b32 v{QP.V_WL+1}, 64, v{QP.V_WL}
    v_xor_b32 v{QP.V_WL+2}, 128, v{QP.V_WL}
    v_xor_b32 v{QP.V_WL+3}, 192, v{QP.V_WL}""")
    for k in range(4): e(f"v_add_u32 v{QP.V_WA+k}, {LDS_V}, v{QP.V_WL+k}")
    for it in flag_addr(T+9, C_XN, S_QB, 32): e.add(it)
    e("s_waitcnt lgkmcnt(0)\ns_barrier")
    if Ctx.fine == "s": stamp(e, 19)
    l0 = lab("nopoll")
    e(f"s_cmp_lg_u32 s{S_WAVE}, 0\ns_cbranch_scc1 {l0}\nbuffer_load_dword v{T+10}, v{T+9}, {WSR}, 0 offen sc1\n{l0}:")
    for n in range(3):
        for hj in range(2): e(f"ds_read_b64_tr_b16 v[{76+4*n+2*hj}:{76+4*n+2*hj+1}], v{A0+3} offset:{512*n+5120*hj}")
    for it in QP.w_reads(0) + QP.w_reads(1): e.add(it)
    e(f"""s_lshl_b32 s50, s{S_SLOT}, 8
    s_add_u32 s50, s50, {HT_OFF}
    s_cmp_lg_u32 s{S_PASS}, 0
    s_cselect_b32 s50, {WS_SZ}, s50
    s_add_u32 s51, s50, 0x100000
    s_add_u32 s52, s50, 0x200000
    s_cmp_ge_u32 s{S_WAVE}, 2
    s_cselect_b32 s52, {WS_SZ}, s52
    v_mov_b32 v88, v{A0+4}""")
    e(f"""v_mul_u32_u24 v{QP.V_OA}, 160, v{T+2}
    v_lshl_add_u32 v{QP.V_OA}, v{T+4}, 3, v{QP.V_OA}
    s_mul_i32 s54, s{S_WAVE}, 5120
    s_add_u32 s54, s54, {LDS_SP}
    v_add_u32 v{QP.V_OA}, s54, v{QP.V_OA}
    v_bfe_u32 v{T+4}, v{V_LANE}, 1, 1
    v_xor_b32 v{T+4}, v{T+3}, v{T+4}
    v_lshlrev_b32 v{T+4}, 4, v{T+4}
    v_lshl_add_u32 v{T+4}, v{T+2}, 8, v{T+4}
    v_and_b32 v{T+5}, 1, v{V_LANE}
    v_lshl_add_u32 v{T+4}, v{T+5}, 3, v{T+4}
    v_add_u32 v{V_VA}, {LDS_V}, v{T+4}""")
    for db in range(1, 8): e(f"v_xor_b32 v{V_VA+db}, {32*db}, v{V_VA}")
    e(f"""v_and_b32 v{T}, 15, v{V_LANE}
    v_lshrrev_b32 v{T+1}, 4, v{V_LANE}
    v_and_b32 v{T+2}, 7, v{V_LANE}
    v_lshlrev_b32 v{V_PFA}, 7, v{T+2}
    v_lshlrev_b32 v{T+2}, 1, v{T+2}
    v_xor_b32 v{T+2}, v{T+2}, v{T+1}
    v_lshlrev_b32 v{T+2}, 4, v{T+2}
    v_lshl_add_u32 v{V_KA}, v{T}, 8, v{T+2}
    v_xor_b32 v{V_KA+1}, 64, v{V_KA}
    v_xor_b32 v{V_KA+2}, 128, v{V_KA}
    v_xor_b32 v{V_KA+3}, 192, v{V_KA}
    v_lshlrev_b32 v{T+2}, 1, v{T+1}
    v_xor_b32 v{T+2}, v{T+2}, v{T}
    v_lshlrev_b32 v{T+2}, 4, v{T+2}
    v_lshl_add_u32 v{V_DM}, v{T+1}, 8, v{T+2}
    v_xor_b32 v{V_DM+1}, 128, v{V_DM}
    v_lshlrev_b32 v{QP.V_XO}, 4, v{V_LANE}
    v_mov_b32 v{T+6}, 0x3f803f80
    v_cmp_gt_u32 vcc, 2, v{T}
    v_mov_b32 v{T+7}, 0x44444444
    v_mov_b32 v{T+8}, 0xeeeeeeee
    v_cndmask_b32 v{V_ONE}, 0, v{T+6}, vcc
    v_cmp_eq_u32 vcc, 1, v{T+5}
    v_mov_b32 v{V_ONE+1}, v{V_ONE}
    v_mov_b32 v{V_ONE+2}, v{V_ONE}
    v_mov_b32 v{V_ONE+3}, v{V_ONE}
    v_cndmask_b32 v{V_IDX}, v{T+7}, v{T+8}, vcc""")
    for n in range(5):
        e(f"""v_add_u32 v{T}, {64*n}, v{V_LANE}
        v_mul_u32_u24 v{T+1}, 6554, v{T}
        v_lshrrev_b32 v{T+1}, 16, v{T+1}
        v_mul_u32_u24 v{T+2}, 10, v{T+1}
        v_sub_u32 v{T}, v{T}, v{T+2}
        v_mul_u32_u24 v{T+1}, 1280, v{T+1}
        v_lshl_add_u32 v{QP.V_OD+n}, v{T}, 4, v{T+1}""")
    if Ctx.fine == "s": stamp(e, 21)
    l0 = lab("nopoll")
    e(f"s_cmp_lg_u32 s{S_WAVE}, 0\ns_cbranch_scc1 {l0}\ns_waitcnt vmcnt(0)")
    spin(e, T+10, T+9, 1, have=True)
    e(f"{l0}:\ns_waitcnt lgkmcnt(0)\ns_barrier")
    stamp(e, 3)
    qproj(e)
    stamp(e, 4)
    e.wds("ALL")
    e(f"s_cmp_lg_u32 s{S_PASS}, 0\ns_cbranch_scc1 K_truemax")
    for qb in range(4):
        for ks in range(4):
            c = "0" if ks == 0 else vr(Sreg(0,qb), 4)
            e(f"{MF} {vr(Sreg(0,qb),4)}, {ar(Kreg(0,ks),4)}, {vr(Qreg(qb,ks),4)}, {c}")
    e("s_nop 7")
    for qb in range(4):
        s, m = Sreg(0,qb), V_M+4*qb
        e(f"v_max3_f32 v{m}, v{s}, v{s+1}, v{s+2}\nv_max_f32 v{m}, v{m}, v{s+3}")
    e("K_setm:")
    for qb in range(4):
        m = V_M+4*qb
        xlane(e, m, V_T, "v_max_f32")
        e(f"v_sub_f32 v{m}, 0, v{m}\nv_mov_b32 v{m+1}, v{m}\nv_mov_b32 v{m+2}, v{m}\nv_mov_b32 v{m+3}, v{m}")
    for k in range(16): e(f"v_mov_b32 v{V_L+k}, 0")
    e(f"""v_and_b32 v{V_HPA}, 7, v{V_LANE}
    v_min_u32 v{V_P1A}, 6, v{V_HPA}
    v_lshlrev_b32 v{V_P1A}, 7, v{V_P1A}
    v_lshrrev_b32 v{V_PHA}, 3, v{V_LANE}
    v_mul_u32_u24 v{V_PHA}, 3456, v{V_PHA}
    v_add_u32 v{V_P1A}, v{V_P1A}, v{V_PHA}
    v_lshlrev_b32 v{V_HPA}, 2, v{V_HPA}
    v_add_u32 v{V_HPA}, 128, v{V_HPA}
    v_min_u32 v{V_PHA}, 39, v{V_LANE}
    v_lshlrev_b32 v{V_PHA}, 7, v{V_PHA}
    s_lshr_b32 s48, s2, 3
    s_lshl_b32 s48, s48, 2
    s_add_u32 s48, s48, s{S_WAVE}
    s_mul_i32 s{S_P1}, s48, {16*3456}
    s_lshr_b32 s49, s{S_XCD}, 1
    s_mul_i32 s49, s49, 896
    s_add_u32 s{S_P1}, s{S_P1}, s49
    s_add_u32 s{S_P1}, s{S_P1}, {6*8*3456}
    s_mul_i32 s{S_PH}, s48, 10240
    s_and_b32 s49, s{S_XCD}, 1
    s_mul_i32 s49, s49, {20*65536}
    s_add_u32 s{S_PH}, s{S_PH}, s49
    s_add_u32 s{S_PH}, s{S_PH}, {HT_OFF+6*5120}""")
    e.wvm("K1"); e("s_barrier")
    attn_iter(e, -1, do_pv=False, wrap_in=False)
    attn_iter(e, 0, first_pv=True, pf=True, late=[(6, signal(C_H, S_QB, V_T))])
    stamp(e, 5)
    e(f"s_mov_b32 s{S_CNT}, 7")
    e.mark("loop0")
    for i in range(1, 5): attn_iter(e, i, pf=True)
    e.mark("loop1")
    for i in range(5, 9): attn_iter(e, i, pf=True)
    e.mark("loop2")
    e("K_tail:")
    stamp(e, 6)
    late29 = [(6, R(f"v_mov_b32 v{V_T+1}, v{V_HPA}")), (8, poll_ld(V_T, V_T+1, S_DBG))]
    late29 += [(11+4*(k//2), [it]) for k, it in enumerate(G1.setup1())]
    attn_iter(e, 9, dma=False, late=late29, extra=list(zip([67, 75, 83, 91, 99, 107, 111, 115], G1.wl(0))))
    spin(e, V_T, V_T+1, 8, have=True, cmp=f"v_cmp_gt_u32 vcc, 32, v{V_T}", srd=S_DBG)
    e(f"""s_cmp_eq_u32 s{S_G1}, 0
    s_cbranch_scc1 K_plain
    s_cmp_lg_u32 s{S_PASS}, 0
    s_cbranch_scc1 K_plain""")
    tail_gemm1(e)
    e("K_plain:")
    tail_plain(e)
    final(e)
    e("K_redo_u:")
    for it in gelu_items(G1.V_L16, 50): e.add(it)
    e("s_waitcnt lgkmcnt(0)\ns_barrier")
    for part in u_out(G1.V_L16, 50):
        for g in part:
            for it in g: e.add(it)
    e(f"""K_redo:
    s_mov_b32 s{S_PASS}, 1
    s_waitcnt vmcnt(0) lgkmcnt(0)
    s_barrier""")
    for it in signal(C_U, S_UG, V_T+8): e.add(it)
    QP.addr_dma(e, 40)
    QP.wq_tiles(e, 0, 8)
    e(f"v_mov_b32 v{179}, {LDS_SP}\nv_mov_b32 v{180}, 0\ns_waitcnt vmcnt(0)\ns_branch K_start")
    e(f"""K_truemax:
    s_waitcnt vmcnt(0)
    s_barrier
    s_mov_b32 s{S_KOFF}, s{S_W4K}
    s_mov_b32 s{S_CNT}, 32""")
    for qb in range(4): e(f"v_mov_b32 v{V_M+4*qb}, 0xff800000")
    e("K_mloop:")
    m0, d, inc = dma_kv("K", 0, "fb")
    e.add(m0); e("s_nop 0")
    for it in d: e.add(it)
    e.add(inc)
    e("s_waitcnt vmcnt(0)\ns_barrier")
    for it in k_reads(0, "fb"): e.add(it)
    e("s_waitcnt lgkmcnt(0)\ns_barrier")
    for n in range(64):
        kb, qb, ks = n//16, (n//4) % 4, n % 4
        c = "0" if ks == 0 else vr(Sreg(kb,qb), 4)
        e(f"{MF} {vr(Sreg(kb,qb),4)}, {ar(Kreg(kb,ks),4)}, {vr(Qreg(qb,ks),4)}, {c}")
    e("s_nop 7")
    for kb in range(4):
        for qb in range(4):
            s, m = Sreg(kb,qb), V_M+4*qb
            e(f"v_max3_f32 v{m}, v{m}, v{s}, v{s+1}\nv_max3_f32 v{m}, v{m}, v{s+2}, v{s+3}")
    e(f"s_sub_u32 s{S_CNT}, s{S_CNT}, 1\ns_cmp_lg_u32 s{S_CNT}, 0\ns_cbranch_scc1 K_mloop")
    e(f"s_mov_b32 s{S_KOFF}, s{S_W4K}")
    m0, d, inc = dma_kv("K", 0, "fb")
    e.add(m0); e("s_nop 0")
    for it in d: e.add(it)
    e(f"s_add_u32 s{S_KOFF}, s{S_KOFF}, 65536")
    e("s_waitcnt vmcnt(0)\ns_barrier")
    for it in k_reads(0, "fb"): e.add(it)
    e("s_waitcnt lgkmcnt(0)\ns_branch K_setm")
    e("K_exit:\ns_endpgm\nK_last:")
    lines = resolve(e.items)
    i0, i1, i2 = (lines.index(("mark", m)) for m in ("loop0", "loop1", "loop2"))
    b1, b2 = lines[i0+1:i1], lines[i1+1:i2]
    assert b1 == b2, [(x, y) for x, y in zip(b1, b2) if x != y][:5]
    loop = [".p2align 6", "K_loop:"] + b2 + [f"s_sub_u32 s{S_CNT}, s{S_CNT}, 1", f"s_cmp_lg_u32 s{S_CNT}, 0", "s_cbranch_scc1 K_loop"]
    lines = lines[:i0] + loop + lines[i2+1:]
    ref = open("recurrent_scan__mha_block_cached__mixer_token_mlp__prompt.s.ref").read().split("\n")
    head = [l for l in ref if l.startswith(";") and "@launch" not in l]
    out = head + [f"; @launch grid=(256,1,1) block=(256,1,1) lds={LDS_SZ}", '.amdgcn_target "amdgcn-amd-amdhsa--gfx950"', ".text"]
    out += lines + ['.section .rodata,"a"', kdesc(NAME, 512, 256, 102)]
    return "\n".join(out) + "\n"

if __name__ == "__main__":
    open("f_nt.s", "w").write(gen(False))
    Ctx.fine = sys.argv[1] if len(sys.argv) > 1 else None
    open("f_ts.s", "w").write(gen(True))
```

```python
from asmlib import *
import math, sys

XN_OFF, HT_OFF, U_OFF, WOF_OFF, OF_OFF = 0x0, 0x280000, 0x500000, 0x800000, 0x1000000
PART_OFF = 0x2000000
WS_SZ = 0x4000000
TS_OFF = 0x4000000
NAME = "recurrent_scan__mha_block_cached__mixer_token_mlp__prompt_kernel"
MF = "v_mfma_f32_16x16x32_bf16"
V_LANE, V_KA, V_VA, V_DM, V_IDX, V_T, V_ONE = 1, 2, 6, 14, 16, 17, 28
V_PFA, V_PFD = 24, 25
V_HPD, V_HPA, V_P1A, V_PHA = 20, 26, 27, 17
S_G1, S_P1, S_PH = 78, 79, 101
V_Q, V_S, V_P, V_M, V_L = 32, 96, 160, 224, 240
A_O, A_K, A_V = 0, 128, 192
S_K, S_V, S_WQ, S_WS, S_W1, S_B1, S_W2, S_WO, S_X, S_DBG, S_B2, S_OUT, S_CODE, S_TS = 4, 8, 12, 16, 20, 24, 28, 32, 36, 60, 64, 68, 72, 84
S_W4K, S_KOFF, S_VOFF, S_CNT, S_WAVE, S_PASS, S_OST, S_STATE, S_PF = 40, 41, 42, 43, 44, 45, 57, 58, 59
S_CPF = 3
S_QB, S_XCD, S_UG, S_SLOT, S_TAG = 80, 81, 82, 83, 88
LDS_K, LDS_V, LDS_SP, LDS_FLAG, LDS_SZ = 0, 65536, 131072, 98304, 163840
LAG = 10
NTQ = ""
SC = " sc1"

import os
OPT = dict(x.split('=') for x in os.environ.get('OPT', '').split(',') if x)
def opt(k, d): return type(d)(OPT.get(k, d))
class Ctx:
    ts = False
    touch = False
    fine = None
    uid = 0
def lab(p):
    Ctx.uid += 1
    return f"L{p}_{Ctx.uid}"
def R(t): return [("raw", x.strip()) for x in t.strip("\n").split("\n") if x.strip()]

def stamp(e, idx):
    if Ctx.ts:
        e(f"s_memtime s[84:85]\ns_memrealtime s[86:87]\ns_waitcnt lgkmcnt(0)\nv_writelane_b32 v0, s84, {idx}\nv_writelane_b32 v0, s86, {32+idx}")

FL_OFF = 0xE00000
C_XN, C_H, C_O, C_U, C_P = 0, 1, 2, 3, 4
def signal(kind, sg, t):
    l = lab("sig")
    if kind == C_H:
        st = f"v_mov_b32 v{t}, 1\nv_lshlrev_b32 v{t+1}, 4, v{t+1}\ns_mov_b64 exec, 1\nbuffer_atomic_add v{t}, v{t+1}, s[{S_DBG}:{S_DBG+3}], 0 offen offset:64 sc1"
    else:
        st = f"v_mov_b32 v{t}, s{S_TAG}\nv_lshlrev_b32 v{t+1}, 7, v{t+1}\nv_add_u32 v{t+1}, {FL_OFF+kind*32768}, v{t+1}\ns_mov_b64 exec, 1\nbuffer_store_dword v{t}, v{t+1}, s[{S_WS}:{S_WS+3}], 0 offen sc1"
    return R(f"""s_bitcmp1_b32 s{S_STATE}, {kind}
    s_cbranch_scc1 {l}
    s_bitset1_b32 s{S_STATE}, {kind}
    v_mov_b32 v{t+1}, s{sg}
    {st}
    s_mov_b64 exec, -1
    {l}:""")
def flag_addr(a, kind, sg, n):
    r = R(f"v_min_u32 v{a}, {n-1}, v{V_LANE}\nv_lshlrev_b32 v{a}, 7, v{a}")
    if sg is not None: r += R(f"s_lshl_b32 s56, s{sg}, 12\ns_add_u32 s56, s56, {FL_OFF+kind*32768}\nv_add_u32 v{a}, s56, v{a}")
    else: r += R(f"v_add_u32 v{a}, {FL_OFF+kind*32768}, v{a}")
    return r
def poll_ld(d, a, srd=None):
    srd = S_WS if srd is None else srd
    return [("vm", "poll", f"buffer_load_dword v{d}, v{a}, s[{srd}:{srd+3}], 0 offen sc1")]
def spin_items(*a, **k):
    t = Em(); spin(t, *a, **k); return t.items
def spin(e, d, a, sleep, have=False, cmp=None, srd=None):
    l0, l1 = lab("spin"), lab("spun")
    srd = S_WS if srd is None else srd
    cmp = cmp or f"v_cmp_ne_u32 vcc, s{S_TAG}, v{d}"
    if have: e(f"{cmp}\ns_cbranch_vccz {l1}")
    e(f"""s_mov_b32 s56, 0x40000
    {l0}:
    buffer_load_dword v{d}, v{a}, s[{srd}:{srd+3}], 0 offen sc1
    s_waitcnt vmcnt(0)
    {cmp}
    s_cbranch_vccz {l1}
    s_sleep {sleep}
    s_sub_u32 s56, s56, 1
    s_cmp_lg_u32 s56, 0
    s_cbranch_scc1 {l0}
    {l1}:""")

def Sreg(kb, qb): return V_S + 16*kb + 4*qb
def Preg(par, qb, t): return V_P + 32*par + 8*qb + 4*t
def Qreg(qb, ks): return V_Q + 16*qb + 4*ks
def Kreg(kb, ks): return A_K + 16*kb + 4*ks
def Vreg(db, t): return A_V + 8*db + 4*t
def Oreg(db, qb): return A_O + 16*db + 4*qb

def allreduce32(e, v, t):
    for k in (8, 4, 2, 1):
        e(f"s_nop 1\nv_add_f32_dpp v{v}, v{v}, v{v} row_ror:{k} row_mask:0xf bank_mask:0xf")
    e(f"v_mov_b32 v{t}, v{v}\ns_nop 1\nv_permlane16_swap_b32 v{t}, v{v}\ns_nop 1\nv_add_f32 v{v}, v{v}, v{t}")
def round_bf16(e, v): e(f"v_cvt_pk_bf16_f32 v{v}, v{v}, v{v}\nv_and_b32 v{v}, 0xffff0000, v{v}")
def unpack(e, src, dst, n, smask):
    for i in range(n): e(f"v_lshlrev_b32 v{dst+2*i}, 16, v{src+i}\nv_and_b32 v{dst+2*i+1}, s{smask}, v{src+i}")
def pk(op, d, a, b, bc=False):
    return f"v_pk_{op}_f32 {vr(d,2)}, {vr(a,2)}, {vr(b,2)}" + (" op_sel_hi:[1,0]" if bc else "")
def ln_finish(e, D, OUT, B, T=None):
    T = D if T is None else T
    for i in range(0, 20, 2): e(pk("mul", T+i, D+i, B, True))
    for i in range(10): e(f"v_cvt_pk_bf16_f32 v{OUT+i}, v{T+2*i}, v{T+2*i+1}")
def layernorm(e, X, D, OUT, A, smask, scale=None):
    B, T = A+2, A+4
    e(pk("add", A, X, X+2))
    for i in range(4, 20, 2): e(pk("add", A, A, X+i))
    e(f"v_add_f32 v{A}, v{A}, v{A+1}")
    allreduce32(e, A, T)
    e(f"v_mul_f32 v{A}, {fhex(-1.0/640)}, v{A}")
    for i in range(0, 20, 2): e(pk("add", D+i, X+i, A, True))
    e(pk("mul", B, D, D))
    for i in range(2, 20, 2): e(f"v_pk_fma_f32 {vr(B,2)}, {vr(D+i,2)}, {vr(D+i,2)}, {vr(B,2)}")
    e(f"v_add_f32 v{B}, v{B}, v{B+1}")
    allreduce32(e, B, T)
    e(f"v_mul_f32 v{B}, {fhex(1.0/640)}, v{B}")
    round_bf16(e, A); round_bf16(e, B)
    e(f"v_add_f32 v{B}, {fhex(1e-5)}, v{B}")
    round_bf16(e, B)
    e(f"v_sqrt_f32 v{B}, v{B}\ns_nop 0")
    round_bf16(e, B)
    e(f"v_rcp_f32 v{B}, v{B}")
    for i in range(0, 20, 2): e(pk("add", D+i, X+i, A, True))
    for i in range(10): e(f"v_cvt_pk_bf16_f32 v{OUT+i}, v{D+2*i}, v{D+2*i+1}")
    unpack(e, OUT, D, 10, smask)
    if scale is None: ln_finish(e, D, OUT, B)
    else:
        e(f"v_mul_f32 v{T}, {fhex(scale)}, v{B}")
        ln_finish(e, D, OUT, T, X)

def dma_kv(which, slot, tag):
    base = (LDS_K if which == "K" else LDS_V) + 16384*slot
    s, off = (S_K, S_KOFF) if which == "K" else (S_V, S_VOFF)
    m0 = ("raw", f"s_add_u32 m0, s{S_W4K}, {base}")
    d = [("vm", tag, f"buffer_load_dwordx4 v{V_DM+(n&1)}, s[{s}:{s+3}], s{off} offen offset:{1024*n}{opt('KVF', '').replace('_', ' ')} lds") for n in range(4)]
    inc = ("raw", f"s_add_u32 s{off}, s{off}, 16384")
    return m0, d, inc
def k_reads(slot, tag, kbase=A_K, va=V_KA):
    return [("ds", tag, f"ds_read_b128 {ar(Kreg(kb,ks)-A_K+kbase,4)}, v{va+ks} offset:{16384*slot+4096*kb}") for kb in range(4) for ks in range(4)]
def v_reads(slot, tag):
    return [("ds", (tag, db), f"ds_read_b64_tr_b16 {ar(Vreg(db,t)+2*hj,2)}, v{V_VA+db} offset:{16384*slot+4096*(2*t+hj)}")
            for db in range(8) for t in range(2) for hj in range(2)]

def attn_iter(e, i, do_qk=True, do_pv=True, first_pv=False, dma=True, wrap_in=True, extra=None, pf=False, endbar=True, late=None, sm_first=False, kbase=A_K):
    NG = 132
    mf = [None]*NG
    gaps = [[] for _ in range(NG)]
    par = i & 1
    if do_qk:
        for n in range(64):
            kb, qb, ks = n//16, (n//4) % 4, n % 4
            c = vr(V_M+4*qb, 4) if ks == 0 else vr(Sreg(kb,qb), 4)
            if opt('BZ', 1) and qb % 2: ks = 3-ks
            mf[n] = f"{MF} {vr(Sreg(kb,qb),4)}, {ar(Kreg(kb,ks)-A_K+kbase,4)}, {vr(Qreg(qb,ks),4)}, {c}"
    if do_pv:
        for m in range(64):
            db, qb, t = m//8, (m//2) % 4, m % 2
            c = "0" if (first_pv and t == 0) else None
            if opt('BZ', 1):
                if qb % 2: t = 1-t
                if db % 2: qb = 3-qb
            c = c or ar(Oreg(db,qb), 4)
            mf[64+m] = f"{MF} {ar(Oreg(db,qb),4)}, {ar(Vreg(db,t),4)}, {vr(Preg(par,qb,t),4)}, {c}"
        for qb in range(4):
            mf[128+qb] = f"v_smfmac_f32_16x16x64_bf16 {vr(V_L+4*qb,4)}, {vr(V_ONE,4)}, {vr(Preg(par,qb,0),8)}, v{V_IDX}"
        if sm_first: mf[64:132] = mf[128:132] + mf[64:128]
        for j, it in enumerate(v_reads(i % 4, ("V", i))): gaps[1+2*j].append(it)
        gaps[63].append(("wait", None, (("V", i), 5)))
        gaps[75].append(("wait", None, (("V", i), 7)))
    if do_qk and dma != "nok":
        kpos = [65,69,71,73,77,79,81,85,87,89,93,95,97,101,103,105]
        for p, it in zip(kpos, k_reads((i+2) % 4, ("K", i+2))): gaps[p].insert(0, it)
    if dma is True:
        m0, d, inc = dma_kv("K", (i+5) % 4, ("D", i))
        gaps[6].append(m0)
        for j in range(4): gaps[67+8*j].insert(0, d[j])
        gaps[91].append(inc)
        m0, d, inc = dma_kv("V", (i+3) % 4, ("D", i))
        gaps[95].append(m0)
        for j in range(4): gaps[99+8*j].insert(0, d[j])
        gaps[123].append(inc)
    if pf:
        k = i % 4
        def ld(va, sp, so, d=V_PFD, fl=""): return ("vm", ("D", i), f"buffer_load_dword v{d}, v{va}, s[{sp}:{sp+3}], {so} offen{fl}")
        if k == 0:
            gaps[111].insert(0, ld(V_PFA, S_W2, f"s{S_PF}"))
            gaps[119].insert(0, ld(V_PFA, S_X, f"s{S_PF}"))
            gaps[119].append(("raw", f"s_add_u32 s{S_PF}, s{S_PF}, 1024"))
        if k == 1:
            gaps[8].insert(0, ld(V_HPA, S_DBG, "0", V_HPD, " sc1"))
            gaps[111] += R(f"s_cmp_le_u32 s{S_CNT}, 2\ns_cselect_b32 s56, s{S_P1}, {0x1000000}")
            gaps[119].insert(0, ld(V_P1A, S_W1, "s56"))
            gaps[119].append(("raw", f"s_sub_u32 s{S_P1}, s{S_P1}, {8*3456}"))
        if k == 2:
            gaps[111] += R(f"s_cmp_eq_u32 s{S_CNT}, 2\ns_cselect_b32 s56, s{S_CPF}, {0x1000000}")
            gaps[119].insert(0, ld(V_PFA, S_CODE, "s56"))
        if k == 0 and i > 0:
            gaps[109].insert(0, ("raw", f"v_cmp_gt_u32 vcc, 32, v{V_HPD}"))
            gaps[113] = R(f"s_cmp_eq_u64 vcc, 0\ns_cselect_b32 s56, s{S_PH}, {WS_SZ}") + gaps[113]
            gaps[117] = R(f"s_cmp_le_u32 s{S_CNT}, 3\ns_cselect_b32 s56, s56, {WS_SZ}") + gaps[117]
            gaps[121] = R(f"s_cmp_ge_u32 s{S_CNT}, 2\ns_cselect_b32 s56, s56, {WS_SZ}") + gaps[121]
        if k == 0:
            if i == 0: gaps[121].insert(0, ("raw", f"s_mov_b32 s56, {WS_SZ}"))
            gaps[127].insert(0, ("vm", ("D", i+1), f"buffer_load_dword v{V_PFD}, v{V_PHA}, s[{S_WS}:{S_WS+3}], s56 offen"))
            gaps[127].append(("raw", f"s_sub_u32 s{S_PH}, s{S_PH}, 5120"))
    if extra:
        for pos, grp in extra: gaps[pos] = list(grp) + gaps[pos]
    if late:
        for pos, grp in late: gaps[pos] += list(grp)
    def expi(x): return ("raw", f"v_exp_f32 v{V_S+x}, v{V_S+x}")
    def cvti(c, p):
        x = 2*c; kb, qb, r = x//16, (x//4) % 4, x % 4
        return ("raw", f"v_cvt_pk_bf16_f32 v{Preg(p,qb,kb//2)+2*(kb%2)+r//2}, v{V_S+x}, v{V_S+x+1}")
    for x in range(64):
        n = 2*x + LAG
        if n < NG:
            if do_qk: gaps[n].append(expi(x))
        elif wrap_in: gaps[n-NG].append(expi(x))
    for c in range(32):
        n = 4*c + LAG + 3
        if n < NG:
            if do_qk: gaps[n].append(cvti(c, par ^ 1))
        elif wrap_in: gaps[n-NG].append(cvti(c, par))
    if do_qk and endbar:
        if endbar is True:
            vt = ("D", i-2) if dma is True else "poll"
            gaps[131].append(("wait", vt, "ALL"))
        gaps[131].append(("raw", "s_barrier"))
    for n in range(NG):
        if mf[n] is not None: e(mf[n])
        elif gaps[n]: e("s_nop 0")
        for it in gaps[n]: e.add(it)

def xlane(e, v, t, op):
    e(f"v_mov_b32 v{t}, v{v}\ns_nop 1\nv_permlane16_swap_b32 v{t}, v{v}\ns_nop 1\n{op} v{v}, v{v}, v{t}")
    e(f"v_mov_b32 v{t}, v{v}\ns_nop 1\nv_permlane32_swap_b32 v{t}, v{v}\ns_nop 1\n{op} v{v}, v{v}, v{t}")

K1B = A_O+64
class QP:
    V_WD, V_WA, V_XO = V_T, V_T+2, V_T+6
    V_WL, V_OD, V_OA, V_OF = V_Q, V_Q+4, V_Q+9, V_Q+12
    S_WOFF, S_XOFF, S_TMP, S_WOS, S_WOD = 46, 47, 48, 76, 77
    @staticmethod
    def slot(j): return (j+6) % 8
    @classmethod
    def addr_dma(c, e, T):
        e(f"""v_lshrrev_b32 v{T}, 4, v{V_LANE}
        v_and_b32 v{T+1}, 15, v{V_LANE}
        v_lshlrev_b32 v{T+2}, 1, v{T}
        v_xor_b32 v{T+1}, v{T+1}, v{T+2}
        v_lshlrev_b32 v{T+1}, 4, v{T+1}
        v_lshl_add_u32 v{c.V_WD}, v{T}, 13, v{T+1}
        v_xor_b32 v{c.V_WD+1}, 128, v{c.V_WD}
        s_lshl_b32 s{c.S_WOFF}, s{S_WAVE}, 17
        s_lshl_b32 s{S_W4K}, s{S_WAVE}, 12""")
    @classmethod
    def wq_dma(c, j):
        r = [R(f"s_add_u32 m0, s{S_W4K}, {16384*c.slot(j)}")]
        for n in range(4):
            r.append([("raw", f"s_add_u32 s{c.S_TMP}, s{c.S_WOFF}, {j*64*8192+n*32768-1024*n}"),
                      ("vm", ("W", j), f"buffer_load_dwordx4 v{c.V_WD+(n&1)}, s[{S_WQ}:{S_WQ+3}], s{c.S_TMP} offen offset:{1024*n} lds")])
        return r
    @classmethod
    def wq_tiles(c, e, t0, t1):
        for j in range(t0, t1):
            for g in c.wq_dma(j):
                for it in g: e.add(it)
    @staticmethod
    def Wreg(j, a, t): return (A_K if j % 2 == 0 else A_V) + 8*a + 4*t
    @classmethod
    def w_reads(c, j):
        sl = c.slot(j)
        va = c.V_WL if sl < 4 else c.V_WA
        return [("ds", ("Wr", j), f"ds_read_b64_tr_b16 {ar(c.Wreg(j,a,t)+2*hj,2)}, v{va+a//2} offset:{16384*(sl%4)+4096*(2*t+hj)+8*(a&1)}")
                for a in range(8) for t in range(2) for hj in range(2)]

def qproj(e, bulk):
    c = QP
    V_XO, S_XOFF, S_TMP = c.V_XO, c.S_XOFF, c.S_TMP
    ACC = V_S
    WSR = f"s[{S_WS}:{S_WS+3}]"
    def Xreg(j, qb, t): return A_O + 32*(j % 4) + 8*qb + 4*t
    def xn_ld(j):
        r = []
        for qb in range(4):
            r.append([("raw", f"s_add_u32 s{S_TMP+1}, s{S_XOFF}, {qb*20480+j*2048}"),
                      ("vm", ("X", j), f"buffer_load_dwordx4 {ar(Xreg(j,qb,0),4)}, v{V_XO}, {WSR}, s{S_TMP+1} offen{SC}")])
            r.append([("vm", ("X", j), f"buffer_load_dwordx4 {ar(Xreg(j,qb,1),4)}, v{V_XO}, {WSR}, s{S_TMP+1} offen offset:1024{SC}")])
        return r
    def kv(which, tile, tag):
        m0, d, inc = dma_kv(which, tile % 4, tag)
        return [[m0], [d[0]], [d[1]], [d[2]], [d[3], inc]]
    wo_dma = []
    for n in range(5):
        wo_dma += [R(f"s_mul_i32 s{S_TMP}, s{S_WAVE}, 5120\ns_add_u32 m0, s{S_TMP}, {LDS_SP+1024*n}"),
                   [("vm", "wo", f"buffer_load_dwordx4 v{c.V_OD+n}, s[{S_WO}:{S_WO+3}], s{c.S_WOS} offen lds")]]
    wo_rd = [[("ds", "wor", f"ds_read_b64_tr_b16 {vr(c.V_OF+4*f+2*hj,2)}, v{c.V_OA} offset:{32*f+2560*hj}")] for f in range(5) for hj in range(2)]
    wo_st = [[("vm", "wos", f"buffer_store_dwordx4 {vr(c.V_OF+4*f,4)}, v{V_XO}, {WSR}, s{c.S_WOD} offen{SC}"),
              ("raw", f"s_add_u32 s{c.S_WOD}, s{c.S_WOD}, 0x20000")] for f in range(5)]
    hs = [[("vm", "hs", f"buffer_store_dwordx4 v[{76+4*n}:{79+4*n}], v88, {WSR}, s{50+n} offen{SC}")] for n in range(3)]
    misc = [("raw", f"v_mov_b32 v{V_L+k}, 0") for k in range(16)]
    misc += R(f"""v_and_b32 v{V_HPA}, 7, v{V_LANE}
    v_min_u32 v{V_P1A}, 6, v{V_HPA}
    v_lshlrev_b32 v{V_P1A}, 7, v{V_P1A}
    v_lshrrev_b32 v{V_PHA}, 3, v{V_LANE}
    v_mul_u32_u24 v{V_PHA}, 3456, v{V_PHA}
    v_add_u32 v{V_P1A}, v{V_P1A}, v{V_PHA}
    v_lshlrev_b32 v{V_HPA}, 4, v{V_HPA}
    v_add_u32 v{V_HPA}, 64, v{V_HPA}
    v_min_u32 v{V_PHA}, 39, v{V_LANE}
    v_lshlrev_b32 v{V_PHA}, 7, v{V_PHA}
    s_lshr_b32 s53, s2, 3
    s_lshl_b32 s53, s53, 2
    s_add_u32 s53, s53, s{S_WAVE}
    s_mul_i32 s{S_P1}, s53, {16*3456}
    s_lshr_b32 s54, s{S_XCD}, 1
    s_mul_i32 s54, s54, 896
    s_add_u32 s{S_P1}, s{S_P1}, s54
    s_add_u32 s{S_P1}, s{S_P1}, {6*8*3456}
    s_mul_i32 s{S_PH}, s53, 10240
    s_and_b32 s54, s{S_XCD}, 1
    s_mul_i32 s54, s54, {20*65536}
    s_add_u32 s{S_PH}, s{S_PH}, s54
    s_add_u32 s{S_PH}, s{S_PH}, {HT_OFF+6*5120}""")
    for k, grp in enumerate(xn_ld(0)):
        for it in grp: e.add(("vm", ("X0", k//2), it[2]) if it[0] == "vm" else it)
    x1 = xn_ld(1)
    for k, it in enumerate(bulk):
        if k >= 30 and k % 8 == 6 and x1:
            for x in x1.pop(0): e.add(x)
        e.add(it)
    assert not x1
    def tmf(j, a, qb, t, flip=False):
        d = vr(ACC+16*a+4*qb, 4)
        cc = "0" if (j == 0 and t == 0) else d
        if flip and opt('BZ', 1): t = 1-t
        return f"{MF} {d}, {ar(c.Wreg(j,a,t),4)}, {ar(Xreg(j,qb,t),4)}, {cc}"
    for j in range(9):
        if j == 0: e.wvm(("X0", 0))
        else: e.wait(("X", j), "ALL")
        if j in ((1, 3, 7) if opt('START', 0) else (1, 4, 7)): e("s_barrier")
        if Ctx.fine == "q": stamp(e, 14+j)
        grps = []
        if opt('START', 0):
            if j == 1: grps += c.wq_dma(6) + c.wq_dma(7)
            if j == 2: grps += c.wq_dma(8)
            if j == 3: grps += c.wq_dma(9)
            if j == 4: grps += kv("K", 0, "K0")
            if j == 5: grps += kv("K", 1, "K1")
            if j+2 < 10: grps += xn_ld(j+2)
            if j == 0: grps += c.wq_dma(4) + c.wq_dma(5)
            if j == 2: grps += wo_dma
            if 3 <= j <= 5: grps += [hs[j-3]]
            if j == 5: grps += wo_rd
            if j == 6: grps += wo_st[:2]
            if j == 7: grps += wo_st[2:3] + kv("K", 2, ("D", -3))
            if j == 8: grps += wo_st[3:] + kv("V", 0, ("D", -3))
        else:
            if j == 1: grps += c.wq_dma(8)
            if j == 2: grps += c.wq_dma(9)
            if j == 4: grps += kv("K", 0, "K0")
            if j == 5: grps += kv("K", 1, "K1")
            if j+2 < 10: grps += xn_ld(j+2)
            if j == 0: grps += wo_dma
            if 1 <= j <= 3: grps += [hs[j-1]]
            if j == 3: grps += wo_rd
            if 4 <= j <= 7: grps += [wo_st[j-4]]
            if j == 6: grps += kv("K", 2, ("D", -3))
            if j == 8: grps += [wo_st[4]] + kv("V", 0, ("D", -3)) + kv("K", 3, ("D", -2))
        rd = c.w_reads(j+1)
        gaps = [[] for _ in range(64)]
        for k, it in enumerate(rd): gaps[(k*56)//len(rd)].append(it)
        free = [n for n in range(62) if not gaps[n]]
        busy = [n for n in range(62) if gaps[n]]
        for k, grp in enumerate(grps): gaps[free[(k*len(free))//max(len(grps),1)]] += grp
        if j in (4, 6):
            for k, it in enumerate(misc[:20] if j == 4 else misc[20:]): gaps[busy[k]].append(it)
        if j == 0:
            for qb in range(1, 4): gaps[16*qb-1].append(("wait", ("X0", qb), None))
        for m in range(64):
            a, qb, t = (m//8, (m//2) % 4, m % 2) if j else ((m//2) % 8, m//16, m % 2)
            if j and a % 2 and opt('BZ', 1): qb = 3-qb
            e(tmf(j, a, qb, t, (m//2) % 2 == 1))
            for it in gaps[m]: e.add(it)
    e.wait(("X", 9), "ALL"); e("s_barrier")
    stamp(e, 4)
    order = [("T",0),("T",1),("M",0),("T",2),("M",1),("T",3),("M",2),("S",0),("M",3),("S",1),("S",2),("S",3)]
    mf = []; start = {}
    for kind, qb in order:
        start[(kind, qb)] = len(mf)
        if kind == "T": mf += [tmf(9, a, qb, t, a % 2 == 1) for a in range(8) for t in range(2)]
        for kb in ([0] if kind == "M" else range(4) if kind == "S" else []):
            for ks in range(4):
                cc = vr(Sreg(kb,qb), 4) if ks else ("0" if kind == "M" else vr(V_M+4*qb, 4))
                mf.append(f"{MF} {vr(Sreg(kb,qb),4)}, {ar(Kreg(kb,ks),4)}, {vr(Qreg(qb,ks),4)}, {cc}")
    NG = len(mf)
    gaps = [[] for _ in range(NG+1)]
    for k, it in enumerate(k_reads(0, ("K", 0)) + k_reads(1, ("K", 1), kbase=K1B)): gaps[k].append(it)
    gaps[31].append(("wait", None, ("K", 0)))
    gaps[41] += [("wait", None, "ALL"), ("raw", "s_barrier")]
    if opt('START', 0):
        for k, g in enumerate(kv("K", 3, ("D", -2))): gaps[2*k] += g
    for k, g in enumerate(kv("V", 1, ("D", -2))): gaps[32+2*k] += g
    for k, g in enumerate(kv("K", 4, ("D", -1)) + kv("V", 2, ("D", -1))): gaps[43+4*k] += g
    for qb in range(4):
        for a in range(8):
            r = ACC+16*a+4*qb; q = Qreg(qb, a//2) + 2*(a & 1); g = start[("T", qb)]+2*a+1+8
            gaps[g].append(("raw", f"v_cvt_pk_bf16_f32 v{q}, v{r}, v{r+1}"))
            gaps[g+1].append(("raw", f"v_cvt_pk_bf16_f32 v{q+1}, v{r+2}, v{r+3}"))
        sx, m = Sreg(0,qb), V_M+4*qb; g = start[("M", qb)]+3+8
        for o, t in ((0, f"v_max3_f32 v{m}, v{sx}, v{sx+1}, v{sx+2}"), (1, f"v_max_f32 v{m}, v{m}, v{sx+3}"), (2, f"v_mov_b32 v{m+1}, v{m}"),
                     (4, f"v_permlane16_swap_b32 v{m+1}, v{m}"), (6, f"v_max_f32 v{m}, v{m}, v{m+1}"), (7, f"v_mov_b32 v{m+1}, v{m}"),
                     (9, f"v_permlane32_swap_b32 v{m+1}, v{m}"), (11, f"v_max_f32 v{m}, v{m}, v{m+1}"), (12, f"v_sub_f32 v{m}, 0, v{m}"),
                     (13, f"v_mov_b32 v{m+1}, v{m}"), (14, f"v_mov_b32 v{m+2}, v{m}"), (15, f"v_mov_b32 v{m+3}, v{m}")):
            gaps[g+o].append(("raw", t))
        assert g+15+2 < start[("S", qb)]
    ex = [(start[("S", qb)]+4*kb+3+8, 16*kb+4*qb+r) for qb in range(4) for kb in range(4) for r in range(4) if 16*kb+4*qb+r < 61]
    cv = []
    def cvt0(x):
        kb, qb, r = x//16, (x//4) % 4, x % 4
        return ("raw", f"v_cvt_pk_bf16_f32 v{Preg(0,qb,kb//2)+2*(kb%2)+r//2}, v{V_S+x}, v{V_S+x+1}")
    for g in range(NG):
        room = 2-len(gaps[g])
        if room == 2 and ex and ex[0][0] <= g and len(cv) < 2:
            x = ex.pop(0)[1]
            gaps[g].append(("raw", f"v_exp_f32 v{V_S+x}, v{V_S+x}"))
            if x % 2: cv.append((g+1, x-1))
        else:
            while room > 0 and cv and cv[0][0] <= g:
                gaps[g].append(cvt0(cv.pop(0)[1])); room -= 1
    assert len(ex) >= 9
    for _, x in ex:
        gaps[NG].append(("raw", f"v_exp_f32 v{V_S+x}, v{V_S+x}"))
        if x % 2: cv.append((0, x-1))
    gaps[NG] += [cvt0(x) for _, x in cv]
    for g in range(NG+1):
        if g < NG: e(mf[g])
        for it in gaps[g]: e.add(it)
    e.wvm(("D", -3)); e("s_barrier")

class G1:
    S_FB, S_DT, S_A, S_B, S_T, S_LB = 46, 47, 48, 49, 50, 53
    V_WD, V_WA, V_L16, V_B1 = 14, 2, 15, 18
    @staticmethod
    def acc(fb, db):
        k = 5*fb+db
        return V_S+4*k if k < 16 else V_M+4*(k-16)
    @staticmethod
    def H(p, db, t):
        s, k = p % 4, 2*db+t
        if s == 0: return ar(A_K+4*k, 4)
        if s == 1: return vr(V_Q+4*k, 4)
        if s == 2: return ar(A_K+40+4*k, 4) if k < 6 else vr(V_Q+40+4*(k-6), 4)
        return ar(A_V+4*k, 4)
    @staticmethod
    def W(p, fb, t): return V_P + 32*(p % 2) + 8*fb + 4*t
    V_WH = 6
    @staticmethod
    def reg(p): return LDS_SP if p == 0 else 32768*(p % 3)
    @classmethod
    def setup1(c):
        T = V_T+3
        return R(f"""s_and_b32 s{c.S_FB}, s{S_UG}, 31
        s_lshr_b32 s{c.S_DT}, s{S_UG}, 5
        s_lshl_b32 s{c.S_LB}, s{S_WAVE}, 13
        s_mul_i32 s{c.S_A}, s{S_WAVE}, {512*3456}
        s_lshl_b32 s{c.S_T+1}, s{c.S_FB}, 7
        s_add_u32 s{c.S_A}, s{c.S_A}, s{c.S_T+1}
        s_mul_i32 s{c.S_B}, s{c.S_DT}, {5*65536}
        s_lshl_b32 s{c.S_T+1}, s{S_WAVE}, 14
        s_add_u32 s{c.S_B}, s{c.S_B}, s{c.S_T+1}
        v_lshrrev_b32 v{T}, 3, v{V_LANE}
        v_and_b32 v{T+1}, 7, v{V_LANE}
        v_and_b32 v{T+2}, 6, v{T}
        v_xor_b32 v{T+1}, v{T+1}, v{T+2}
        v_mul_u32_u24 v{T}, 3456, v{T}
        v_lshl_add_u32 v{c.V_WD}, v{T+1}, 4, v{T}
        v_lshlrev_b32 v{c.V_L16}, 4, v{V_LANE}""")
    @classmethod
    def setup2(c):
        T = V_T+3
        L = f"""v_lshrrev_b32 v{T}, 2, v{V_LANE}
        v_and_b32 v{T+2}, 6, v{T}
        v_bfe_u32 v{T+1}, v{V_LANE}, 1, 1
        v_xor_b32 v{T+1}, v{T+1}, v{T+2}
        v_lshlrev_b32 v{T+1}, 4, v{T+1}
        v_lshl_add_u32 v{T+1}, v{T}, 7, v{T+1}
        v_and_b32 v{T+2}, 1, v{V_LANE}
        v_lshl_add_u32 v{T+1}, v{T+2}, 3, v{T+1}
        v_add_u32 v{T+1}, s{c.S_LB}, v{T+1}"""
        for fb in range(4):
            L += f"""
            s_add_u32 s{c.S_T}, s{S_WAVE}, {fb}
            s_and_b32 s{c.S_T}, s{c.S_T}, 3
            s_lshl_b32 s{c.S_T}, s{c.S_T}, 5
            v_xor_b32 v{c.V_WA+fb}, s{c.S_T}, v{T+1}"""
        L += f"""
        v_lshrrev_b32 v{T}, 4, v{V_LANE}
        v_lshlrev_b32 v{T}, 3, v{T}
        s_lshl_b32 s{c.S_T}, s{c.S_FB}, 2
        s_add_u32 s{c.S_T}, s{c.S_T}, s{S_WAVE}
        s_lshl_b32 s{c.S_T}, s{c.S_T}, 5"""
        r = R(L)
        r.append(("vm", "b1", f"buffer_load_dwordx2 v[{c.V_B1}:{c.V_B1+1}], v{T}, s[{S_B1}:{S_B1+3}], s{c.S_T} offen"))
        return r
    @classmethod
    def sethi(c, off): return [("raw", f"v_add_u32 v{c.V_WH+fb}, {off}, v{c.V_WA+fb}") for fb in range(4)]
    @classmethod
    def wl(c, p):
        r = []
        for n in range(8):
            g = R(f"s_add_u32 m0, s{c.S_LB}, {c.reg(p)+1024*n}") if n % 4 == 0 else []
            g += [("raw", f"s_add_u32 s{c.S_T+1}, s{c.S_A}, {(64*p+8*n)*3456-1024*(n%4)}"),
                  ("vm", ("w", p), f"buffer_load_dwordx4 v{c.V_WD}, s[{S_W1}:{S_W1+3}], s{c.S_T+1} offen offset:{1024*(n%4)} lds")]
            r.append(g)
        return r
    @classmethod
    def hl(c, p):
        r = []
        for db in range(5):
            r.append([("raw", f"s_add_u32 s{c.S_T+2}, s{c.S_B}, {HT_OFF+db*65536+p*2048}"),
                      ("vm", ("h", p), f"buffer_load_dwordx4 {c.H(p,db,0)}, v{c.V_L16}, s[{S_WS}:{S_WS+3}], s{c.S_T+2} offen{SC}")])
            r.append([("vm", ("h", p), f"buffer_load_dwordx4 {c.H(p,db,1)}, v{c.V_L16}, s[{S_WS}:{S_WS+3}], s{c.S_T+2} offen offset:1024{SC}")])
        return r
    @classmethod
    def reads(c, p):
        va, o = (c.V_WA, c.reg(p)) if c.reg(p) < 65536 else (c.V_WH, 0)
        return [("ds", ("r", p), f"ds_read_b64_tr_b16 {vr(c.W(p,fb,t)+2*hj,2)}, v{va+fb} offset:{o+2048*(2*t+hj)}")
                for fb in range(4) for t in range(2) for hj in range(2)]

def o_frag_items(k, tmp, pkr, va):
    qb, t = k//4, k % 4
    r = [("raw", f"v_accvgpr_read_b32 v{tmp+j}, a{Oreg(2*t+j//4,qb)+j%4}") for j in range(8)]
    r += [("raw", f"v_mul_f32 v{tmp+j}, v{tmp+j}, v{V_L+4*qb}") for j in range(8)]
    r += [("raw", f"v_cvt_pk_bf16_f32 v{pkr+j}, v{tmp+2*j}, v{tmp+2*j+1}") for j in range(4)]
    r.append(("vm", "o", f"buffer_store_dwordx4 {vr(pkr,4)}, v{va}, s[{S_WS}:{S_WS+3}], s{S_OST} offen offset:{1024*t}{SC}"))
    if t == 3: r.append(("raw", f"s_add_u32 s{S_OST}, s{S_OST}, 0x20000"))
    return r

def rowsum_items():
    ch = []
    for qb in range(4):
        l = V_L+4*qb
        ch.append([f"v_add_f32 v{l}, v{l}, v{l+1}", f"v_mov_b32 v{l+1}, v{l}", f"v_permlane16_swap_b32 v{l+1}, v{l}", f"v_add_f32 v{l}, v{l}, v{l+1}",
                   f"v_mov_b32 v{l+1}, v{l}", f"v_permlane32_swap_b32 v{l+1}, v{l}", f"v_add_f32 v{l}, v{l}, v{l+1}"])
    r = [("raw", ch[qb][k]) for k in range(7) for qb in range(4)]
    L = V_L
    r += R(f"""s_mov_b32 s56, {fhex(2.0**40)}
    v_cmp_nge_f32 s[54:55], s56, v{L}
    v_cmp_nge_f32 vcc, s56, v{L+4}
    s_or_b64 s[54:55], s[54:55], vcc
    v_cmp_nge_f32 vcc, s56, v{L+8}
    s_or_b64 s[54:55], s[54:55], vcc
    v_cmp_nge_f32 vcc, s56, v{L+12}
    s_or_b64 s[54:55], s[54:55], vcc
    v_rcp_f32 v{L}, v{L}
    s_or_b32 s54, s54, s55
    v_rcp_f32 v{L+4}, v{L+4}
    s_lshl_b32 s55, s{S_WAVE}, 2
    v_rcp_f32 v{L+8}, v{L+8}
    s_add_u32 s55, s55, {LDS_FLAG}
    v_rcp_f32 v{L+12}, v{L+12}
    v_mov_b32 v{L+1}, s55
    v_mov_b32 v{L+2}, s54""")
    r.append(("ds", "flw", f"ds_write_b32 v{L+1}, v{L+2}"))
    return r
def flag_read(t):
    return R(f"v_mov_b32 v{t}, {LDS_FLAG}") + [("ds", "fl", f"ds_read_b128 {vr(t+1,4)}, v{t}")]
def flag_eval(t):
    return [("wait", None, "fl")] + R(f"v_or3_b32 v{t+1}, v{t+1}, v{t+2}, v{t+3}\nv_or_b32 v{t+1}, v{t+1}, v{t+4}\ns_nop 0\nv_readfirstlane_b32 s{S_REDO}, v{t+1}\ns_nop 3")

S_REDO, S_LATE = 55, 54
def tail_gemm1(e):
    c = G1
    w = c.wl(1)+c.wl(2)
    late30 = list(zip(range(3, 64, 4), w))
    h = c.hl(0)+c.hl(1)+c.hl(2)
    ex30 = list(zip(range(67, 131, 4), h[:16]))
    su = c.setup2()
    late30 += [(65+4*(k//2), [it]) for k, it in enumerate(su)]
    attn_iter(e, 10, dma="nok", extra=ex30, endbar="bar", late=late30)
    ex31 = [(65+4*k, g) for k, g in enumerate(h[16:])]
    late31 = [(64+k, [it]) for k, it in enumerate(c.sethi(LDS_SP))] + [(70, [("wait", ("w", 0), None)])] + [(71+4*k if k < 15 else 129, [it]) for k, it in enumerate(c.reads(0))]
    late31 += [(76+k, [it]) for k, it in enumerate(rowsum_items())]
    B = c.V_B1
    late31 += [(122, [("wait", "b1", None)])] + [(124+k, [it]) for k, it in enumerate(R(f"v_lshlrev_b32 v10, 16, v{B}\nv_and_b32 v11, 0xffff0000, v{B}\nv_lshlrev_b32 v12, 16, v{B+1}\nv_and_b32 v13, 0xffff0000, v{B+1}"))]
    attn_iter(e, 11, do_qk=False, dma=False, extra=ex31, late=late31, sm_first=True)
    stamp(e, 7)
    TMP, PK = V_T+3, V_ONE
    NO = [9, 7, 0, 0, 0, 0, 0, 0]
    ko = 0
    PSIG = 3
    fsu = FS.setup(c.S_T, 56, 76)
    for p in range(8):
        if p == 6:
            e.wvm("poll")
            e(f"v_cmp_ne_u32 vcc, s{S_TAG}, v{FS.V_FD}\ns_nop 1\ns_cmp_lg_u64 vcc, 0\ns_cselect_b32 s{S_LATE}, {WS_SZ}, 0\nv_add_u32 v{FS.V_SD}, s{S_LATE}, v{FS.V_SD}")
        if p < 7: e.wvm(("w", p+1))
        e.wvm(("h", p))
        if p == PSIG: e.wvm("o")
        e.wds("ALL" if p == 0 else ("r", p))
        if Ctx.fine == "g": stamp(e, 14+p)
        gaps = [[] for _ in range(40)]
        if p == PSIG: gaps[0] += R("s_barrier") + flag_read(23)
        if p == 6: gaps[0] += R("s_barrier")
        if p < 7:
            for k, it in enumerate(c.reads(p+1)): gaps[2*k].append(it)
        if p == 5: gaps[0] += poll_ld(FS.V_FD, FS.V_FA)
        if 1 <= p <= 5:
            for k, grp in enumerate(c.wl(p+2)+c.hl(p+2)): gaps[2*k+1] += grp
        oi = c.sethi(65536) if p == 0 else []
        for _ in range(NO[p]):
            oi += o_frag_items(ko, TMP, PK, c.V_L16); ko += 1
        g0 = 4 if p == 0 else 0
        for k, it in enumerate(oi): gaps[g0+(k*(40-g0))//len(oi)].append(it)
        if p == PSIG:
            l0 = lab("nosig")
            gaps[6] += flag_eval(23) + R(f"s_cmp_lg_u32 s{S_REDO}, 0\ns_cbranch_scc1 {l0}") + signal(C_O, S_SLOT, TMP) + R(f"{l0}:")
        if p in (2, 4):
            part = fsu[0] if p == 2 else fsu[1]
            for k, g in enumerate(part): gaps[(k*40)//len(part)] += g
        if p == 6:
            for k, g in enumerate(FS.direct0()): gaps[2*k+1] += g
        if p == 7:
            for k, g in enumerate(FS.dma(1) + FS.dma(2)):
                if g[0][0] == "raw":
                    gaps[2*k+1].append(g[0]); g = g[2:]
                gaps[2*k+2] += g
        if p == 6:
            pre = R(f"v_add_u32 v10, s{c.S_LB}, v{c.V_L16}")
            for fb in range(1, 4):
                pre += R(f"s_add_u32 s{c.S_T}, s{S_WAVE}, {4-fb}\ns_and_b32 s{c.S_T}, s{c.S_T}, 3\ns_lshl_b32 s{c.S_T}, s{c.S_T}, 13\nv_add_u32 v{10+fb}, s{c.S_T}, v{c.V_L16}")
            U = FS.S_US; t = c.S_T
            pre += R(f"""s_mul_i32 s{U}, s{c.S_DT}, {5*54*1024}
            s_lshl_b32 s{t}, s{c.S_FB}, 11
            s_add_u32 s{U}, s{U}, s{t}
            s_add_u32 s{U}, s{U}, {U_OFF}""")
            for k, it in enumerate(pre): gaps[2+(k*38)//len(pre)].append(it)
        for m in range(40):
            fb, db, t = m//10, (m//2) % 5, m % 2
            if p == 7: fb = 3-fb
            elif fb % 2 and opt('BZ', 1): db = 4-db
            d = vr(c.acc(fb,db), 4)
            cc = ("v[10:13]" if fb == 0 else "0") if (p == 0 and t == 0) else d
            if (m//2) % 2 and opt('BZ', 1): t = 1-t
            e(f"{MF} {d}, {vr(c.W(p,fb,t),4)}, {c.H(p,db,t)}, {cc}")
            if p == 7 and m >= 11 and m % 2 == 1:
                k = (m-11)//2; fb2, db2 = 3-k//5, k % 5
                kk = 5*(fb2-1)+db2
                e.ds("gw", f"ds_write_b128 v10, {vr(c.acc(fb2,db2),4)} offset:{32768*(kk//8)+1024*(kk%8)}")
            for it in gaps[m]: e.add(it)
    stamp(e, 8)
    e(f"s_cmp_lg_u32 s{S_REDO}, 0\ns_cbranch_scc1 K_redo_u\ns_cmp_lg_u32 s{S_LATE}, 0\ns_cbranch_scc1 K_late")

LDS_OWN = 4*36864
def g1_red_reads():
    return [("ds", "gr", f"ds_read_b128 {vr(V_S+20+4*kk,4)}, v{11+kk//5} offset:{32768*(kk//8)+1024*(kk%8)}") for kk in range(15)]
def gelu_items(va, st):
    X = V_S; Z = X+20; K0, K1, A = Z+30, Z+31, Z+32
    r = [("raw", f"v_add_f32 v{X+k}, v{X+k}, v{X+20*j+k}") for j in range(1, 4) for k in range(20)]
    r += R(f"""v_mov_b32 v{K0}, {fhex(-2*math.log2(math.e)*math.sqrt(2/math.pi))}
    v_mov_b32 v{K1}, {fhex(-2*math.log2(math.e)*math.sqrt(2/math.pi)*0.044715)}
    s_lshr_b32 s{st}, s{S_WAVE}, 1
    s_lshl_b32 s{st}, s{st}, 10
    v_add_u32 v{A}, s{st}, v{va}
    s_and_b32 s{st}, s{S_WAVE}, 1
    s_lshl_b32 s{st}, s{st}, 3
    s_add_u32 s{st}, s{st}, {LDS_OWN}
    v_add_u32 v{A}, s{st}, v{A}""")
    st1 = lambda k: [f"v_mul_f32 v{Z+k}, v{X+k}, v{X+k}", f"v_fma_f32 v{Z+k}, v{Z+k}, v{K1}, v{K0}", f"v_mul_f32 v{Z+k}, v{Z+k}, v{X+k}"]
    for k in range(-1, 24):
        L = []
        if 0 <= k+1 < 20: L += st1(k+1)
        if 0 <= k < 20: L.append(f"v_exp_f32 v{Z+k}, v{Z+k}")
        if 0 <= k-3 < 20: L.append(f"v_mul_f32 v{X+k-3}, v{X+k-3}, v{Z+k-3}")
        if 0 <= k-1 < 20: L.append(f"v_add_f32 v{Z+k-1}, 1.0, v{Z+k-1}")
        if 0 <= k-4 < 20 and (k-4) % 2: L.append(f"v_cvt_pk_bf16_f32 v{Z+20+(k-4)//2}, v{X+k-5}, v{X+k-4}")
        if 0 <= k-2 < 20: L.append(f"v_rcp_f32 v{Z+k-2}, v{Z+k-2}")
        if k >= 19: L.append("s_nop 0")
        r += [("raw", t) for t in L]
    r += [("ds", "uw", f"ds_write_b64 v{A}, {vr(Z+20+2*db,2)} offset:{2048*db}") for db in range(5)]
    return r
def u_out(va, st):
    X = V_S; A = X+52
    rd = R(f"s_lshl_b32 s{st}, s{S_WAVE}, 10\ns_add_u32 s{st}, s{st}, {LDS_OWN}\nv_add_u32 v{A}, s{st}, v{va}")
    rd = [rd] + [[("ds", "ur", f"ds_read_b128 {vr(X+4*n,4)}, v{A} offset:{4096*n}")] for n in range(3)]
    U = FS.S_US
    sto = [R(f"s_lshr_b32 s{st}, s{S_WAVE}, 1\ns_mul_i32 s{st}, s{st}, {54*1024}\ns_add_u32 s{U}, s{U}, s{st}"),
           R(f"s_and_b32 s{st}, s{S_WAVE}, 1\ns_lshl_b32 s{st}, s{st}, 10\ns_add_u32 s{U}, s{U}, s{st}"), [("wait", None, "ur")]]
    for n in range(3):
        g = [("vm", "us", f"buffer_store_dwordx4 {vr(X+4*n,4)}, v{va}, s[{S_WS}:{S_WS+3}], s{U} offen{SC}")]
        if n == 0: g += R(f"s_add_u32 s{U}, s{U}, {2*54*1024}")
        if n == 1: g += R(f"s_add_u32 s{U}, s{U}, {2*54*1024}\ns_cmp_ge_u32 s{S_WAVE}, 2\ns_cselect_b32 s{U}, {WS_SZ}, s{U}")
        sto.append(g)
    return rd, sto

def tail_plain(e):
    attn_iter(e, 10, dma="nok", endbar="bar")
    attn_iter(e, 11, do_qk=False, dma=False, late=[(76+k, [it]) for k, it in enumerate(rowsum_items())], sm_first=True)
    stamp(e, 7)
    e(f"v_lshlrev_b32 v{V_T}, 4, v{V_LANE}\ns_nop 7")
    for k in range(16):
        for it in o_frag_items(k, V_P+8*(k % 4), V_P+32+4*(k % 8), V_T): e.add(it)
    for part in FS.setup(50, 51, 52):
        for g in part:
            for it in g: e.add(it)
    e("s_waitcnt vmcnt(0) lgkmcnt(0)\ns_barrier")
    for it in flag_read(19) + flag_eval(19): e.add(it)
    e(f"""s_cmp_lg_u32 s{S_PASS}, 0
    s_cbranch_scc1 K_plain_done
    s_cmp_lg_u32 s{S_REDO}, 0
    s_cbranch_scc1 K_redo
    K_plain_done:
    s_barrier""")
    for it in signal(C_O, S_SLOT, V_T+1): e.add(it)
    e(f"s_mov_b32 s{FS.S_US}, {WS_SZ}")
    stamp(e, 8)

class FS:
    S_SO, S_M0, S_G, S_KQ = 89, 98, 99, 100
    V_SR, S_DO, S_DW = 240, 59, 77
    V_SD, V_FA, V_FD = 244, 245, 246
    STG = 36864
    S_US = 79
    S_RB, S_CT, S_XA = 41, 42, 43
    XR, V_B2, V_XO = 240, 250, 251
    @staticmethod
    def slot(s): return 3 - (s-1) % 4
    @staticmethod
    def SA(s, db, t): return ar(72*(s % 2)+8*db+4*t, 4)
    @staticmethod
    def SB(s, sb, t): return ar(72*(s % 2)+40+8*sb+4*t, 4)
    @classmethod
    def setup(c, t0, t1, t2):
        L = f"""s_lshr_b32 s{c.S_KQ}, s{S_XCD}, 1
        s_and_b32 s{t0}, s{S_XCD}, 1
        s_lshl_b32 s{t0}, s{t0}, 5
        s_lshr_b32 s{t1}, s2, 3
        s_add_u32 s{t0}, s{t0}, s{t1}
        s_lshl_b32 s{c.S_G}, s{t0}, 2
        s_add_u32 s{c.S_G}, s{c.S_G}, s{c.S_KQ}
        s_lshr_b32 s{t1}, s{t0}, 3
        s_lshl_b32 s{t1}, s{t1}, 5
        s_lshl_b32 s{t2}, s{c.S_KQ}, 1
        s_add_u32 s{t1}, s{t1}, s{t2}
        s_lshl_b32 s{t1}, s{t1}, 7
        s_add_u32 s{t1}, s{t1}, {FL_OFF+C_O*32768}
        v_bfe_u32 v{c.V_FA}, v{V_LANE}, 1, 2
        v_and_b32 v{c.V_SD}, 1, v{V_LANE}
        v_lshl_add_u32 v{c.V_FA}, v{c.V_FA}, 3, v{c.V_SD}
        v_lshlrev_b32 v{c.V_FA}, 7, v{c.V_FA}
        v_add_u32 v{c.V_FA}, s{t1}, v{c.V_FA}
        v_lshlrev_b32 v{c.V_SD}, 4, v{V_LANE}
        s_lshr_b32 s{c.S_RB}, s{t0}, 2
        s_lshl_b32 s{c.S_RB}, s{c.S_RB}, 1
        s_lshr_b32 s{t2}, s{c.S_KQ}, 1
        s_add_u32 s{c.S_RB}, s{c.S_RB}, s{t2}
        s_and_b32 s{c.S_CT}, s{t0}, 3
        s_lshl_b32 s{c.S_CT}, s{c.S_CT}, 1
        s_and_b32 s{t2}, s{c.S_KQ}, 1
        s_add_u32 s{c.S_CT}, s{c.S_CT}, s{t2}
        v_and_b32 v{c.V_B2}, 15, v{V_LANE}
        v_lshrrev_b32 v252, 4, v{V_LANE}
        v_mul_u32_u24 v{c.V_XO}, 1280, v{c.V_B2}
        v_lshl_add_u32 v{c.V_XO}, v252, 3, v{c.V_XO}
        s_lshl_b32 s{c.S_XA}, s{c.S_RB}, 2
        s_add_u32 s{c.S_XA}, s{c.S_XA}, s{S_WAVE}
        s_lshl_b32 s{t2}, s{c.S_XA}, 4
        v_add_lshl_u32 v252, v{c.V_B2}, s{t2}, 1
        s_mul_i32 s{c.S_XA}, s{c.S_XA}, {16*1280}
        s_mul_i32 s{t2}, s{c.S_CT}, 160
        s_add_u32 s{c.S_XA}, s{c.S_XA}, s{t2}
        s_lshl_b32 s{t2}, s{c.S_KQ}, 15
        s_and_b32 s{t1}, s{t0}, 3
        s_mul_i32 s{t1}, s{t1}, {10*0x20000}
        s_add_u32 s{t1}, s{t1}, s{t2}
        s_add_u32 s{t1}, s{t1}, {WOF_OFF-8*0x20000}
        s_lshr_b32 s{t0}, s{t0}, 2
        s_lshl_b32 s{t0}, s{t0}, 20
        s_add_u32 s{t0}, s{t0}, s{t2}
        s_add_u32 s{t0}, s{t0}, {OF_OFF}
        s_mul_i32 s{c.S_M0}, s{S_WAVE}, 9"""
        p0 = [[it] for it in R(L)]
        p1 = []
        for n in range(9):
            so = c.S_SO+n
            p1 += [R(f"s_add_u32 s{t2}, s{c.S_M0}, {n}"), R(f"s_cmp_lt_u32 s{t2}, 16\ns_cselect_b32 s{so}, s{t0}, s{t1}"),
                   R(f"s_and_b32 s101, s{t2}, 1\ns_lshl_b32 s101, s101, 10"), R(f"s_add_u32 s{so}, s{so}, s101\ns_sub_u32 s{so}, s{so}, {1024*(n%4)}"),
                   R(f"s_lshr_b32 s{t2}, s{t2}, 1\ns_lshl_b32 s{t2}, s{t2}, 17\ns_add_u32 s{so}, s{so}, s{t2}")]
        p1.append(R(f"s_lshl_b32 s{c.S_M0}, s{c.S_M0}, 10"))
        p1 += [[it] for it in R(f"""s_lshr_b32 s{t2}, s{S_WAVE}, 1
        s_lshl_b32 s101, s{t2}, 19
        s_add_u32 s{c.S_DO}, s{t0}, s101
        s_lshl_b32 s{t2}, s{t2}, 13
        v_add_u32 v{c.V_SR}, s{t2}, v{c.V_SD}
        s_and_b32 s{t2}, s{S_WAVE}, 1
        s_mul_i32 s{t2}, s{t2}, 5
        s_add_u32 s{t2}, s{t2}, 8
        s_lshl_b32 s101, s{t2}, 17
        s_add_u32 s{c.S_DW}, s{t1}, s101
        s_lshl_b32 s{t2}, s{t2}, 11
        v_add_u32 v{c.V_SR+1}, s{t2}, v{c.V_SD}
        v_add_u32 v{c.V_SR+2}, {2*c.STG}, v{c.V_SR}
        v_add_u32 v{c.V_SR+3}, {2*c.STG}, v{c.V_SR+1}""")]
        return p0, p1
    @classmethod
    def direct0(c, tag=None):
        r = []
        for k in (0, 4, 5, 6, 7, 8, 1, 2, 3):
            base, d = (c.S_DO, lambda t: c.SB(0, k, t)) if k < 4 else (c.S_DW, lambda t: c.SA(0, k-4, t))
            for t in range(2):
                g = R(f"s_add_u32 s101, s{base}, {0x20000*(k if k < 4 else k-4)}") if t == 0 else []
                x = f"buffer_load_dwordx4 {d(t)}, v{c.V_SD}, s[{S_WS}:{S_WS+3}], s101 offen offset:{1024*t}{SC}"
                r.append(g + [("vm", ("sd", 0), x) if tag is None else ("raw", x)])
        r[-1] += R(f"v_add_u32 v{c.V_SD}, 2048, v{c.V_SD}")
        return r
    @classmethod
    def xloads(c):
        r = [("vm", "e", f"buffer_load_ushort v{c.V_B2}, v252, s[{S_B2}:{S_B2+3}], 0 offen")]
        return r + [("vm", "e", f"buffer_load_dwordx2 {vr(c.XR+2*db,2)}, v{c.V_XO}, s[{S_X}:{S_X+3}], s{c.S_XA} offen offset:{32*db}") for db in range(5)]
    @classmethod
    def dma(c, s, tag=None):
        r = []
        for n in range(9):
            g = R(f"s_add_u32 m0, s{c.S_M0}, {c.STG*c.slot(s)+1024*n}\ns_nop 0") if n % 4 == 0 else []
            t = f"buffer_load_dwordx4 v{c.V_SD}, s[{S_WS}:{S_WS+3}], s{c.S_SO+n} offen offset:{1024*(n%4)}{SC} lds"
            g.append(("vm", ("sd", s), t) if tag is None else ("raw", t))
            if n == 8: g += R(f"v_add_u32 v{c.V_SD}, 2048, v{c.V_SD}")
            r.append(g)
        return r

def final(e):
    c = FS
    S_RB, S_CT, S_A, S_L0, S_B, S_T = c.S_RB, c.S_CT, c.S_XA, 40, 76, 46
    S_YA, S_YB, S_PO, S_PI = 52, 53, 54, 55
    V_L16, V_WD, V_WA, V_WH, V_L8, V_SR, VT = G1.V_L16, 3, 4, 8, 12, c.V_SR, 216
    V_XO, V_B2, XR = c.V_XO, c.V_B2, c.XR
    V_PA, V_PD = 221, 222
    ACS, ACY = 16, 96
    WSR = f"s[{S_WS}:{S_WS+3}]"
    e("K_final:")
    stamp(e, 9)
    SA, SB = c.SA, c.SB
    def sreads(s):
        sl = c.slot(s); hi = 2*(sl//2); o = c.STG*(sl % 2)
        r = []
        for k in range(5):
            for t in range(2):
                if k < 4: r.append(("ds", ("sr", s), f"ds_read_b128 {SB(s,k,t)}, v{V_SR+hi} offset:{o+2048*k+1024*t}"))
                r.append(("ds", ("sr", s), f"ds_read_b128 {SA(s,k,t)}, v{V_SR+1+hi} offset:{o+2048*k+1024*t}"))
        return r
    YB = [c.STG*c.slot(12+y) for y in range(3)]
    YLO = YB[2]
    PSZ = 10240
    ysetup = R(f"""v_lshrrev_b32 v{VT}, 3, v{V_LANE}
    v_and_b32 v{VT+1}, 7, v{V_LANE}
    v_and_b32 v{V_WD}, 6, v{VT}
    v_xor_b32 v{VT+1}, v{VT+1}, v{V_WD}
    v_lshlrev_b32 v{VT}, 12, v{VT}
    v_lshl_add_u32 v{V_WD}, v{VT+1}, 4, v{VT}
    v_lshrrev_b32 v{VT}, 2, v{V_LANE}
    v_and_b32 v{V_WH}, 6, v{VT}
    v_bfe_u32 v{VT+1}, v{V_LANE}, 1, 1
    v_xor_b32 v{VT+1}, v{VT+1}, v{V_WH}
    v_lshlrev_b32 v{VT+1}, 4, v{VT+1}
    v_lshl_add_u32 v{VT+1}, v{VT}, 7, v{VT+1}
    v_and_b32 v{VT}, 1, v{V_LANE}
    v_lshl_add_u32 v{VT+1}, v{VT}, 3, v{VT+1}
    s_lshl_b32 s{S_L0}, s{S_WAVE}, 13
    v_add_u32 v{VT+1}, s{S_L0}, v{VT+1}
    v_add_u32 v{VT+1}, {YLO}, v{VT+1}
    v_lshlrev_b32 v{V_L8}, 3, v{V_LANE}
    s_mul_i32 s{S_YA}, s{S_WAVE}, {7*64*4096}
    s_lshl_b32 s{S_T}, s{S_RB}, 7
    s_add_u32 s{S_YA}, s{S_YA}, s{S_T}
    s_mul_i32 s{S_YB}, s{S_CT}, {5*54*1024}
    s_mul_i32 s{S_T}, s{S_WAVE}, {7*2048}
    s_add_u32 s{S_YB}, s{S_YB}, s{S_T}""")
    for sb in range(4):
        ysetup += R(f"""s_add_u32 s{S_T}, s{S_WAVE}, {sb}
        s_and_b32 s{S_T}, s{S_T}, 3
        s_lshl_b32 s{S_T}, s{S_T}, 5
        v_xor_b32 v{V_WA+sb}, s{S_T}, v{VT+1}
        v_add_u32 v{V_WH+sb}, {YB[0]-YLO}, v{V_WA+sb}""")
    ysetup += R(f"""s_and_b32 s{S_T}, s{c.S_G}, 0xfc
    s_add_u32 s{S_T}, s{S_T}, s{S_WAVE}
    s_lshl_b32 s{S_T}, s{S_T}, 2
    s_add_u32 s{S_T}, s{S_T}, s{c.S_KQ}
    s_mul_i32 s{S_PO}, s{S_T}, {PSZ}
    s_add_u32 s{S_PO}, s{S_PO}, {PART_OFF}
    s_mul_i32 s{S_PI}, s{c.S_G}, {4*PSZ}
    s_mul_i32 s{S_T}, s{S_WAVE}, 2560
    s_add_u32 s{S_PI}, s{S_PI}, s{S_T}
    s_add_u32 s{S_PI}, s{S_PI}, {PART_OFF}
    s_mov_b32 s{S_B}, {fhex(-math.log2(math.e))}""")
    def XF(k): return 224+k if k < 16 else 252+(k-16)
    def YA(p, db, t):
        k = 8*db+4*t
        return [ar(144+k, 4), ar(184+k, 4), vr(176+k, 4), ar(k, 4)][p % 4]
    def YBr(p, sb, t, n=4, o=0): return ar((224 if p % 2 == 0 else 40)+8*sb+4*t+o, n)
    def yloads(p):
        r = []
        for n in range(8):
            g = R(f"s_add_u32 m0, s{S_L0}, {YB[p%3]+1024*n}") if n % 4 == 0 else []
            r.append(g+[("raw", f"s_add_u32 s{S_T}, s{S_YA}, {(64*p+8*n)*4096-1024*(n%4)}"),
                        ("vm", ("w", p), f"buffer_load_dwordx4 v{V_WD}, s[{S_W2}:{S_W2+3}], s{S_T} offen offset:{1024*(n%4)} lds")])
        for db in range(5):
            g = [("raw", f"s_add_u32 s{S_T+1}, s{S_YB}, {U_OFF+db*54*1024+p*2048}")]
            if p == 6: g += R(f"s_cmp_eq_u32 s{S_WAVE}, 3\ns_cselect_b32 s{S_T+1}, {WS_SZ}, s{S_T+1}")
            r.append(g+[("vm", ("a", p), f"buffer_load_dwordx4 {YA(p,db,0)}, v{V_L16}, {WSR}, s{S_T+1} offen{SC}")])
            r.append([("vm", ("a", p), f"buffer_load_dwordx4 {YA(p,db,1)}, v{V_L16}, {WSR}, s{S_T+1} offen offset:1024{SC}")])
        return r
    def yreads(p):
        y = p % 3
        va, o = (V_WH, 0) if y == 0 else (V_WA, YB[y]-YLO)
        return [("ds", ("r", p), f"ds_read_b64_tr_b16 {YBr(p,sb,t,2,2*hj)}, v{va+sb} offset:{o+2048*(2*t+hj)}")
                for sb in range(4) for t in range(2) for hj in range(2)]
    V_OW, V_OW8, S_OWN = 13, 223, 50
    ysetup += R(f"""v_add_u32 v{V_OW}, {LDS_OWN}, v{V_L16}
    v_add_u32 v{V_OW8}, {LDS_OWN}, v{V_L8}""")
    own = R(f"s_cmp_eq_u32 s{S_WAVE}, s{c.S_KQ}\ns_cselect_b64 s[{S_OWN}:{S_OWN+1}], -1, 0\ns_cselect_b32 s{S_PO}, {WS_SZ}, s{S_PO}")
    def pstore(sb):
        b = ACS+20*sb
        r = [[("raw", f"v_cvt_pk_bf16_f32 v{b+j}, v{b+2*j}, v{b+2*j+1}")] for j in range(10)]
        r.insert(4, [("vm", "ps", f"buffer_store_dwordx4 {vr(b,4)}, v{V_L16}, {WSR}, s{S_PO} offen{SC}")])
        r.insert(9, [("vm", "ps", f"buffer_store_dwordx4 {vr(b+4,4)}, v{V_L16}, {WSR}, s{S_PO} offen offset:1024{SC}")])
        r.append([("vm", "ps", f"buffer_store_dwordx2 {vr(b+8,2)}, v{V_L8}, {WSR}, s{S_PO} offen offset:2048{SC}"), ("raw", f"s_add_u32 s{S_PO}, s{S_PO}, 2560")])
        r.append(R(f"s_mov_b64 exec, s[{S_OWN}:{S_OWN+1}]") +
                 [("ds", "ow", f"ds_write_b128 v{V_OW}, {vr(b,4)} offset:{2560*sb}"), ("ds", "ow", f"ds_write_b128 v{V_OW}, {vr(b+4,4)} offset:{2560*sb+1024}"),
                  ("ds", "ow", f"ds_write_b64 v{V_OW8}, {vr(b+8,2)} offset:{2560*sb+2048}")] + R("s_mov_b64 exec, -1"))
        return r
    gl = gelu_items(V_L16, S_T+2)
    urd, ust = u_out(V_L16, S_T+2)
    y01 = yloads(0) + yloads(1)
    GE = opt('GE', 3); US = GE+1+opt('SD', 2); D4 = opt('D4', 1)
    dq = [g for st in range(3, 16) for g in c.dma(st)]
    for s in range(16):
        if s == 13:
            e.wvm("poll")
            spin(e, V_PD, V_PA, 4, have=True)
        if s == US: e.wvm("us")
        if s < 15: e.wait(("sd", s+1 if s else 0), "ALL")
        else: e.wait(("w", 0), "ALL")
        if s < 15: e("s_barrier")
        if Ctx.fine == "f": stamp(e, 14+s)
        gaps = [[] for _ in range(40)]
        rd = sreads(s+1) if s < 15 else yreads(0)
        if s == 0:
            for k, it in enumerate(g1_red_reads()): gaps[k].append(it)
            gaps[18] += [("wait", ("sd", 1), "gr"), ("raw", "s_barrier")]
            for k, it in enumerate(rd): gaps[19+k].append(it)
        else:
            for k, it in enumerate(rd): gaps[2*k if s < 15 else k].append(it)
        nd = 12 if (D4 and 1 <= s <= 3) else 9
        mine, dq = dq[:nd], dq[nd:]
        for k, g in enumerate(mine):
            pos = 21+2*k if s == 0 else (4*k+3 if nd == 9 else 2*((3*k)//2)+3)
            if g[0][0] == "raw":
                gaps[pos-1].append(g[0]); g = g[2:]
            gaps[pos] += g
        if D4 and s >= 12:
            part = y01[:8] if s == 12 else (y01[8:18] if s == 13 else (y01[18:28] if s == 14 else y01[28:]))
            for k, g in enumerate(part): gaps[4*k+3 if s < 15 else 2*k+1] += g
        if not D4 and s >= 13:
            for k, g in enumerate(y01[12*(s-13):12*(s-12)]): gaps[(2*((3*k)//2)+1) if s < 15 else k+1] += g
        if s <= GE:
            if s == 0: glv = [x for x in gl if x[0] != "ds"]; gld = [x for x in gl if x[0] == "ds"]
            cost = lambda it: 2 if it[1].startswith(("v_exp", "v_rcp")) else (0.3 if it[1].startswith("s_") else 1)
            g0, g1 = (20 if s == 0 else 0), (24 if s == GE else 40)
            room = [max(0, 2 - sum(1 for it in gaps[m] if not (it[0] == "raw" and it[1].startswith("s_")))) for m in range(40)]
            cap = sum(room[g0:g1]); capl = cap + 52*(GE-s-1) + (30 if s < GE else 0) if s < GE else cap
            quota = sum(map(cost, glv))*cap/capl
            acc = 0; used = 0
            for m in range(g0, g1):
                acc += quota*room[m]/cap
                while glv and (used + cost(glv[0])/2 <= acc or (s == GE and m == g1-1)):
                    used += cost(glv[0]); gaps[m].append(glv.pop(0))
            if s == GE:
                assert not glv
                for k, it in enumerate(gld): gaps[25+2*k].insert(0, it)
        if s == GE+1:
            for k, g in enumerate(urd): gaps[2*k+1] += g
            for k, g in enumerate(ust): gaps[4*k+9] += g
        if s == US: gaps[1] += signal(C_U, S_UG, V_PA)
        if 8 <= s < 12:
            n = -(-len(ysetup)//4); q = s-8
            for k, it in enumerate(ysetup[q*n:(q+1)*n]): gaps[2*k].append(it)
        if s == 11:
            for k, it in enumerate(flag_addr(V_PA, C_U, S_CT, 27)): gaps[4*k+1].append(it)
        if s == 12: gaps[1] += poll_ld(V_PD, V_PA); gaps[39] += own
        if s == 15:
            for sb in range(2):
                for k, g in enumerate(pstore(sb)): gaps[18+10*sb+(k*10)//14] += g
        for m in range(40):
            sb, db, t = m//10, (m//2) % 5, m % 2
            if sb % 2 and s < 15 and opt('BZ', 1): db = 4-db
            d = vr(ACS+20*sb+4*db, 4)
            cc = "0" if (s == 0 and t == 0) else d
            if (m//2) % 2 and opt('BZ', 1): t = 1-t
            e(f"{MF} {d}, {SA(s,db,t)}, {SB(s,sb,t)}, {cc}")
            for it in gaps[m]: e.add(it)
    stamp(e, 10)
    V_RW, V_RR = 218, V_WA
    PL, SS = ACS, ACS+48
    def psum(src):
        r = []
        for j in range(10):
            x = PL+12*src+j
            if src == 0: r += R(f"v_lshlrev_b32 v{SS+2*j}, 16, v{x}\nv_and_b32 v{SS+2*j+1}, 0xffff0000, v{x}")
            else: r += R(f"v_lshlrev_b32 v{SS+20}, 16, v{x}\nv_and_b32 v{x}, 0xffff0000, v{x}\nv_add_f32 v{SS+2*j}, v{SS+2*j}, v{SS+20}\nv_add_f32 v{SS+2*j+1}, v{SS+2*j+1}, v{x}")
        return r
    for p in range(7):
        if p < 6: e.wvm(("w", p+1))
        e.wait(("a", p), "ALL")
        if Ctx.fine == "g": stamp(e, 24+p)
        gaps = [[] for _ in range(40)]
        if p < 6:
            for k, it in enumerate(yreads(p+1)): gaps[2*k].append(it)
        sh = 0
        if p == 0:
            for k, g in enumerate(pstore(2)): gaps[k//2] += g
            for k, g in enumerate(pstore(3)): gaps[7+k//2] += g
            sh = 4
        PP = opt('PL', 3)
        if p == PP: gaps[16] += poll_ld(V_PD, V_PA)
        if p+2 < 7:
            for k, g in enumerate(yloads(p+2)): gaps[min(2*k+1+sh, 39)] += g
        if p == PP:
            gaps[36] += [("wait", "poll", None)] + spin_items(V_PD, V_PA, 2, have=True)
            for k in range(1, 4):
                b = PL+12*k
                gaps[36+k] += R(f"s_add_u32 s{S_T+2}, s{c.S_KQ}, {k}\ns_and_b32 s{S_T+2}, s{S_T+2}, 3\ns_mul_i32 s{S_T+2}, s{S_T+2}, {PSZ}\ns_add_u32 s{S_T+2}, s{S_T+2}, s{S_PI}")
                gaps[36+k] += [("vm", "pl", f"buffer_load_dwordx4 {vr(b,4)}, v{V_L16}, {WSR}, s{S_T+2} offen{SC}"),
                               ("vm", "pl", f"buffer_load_dwordx4 {vr(b+4,4)}, v{V_L16}, {WSR}, s{S_T+2} offen offset:1024{SC}"),
                               ("vm", "pl", f"buffer_load_dwordx2 {vr(b+8,2)}, v{V_L8}, {WSR}, s{S_T+2} offen offset:2048{SC}")]
        if p == 5:
            for k, it in enumerate(c.xloads()): gaps[4*k+1].append(it)
        if p == 1:
            gaps[0] += R("s_barrier") + signal(C_P, c.S_G, VT)
            gaps[2] += R(f"s_mul_i32 s{S_T+2}, s{S_WAVE}, 2560\nv_add_u32 v{V_OW}, s{S_T+2}, v{V_OW}\nv_add_u32 v{V_OW8}, s{S_T+2}, v{V_OW8}")
            gaps[32] += [("ds", "or", f"ds_read_b128 {vr(PL,4)}, v{V_OW}")]
            gaps[34] += [("ds", "or", f"ds_read_b128 {vr(PL+4,4)}, v{V_OW} offset:1024")]
            gaps[36] += [("ds", "or", f"ds_read_b64 {vr(PL+8,2)}, v{V_OW8} offset:2048")]
        if p == 2:
            pa = R(f"""v_min_u32 v{V_PA}, 2, v{V_LANE}
            v_add_u32 v{V_PA}, s{c.S_KQ}, v{V_PA}
            v_add_u32 v{V_PA}, 1, v{V_PA}
            v_and_b32 v{V_PA}, 3, v{V_PA}
            s_and_b32 s{S_T+2}, s{c.S_G}, 0xfc
            v_add_u32 v{V_PA}, s{S_T+2}, v{V_PA}
            v_lshlrev_b32 v{V_PA}, 7, v{V_PA}
            v_add_u32 v{V_PA}, {FL_OFF+C_P*32768}, v{V_PA}""") + psum(0)
            for k, it in enumerate(pa): gaps[(k*40)//len(pa)].append(it)
        if p == 5 and PP == 3:
            ps = psum(1) + psum(2)[:20]
            for k, it in enumerate(ps): gaps[(k*40)//len(ps)].append(it)
        if p == 6:
            ra = R(f"v_add_u32 v{V_RW}, s{S_L0}, v{V_L16}\nv_add_u32 v{V_RW+1}, {YB[0]}, v{V_RW}\nv_add_u32 v{V_RW}, {YLO}, v{V_RW}")
            for k in range(1, 4):
                ra += R(f"s_add_u32 s{S_T}, s{S_WAVE}, {4-k}\ns_and_b32 s{S_T}, s{S_T}, 3\ns_lshl_b32 s{S_T}, s{S_T}, 13\ns_add_u32 s{S_T}, s{S_T}, {YB[k-1]}\nv_add_u32 v{V_RR+k}, s{S_T}, v{V_L16}")
            if PP == 3: ra += psum(2)[20:] + psum(3)[:20]
            for k, it in enumerate(ra): gaps[(k*40)//len(ra) if PP == 3 else k//2].append(it)
        for m in range(40):
            db, sb, t = m//8, (m//2) % 4, m % 2
            if p == 6: sb, db = 3-m//10, (m//2) % 5
            elif db % 2 and opt('BZ', 1): sb = 3-sb
            d = vr(ACY+20*sb+4*db, 4)
            cc = "0" if (p == 0 and t == 0) else d
            if (m//2) % 2 and opt('BZ', 1): t = 1-t
            e(f"{MF} {d}, {YA(p,db,t)}, {YBr(p,sb,t)}, {cc}")
            if p == 6 and m >= 11 and m % 2 == 1:
                k = (m-11)//2; sb2, db2 = 3-k//5, k % 5
                va, o = (V_RW+1, 0) if sb2 == 1 else (V_RW, YB[sb2-1]-YLO)
                e.ds("yw", f"ds_write_b128 v{va}, {vr(ACY+20*sb2+4*db2,4)} offset:{o+1024*db2}")
            for it in gaps[m]: e.add(it)
    stamp(e, 11)
    Y, Z = ACY, ACY+20
    UN = 176
    def psum2(src):
        for j in range(10): e(f"v_lshlrev_b32 v{UN+2*j}, 16, v{PL+12*src+j}\nv_and_b32 v{UN+2*j+1}, s{S_T}, v{PL+12*src+j}")
        for k in range(0, 20, 2): e(pk("add", SS+k, SS+k, UN+k))
    e(f"s_mov_b32 s{S_T}, 0xffff0000")
    if PP == 3:
        for it in psum(3)[20:]: e.add(it)
    else:
        e.wvm("pl")
        psum2(1)
    e.wds("ALL"); e("s_barrier")
    for sb in range(1, 4):
        for db in range(5): e.ds(("yr", sb), f"ds_read_b128 {vr(ACY+20*sb+4*db,4)}, v{V_RR+sb} offset:{1024*db}")
    if PP != 3: psum2(2); psum2(3)
    e.wvm("e")
    e(f"v_lshlrev_b32 v{VT}, 16, v{V_B2}\nv_lshlrev_b32 v{VT+1}, 16, v{V_B2}\ns_mov_b32 s{S_B+1}, s{S_B}")
    for k in range(10): e(f"v_lshlrev_b32 v{XF(2*k)}, 16, v{XR+k}\nv_and_b32 v{XF(2*k+1)}, 0xffff0000, v{XR+k}")
    for k in range(0, 20, 2): e(pk("add", Y+k, Y+k, VT))
    for sb in range(1, 4):
        e.wds(("yr", sb))
        for k in range(0, 20, 2): e(pk("add", Y+k, Y+k, Y+20*sb+k))
    for k in range(0, 20, 2): e(f"v_pk_mul_f32 {vr(Z+k,2)}, {vr(Y+k,2)}, s[{S_B}:{S_B+1}]")
    for k in range(20): e(f"v_exp_f32 v{Z+k}, v{Z+k}")
    for k in range(0, 20, 2): e(pk("mul", Y+k, Y+k, SS+k))
    for k in range(0, 20, 2): e(f"v_pk_add_f32 {vr(Z+k,2)}, {vr(Z+k,2)}, 1.0 op_sel_hi:[1,0]")
    for db in range(5):
        for k in range(4*db, 4*db+4): e(f"v_rcp_f32 v{Z+k}, v{Z+k}")
        if db:
            d0 = db-1
            e(f"v_cvt_pk_bf16_f32 v{Z+20+2*d0}, v{XF(4*d0)}, v{XF(4*d0+1)}\nv_cvt_pk_bf16_f32 v{Z+21+2*d0}, v{XF(4*d0+2)}, v{XF(4*d0+3)}")
            e(f"buffer_store_dwordx2 {vr(Z+20+2*d0,2)}, v{V_XO}, s[{S_OUT}:{S_OUT+3}], s{S_A} offen offset:{32*d0}")
        else: e("s_nop 0")
        for k in range(4*db, 4*db+4, 2): e(f"v_pk_fma_f32 {vr(XF(k),2)}, {vr(Y+k,2)}, {vr(Z+k,2)}, {vr(XF(k),2)}")
    e(f"v_cvt_pk_bf16_f32 v{Z+28}, v{XF(16)}, v{XF(17)}\nv_cvt_pk_bf16_f32 v{Z+29}, v{XF(18)}, v{XF(19)}")
    e(f"buffer_store_dwordx2 {vr(Z+28,2)}, v{V_XO}, s[{S_OUT}:{S_OUT+3}], s{S_A} offen offset:128")
    stamp(e, 12)
    if Ctx.ts:
        e(f"""s_add_u32 s4, s{S_WS}, {TS_OFF}
        s_addc_u32 s5, s{S_WS+1}, 0
        s_mov_b32 s6, 0x100000
        s_mov_b32 s7, 0x20000
        s_lshl_b32 s8, s2, 2
        s_add_u32 s8, s8, s{S_WAVE}
        s_lshl_b32 s8, s8, 8
        v_lshlrev_b32 v10, 2, v{V_LANE}
        buffer_store_dword v0, v10, s[4:7], s8 offen""")
    e("K_end:\ns_endpgm")

def insn_sizes(lines):
    import subprocess, re, tempfile, os
    body = [l for l in lines if isinstance(l, str) and not l.startswith(".")]
    body += [f"K_pg{w}:" for w in range(4)]
    d = tempfile.mkdtemp()
    open(d+"/a.s", "w").write('.amdgcn_target "amdgcn-amd-amdhsa--gfx950"\n.text\n' + "\n".join(body) + "\n")
    subprocess.run(["clang", "-x", "assembler", "-target", "amdgcn-amd-amdhsa", "-mcpu=gfx950", "-c", d+"/a.s", "-o", d+"/a.o"], check=True)
    t = subprocess.run(["llvm-objdump", "-d", "--mcpu=gfx950", d+"/a.o"], capture_output=True, text=True).stdout
    sz = [4*len(m.group(1).split()) for m in re.finditer(r"// [0-9A-F]{12}: ((?:[0-9A-F]{8} ?)+)", t)]
    assert len(sz) == sum(1 for l in body if not l.endswith(":")), (len(sz), len(body))
    return sz
def place_pages(lines):
    sz = iter(insn_sizes(lines))
    out = []; off = None; nxt = 4096; active = False; masked = False; stubs = []
    for l in lines:
        if not isinstance(l, str):
            if l[1] == "align": out += ["s_branch K_al", ".p2align 12", "K_al:"]; off = 0
            if l[1] == "warm": active = True; nxt = (off//4096+1)*4096
            if l[1] == "cold": active = False
            if l[1] == "a64":
                while off % 64: out.append("s_nop 0"); off += 4
            continue
        if l.startswith(".") or l.endswith(":"):
            out.append(l); continue
        n = next(sz)
        if active and off >= nxt and not masked:
            stubs.append(len(out)); out.append(None); off += 8; nxt += 4096
        if l.startswith("s_mov_b64 exec"): masked = not l.endswith("-1")
        out.append(l)
        if off is not None: off += n
    for k, pos in enumerate(stubs):
        tgt = f"K_pg{k+4}" if k+4 < len(stubs) else f"K_back{k%4}"
        out[pos] = f"K_pg{k}:\ns_cbranch_execz {tgt}\ns_nop 0"
    Ctx.npages = len(stubs)
    return out

def gen(ts=False):
    Ctx.ts = ts; Ctx.uid = 0
    e = Em()
    WSR = f"s[{S_WS}:{S_WS+3}]"
    LN_R, LN_L, LT, LN_X, X, D, O1, O2, TA, A0, TG, SB = 96, 97, 98, 100, 110, 130, 150, 160, 170, 176, 182, 184
    XS, HS = LDS_SP, LDS_SP+10240
    e(khead(NAME))
    e("s_cmp_ge_u32 s2, 256\ns_cbranch_scc1 K_exit")
    for s, off in ((S_X,0),(S_DBG,88),(S_WQ,24),(S_WS,96),(S_K,8),(S_V,16),(S_WO,32)):
        e(f"s_load_dwordx2 s[{s}:{s+1}], s[0:1], {off}")
    e(f"s_getpc_b64 s[{S_CODE}:{S_CODE+1}]\nK_pc:")
    e(f"""v_and_b32 v{V_LANE}, 63, v0
    v_lshrrev_b32 v{V_T}, 6, v0
    s_mov_b32 s{S_CODE+2}, K_last-K_pc
    v_readfirstlane_b32 s{S_WAVE}, v{V_T}
    s_mov_b32 s{S_CODE+3}, 0x20000
    s_lshr_b32 s51, s2, 3
    v_lshlrev_b32 v{LT}, 7, v{V_LANE}
    s_cmp_lt_u32 s{S_WAVE}, 2
    s_cbranch_scc1 K_nocp
    s_lshl_b32 s49, s51, 1
    s_add_u32 s49, s49, s{S_WAVE}
    s_and_b32 s49, s49, 15
    s_lshl_b32 s49, s49, 13
    buffer_load_dword v{V_PFD}, v{LT}, s[{S_CODE}:{S_CODE+3}], s49 offen
    K_nocp:
    s_and_b32 s{S_XCD}, s2, 7
    s_lshr_b32 s52, s51, 3
    s_and_b32 s{S_QB}, s51, 7
    s_lshl_b32 s53, s52, 3
    s_add_u32 s53, s53, s{S_XCD}
    s_lshl_b32 s54, s{S_QB}, 5
    s_add_u32 s{S_SLOT}, s53, s54""")
    e(f"""v_lshrrev_b32 v{LN_R}, 5, v0
    v_and_b32 v{LN_L}, 31, v0
    s_lshr_b32 s54, s{S_SLOT}, 2
    s_lshl_b32 s54, s54, 5
    s_and_b32 s55, s{S_SLOT}, 3
    s_lshl_b32 s55, s55, 2
    s_add_u32 s54, s54, s55
    v_and_b32 v{LT}, 3, v{LN_R}
    v_lshrrev_b32 v{LT+1}, 2, v{LN_R}
    v_lshl_add_u32 v{LT}, v{LT+1}, 4, v{LT}
    v_add_u32 v{LT}, s54, v{LT}
    v_mul_u32_u24 v{LT}, 1280, v{LT}
    v_lshl_add_u32 v{LT}, v{LN_L}, 3, v{LT}
    s_mov_b32 s{S_X+2}, {2048*1280}
    s_mov_b32 s{S_X+3}, 0x20000
    s_mov_b32 s{S_DBG+2}, 256
    s_mov_b32 s{S_DBG+3}, 0x20000
    v_mov_b32 v{TG}, 0
    s_memrealtime s[90:91]
    s_waitcnt lgkmcnt(0)""")
    for j in range(5):
        e(f"buffer_load_dwordx2 v[{LN_X+2*j}:{LN_X+2*j+1}], v{LT}, s[{S_X}:{S_X+3}], 0 offen offset:{256*j}")
    e.mark("xout")
    e(f"""s_lshl_b32 s48, s2, 2
    s_add_u32 s48, s48, s{S_WAVE}
    s_cmp_lg_u32 s48, 1
    s_cbranch_scc1 K_notag
    s_or_b32 s90, s90, 1
    v_mov_b32 v{TG+1}, s90
    s_mov_b64 exec, 1
    buffer_store_dword v{TG+1}, v{TG}, s[{S_DBG}:{S_DBG+3}], 0 offen sc1
    s_mov_b64 exec, -1
    K_notag:
    s_lshl_b32 s50, s{S_XCD}, 2
    s_add_u32 s50, s50, s52
    s_lshl_b32 s56, s50, 8
    s_sub_u32 s{S_WQ+2}, {640*8192}, s56
    s_mov_b32 s{S_WQ+3}, 0x20000
    s_add_u32 s{S_WQ}, s{S_WQ}, s56
    s_addc_u32 s{S_WQ+1}, s{S_WQ+1}, 0""")
    e(f"""s_cmp_lt_u32 s{S_WAVE}, 2
    s_cbranch_scc1 K_nopf
    v_lshrrev_b32 v{LT}, 1, v{V_LANE}
    v_and_b32 v{LT+1}, 1, v{V_LANE}
    v_lshlrev_b32 v{LT+1}, 7, v{LT+1}
    v_lshl_add_u32 v{LT}, v{LT}, 17, v{LT+1}
    s_lshl_b32 s48, s{S_QB}, 1
    s_add_u32 s48, s48, s{S_WAVE}
    s_sub_u32 s48, s48, 2
    s_lshl_b32 s48, s48, 13
    buffer_load_dword v{V_PFD}, v{LT}, s[{S_WQ}:{S_WQ+3}], s48 offen{NTQ}
    s_add_u32 s48, s48, {32*16*8192}
    buffer_load_dword v{V_PFD}, v{LT}, s[{S_WQ}:{S_WQ+3}], s48 offen{NTQ}
    K_nopf:""")
    for s, off in ((S_W1,48),(S_B1,56),(S_W2,64),(S_B2,72),(S_OUT,80)):
        e(f"s_load_dwordx2 s[{s}:{s+1}], s[0:1], {off}")
    e(f"""s_mov_b32 s{S_WS+2}, {WS_SZ}
    s_mov_b32 s{S_WS+3}, 0x20000
    s_mov_b32 s{S_PASS}, 0
    s_lshr_b32 s48, s2, 5
    s_lshr_b32 s53, s{S_XCD}, 1
    s_mul_i32 s53, s53, 7
    s_add_u32 s53, s53, s48
    s_cmp_lt_u32 s48, 7
    s_cselect_b32 s{S_G1}, 1, 0
    s_cmp_lt_u32 s53, 27
    s_cselect_b32 s{S_G1}, s{S_G1}, 0
    s_and_b32 s48, s{S_XCD}, 1
    s_lshl_b32 s48, s48, 2
    s_and_b32 s{S_UG}, s{S_QB}, 3
    s_add_u32 s{S_UG}, s{S_UG}, s48
    s_lshl_b32 s{S_UG}, s{S_UG}, 5
    s_add_u32 s{S_UG}, s{S_UG}, s53
    s_cmp_eq_u32 s{S_G1}, 0
    s_cselect_b32 s{S_STATE}, {1<<C_U}, 0
    s_cmp_lg_u32 s{S_WAVE}, 0
    s_cselect_b32 s{S_STATE}, -1, s{S_STATE}
    s_mov_b32 s49, 0xffff0000""")
    e(f"""v_mul_u32_u24 v{A0}, 1280, v{LN_R}
    v_lshl_add_u32 v{A0}, v{LN_L}, 3, v{A0}
    v_add_u32 v{A0}, {XS}, v{A0}
    v_and_b32 v{SB}, 3, v{V_LANE}
    v_bfe_u32 v{SB+1}, v{V_LANE}, 2, 2
    v_bfe_u32 v{SB+2}, v{V_LANE}, 4, 1
    v_lshrrev_b32 v{SB+3}, 5, v{V_LANE}
    v_lshl_add_u32 v{A0+1}, v{SB+2}, 2, v{SB}
    v_mul_u32_u24 v{A0+1}, 1280, v{A0+1}
    v_lshl_add_u32 v{A0+1}, v{SB+3}, 6, v{A0+1}
    v_lshl_add_u32 v{A0+1}, v{SB+1}, 3, v{A0+1}
    v_add_u32 v{A0+1}, {XS}, v{A0+1}
    s_lshr_b32 s54, s{S_SLOT}, 2
    s_lshl_b32 s54, s54, 1
    v_add_u32 v{A0+2}, s54, v{SB+2}
    v_mul_u32_u24 v{A0+2}, 20, v{A0+2}
    v_add_u32 v{A0+2}, v{A0+2}, v{SB+3}
    v_lshlrev_b32 v{A0+2}, 6, v{A0+2}
    v_lshl_add_u32 v{A0+2}, v{SB+1}, 4, v{A0+2}
    v_add_u32 v{A0+2}, v{A0+2}, v{SB}
    v_add_u32 v{A0+2}, s55, v{A0+2}
    v_lshlrev_b32 v{A0+2}, 4, v{A0+2}""")
    QP.addr_dma(e, SB+4)
    e(f"""s_lshl_b32 s52, s50, 19
    s_add_u32 s{S_K}, s{S_K}, s52
    s_addc_u32 s{S_K+1}, s{S_K+1}, 0
    s_add_u32 s{S_V}, s{S_V}, s52
    s_addc_u32 s{S_V+1}, s{S_V+1}, 0""")
    for s, sz in ((S_K,524288),(S_V,524288),(S_WO,4096*1280),(S_W1,2048*3456),(S_B1,3456),(S_W2,1728*4096),(S_B2,4096),(S_OUT,2048*1280)):
        e(f"s_mov_b32 s{s+2}, {sz}\ns_mov_b32 s{s+3}, 0x20000")
    e(f"""s_lshr_b32 s{S_CPF}, s2, 3
    s_lshl_b32 s{S_CPF}, s{S_CPF}, 2
    s_add_u32 s{S_CPF}, s{S_CPF}, s{S_WAVE}
    s_lshl_b32 s{S_CPF}, s{S_CPF}, 10
    s_and_b32 s{S_CPF}, s{S_CPF}, 0xffff
    s_add_u32 s{S_CPF}, s{S_CPF}, K_tail-K_pc""")
    if ts: e("v_mov_b32 v0, 0")
    stamp(e, 0)
    e.mark("align")
    e(f"s_cmp_lt_u32 s{S_WAVE}, 2\ns_cbranch_scc1 K_w0\ns_waitcnt vmcnt(2)\ns_branch K_w1\nK_w0:\ns_waitcnt vmcnt(0)\nK_w1:")
    stamp(e, 1)
    e(f"buffer_load_dword v{TG+1}, v{TG}, s[{S_DBG}:{S_DBG+3}], 0 offen sc1")
    unpack(e, LN_X, X, 10, 49)
    layernorm(e, X, D, O1, TA, 49, scale=math.log2(math.e)/math.sqrt(128.0))
    e("s_waitcnt lgkmcnt(0)")
    for j in range(5): e(f"ds_write_b64 v{A0}, v[{O1+2*j}:{O1+2*j+1}] offset:{256*j}")
    if Ctx.fine == "s": stamp(e, 14)
    e(f"s_waitcnt lgkmcnt(0)\ns_barrier\ns_cmp_lg_u32 s{S_WAVE}, 0\ns_cbranch_scc1 K_noxs")
    for n in range(10): e(f"ds_read2_b64 v[{SB+4*n}:{SB+4*n+3}], v{A0+1} offset0:{16*n} offset1:{16*n+4}")
    for n in range(10):
        if n % 2 == 0: e(f"s_mov_b32 s54, {2048*n}")
        e(f"s_waitcnt lgkmcnt({9-n})\nbuffer_store_dwordx4 v[{SB+4*n}:{SB+4*n+3}], v{A0+2}, {WSR}, s54 offen offset:{2048*(n%2)}{SC}")
    e("K_noxs:")
    if Ctx.fine == "s": stamp(e, 15)
    l2 = Em()
    ln_finish(l2, D, O2, TA+2)
    unpack(l2, O2, X, 10, 49)
    layernorm(l2, X, D, O2, TA, 49)
    NE = opt('NE', 0)
    early = [g for j in range(NE) for g in QP.wq_dma(j)]
    early = [early[k]+early[k+1] if k % 5 == 0 else early[k] for k in range(len(early)) if k % 5 != 1]
    if NE: e(f"s_cmp_eq_u32 s{S_WAVE}, 0\ns_cselect_b64 vcc, -1, 0")
    st = opt('NS', 30); step = (len(l2.items)-st)//max(len(early), 1)
    for k, it in enumerate(l2.items):
        if k >= st and (k-st) % step == 0 and early:
            l0 = lab("sk")
            e(f"s_cbranch_vccnz {l0}")
            for x in early.pop(0): e(x[1] if x[0] == "raw" else x[2])
            e(f"{l0}:")
        e.add(it)
    assert not early
    for j in range(5): e(f"ds_write_b64 v{A0}, v[{O2+2*j}:{O2+2*j+1}] offset:{10240+256*j}")
    if Ctx.fine == "s": stamp(e, 16)
    l0 = lab("w0")
    e(f"s_cmp_lg_u32 s{S_WAVE}, 0\ns_cbranch_scc1 {l0}\ns_waitcnt vmcnt(0)")
    spin(e, TG+1, TG, 1, have=True, cmp=f"v_cmp_eq_u32 vcc, 0, v{TG+1}", srd=S_DBG)
    e(f"v_readfirstlane_b32 s{S_TAG}, v{TG+1}\ns_nop 1")
    for it in signal(C_XN, S_SLOT, LT): e.add(it)
    e("K_start:")
    QP.wq_tiles(e, 0, NE)
    e(f"{l0}:")
    stamp(e, 2)
    T = 64
    urgent = R(f"""v_lshrrev_b32 v{T+2}, 2, v{V_LANE}
    v_and_b32 v{T+3}, 7, v{T+2}
    v_lshlrev_b32 v{T+3}, 1, v{T+3}
    v_and_b32 v{T+4}, 3, v{V_LANE}
    v_xor_b32 v{T+5}, v{T+3}, v{T+4}
    v_lshlrev_b32 v{T+5}, 4, v{T+5}
    v_lshl_add_u32 v{QP.V_WL}, v{T+2}, 8, v{T+5}
    v_xor_b32 v{QP.V_WL+1}, 64, v{QP.V_WL}
    v_xor_b32 v{QP.V_WL+2}, 128, v{QP.V_WL}
    v_xor_b32 v{QP.V_WL+3}, 192, v{QP.V_WL}""")
    urgent += [("raw", f"v_add_u32 v{QP.V_WA+k}, {LDS_V}, v{QP.V_WL+k}") for k in range(4)]
    urgent += flag_addr(T+9, C_XN, S_QB, 32)
    urgent += R(f"""v_bfe_u32 v89, v{V_LANE}, 2, 2
    v_mul_u32_u24 v89, 1280, v89
    v_lshrrev_b32 v{T}, 4, v{V_LANE}
    s_lshl_b32 s54, s{S_WAVE}, 2
    v_add_u32 v{T}, s54, v{T}
    v_lshl_add_u32 v89, v{T}, 5, v89
    v_lshl_add_u32 v89, v{T+4}, 3, v89
    v_add_u32 v89, {HS}, v89
    v_lshlrev_b32 v88, 16, v{T}
    v_and_b32 v{T+1}, 15, v{V_LANE}
    v_lshl_add_u32 v88, v{T+1}, 4, v88
    s_lshl_b32 s55, s{S_QB}, 4
    s_add_u32 s55, s55, s54
    s_mul_i32 s{QP.S_XOFF}, s55, 20480
    v_lshlrev_b32 v{QP.V_XO}, 4, v{V_LANE}""")
    if opt('START', 0):
        for g in [g for j in range(4) for g in QP.wq_dma(j)]:
            for it in g + urgent[:2]: e.add(it)
            urgent = urgent[2:]
        assert not urgent
        e("s_mov_b64 exec, 0")
        for w in range(3): e(f"s_cmp_eq_u32 s{S_WAVE}, {w}\ns_cbranch_scc1 K_pg{w}")
        e("s_branch K_pg3\nK_back0:\nK_back1:\nK_back2:\nK_back3:\ns_mov_b64 exec, -1")
        e.mark("warm")
    else:
        rest = [g for j in range(NE, 8) for g in QP.wq_dma(j)]
        hp = {0: (10, 15, 20, 25), 2: (24, 0, 6, 12), 3: (20, 0, 5, 10), 4: (19, 0, 5, 10)}[NE]
        nu = -(-len(urgent)//len(rest))
        for k, g in enumerate(rest):
            if k in hp:
                w = hp.index(k)
                e(f"s_cmp_lg_u32 s{S_WAVE}, {w}\ns_cbranch_scc1 K_hop{w}\ns_mov_b64 exec, 0\ns_branch K_pg{w}\nK_back{w}:\ns_mov_b64 exec, -1\nK_hop{w}:")
            for it in g + urgent[:nu]: e.add(it)
            urgent = urgent[nu:]
        e.mark("warm")
        assert not urgent
    if Ctx.fine == "s": stamp(e, 18)
    e.wvm(("W", 1))
    l0 = lab("tag")
    e(f"s_cmp_lg_u32 s{S_PASS}, 0\ns_cbranch_scc1 {l0}")
    spin(e, TG+1, TG, 1, have=True, cmp=f"v_cmp_eq_u32 vcc, 0, v{TG+1}", srd=S_DBG)
    e(f"v_readfirstlane_b32 s{S_TAG}, v{TG+1}\n{l0}:")
    l0 = lab("nopoll")
    e(f"s_cmp_lg_u32 s{S_WAVE}, 0\ns_cbranch_scc1 {l0}\nbuffer_load_dword v{T+10}, v{T+9}, {WSR}, 0 offen sc1\n{l0}:")
    e("s_waitcnt lgkmcnt(0)\ns_barrier")
    if Ctx.fine == "s": stamp(e, 19)
    for n in range(3):
        for hj in range(2): e(f"ds_read_b64_tr_b16 v[{76+4*n+2*hj}:{76+4*n+2*hj+1}], v89 offset:{512*n+5120*hj}")
    for it in QP.w_reads(0): e.add(it)
    if Ctx.fine == "s": stamp(e, 21)
    l0 = lab("nopoll")
    e(f"s_cmp_lg_u32 s{S_WAVE}, 0\ns_cbranch_scc1 {l0}\ns_waitcnt vmcnt(0)")
    spin(e, T+10, T+9, 1, have=True)
    e(f"{l0}:\ns_waitcnt lgkmcnt(0)\ns_barrier")
    stamp(e, 3)
    b = Em()
    b(f"""s_lshl_b32 s50, s{S_XCD}, 2
    s_lshr_b32 s52, s2, 6
    s_add_u32 s50, s50, s52
    s_mov_b32 s{S_KOFF}, s{S_W4K}
    s_mov_b32 s{S_VOFF}, s{S_W4K}
    s_lshl_b32 s{S_OST}, s55, 17
    s_lshl_b32 s54, s50, 12
    s_add_u32 s{S_OST}, s{S_OST}, s54
    s_add_u32 s{S_OST}, s{S_OST}, {OF_OFF}
    s_lshl_b32 s{S_PF}, s2, 2
    s_add_u32 s{S_PF}, s{S_PF}, s{S_WAVE}
    s_lshr_b32 s54, s{S_PF}, 3
    s_and_b32 s55, s{S_PF}, 7
    s_mul_i32 s{QP.S_WOS}, s54, {32*1280}
    s_mul_i32 s53, s55, 160
    s_add_u32 s{QP.S_WOS}, s{QP.S_WOS}, s53
    s_mul_i32 s{QP.S_WOD}, s55, {5*0x20000}
    s_lshl_b32 s54, s54, 10
    s_add_u32 s{QP.S_WOD}, s{QP.S_WOD}, s54
    s_add_u32 s{QP.S_WOD}, s{QP.S_WOD}, {WOF_OFF}
    s_mul_i32 s{S_PF}, s{S_PF}, {56*128}
    s_lshl_b32 s50, s{S_SLOT}, 8
    s_add_u32 s50, s50, {HT_OFF}
    s_cmp_lg_u32 s{S_PASS}, 0
    s_cselect_b32 s50, {WS_SZ}, s50
    s_add_u32 s51, s50, 0x100000
    s_add_u32 s52, s50, 0x200000
    s_cmp_ge_u32 s{S_WAVE}, 2
    s_cselect_b32 s52, {WS_SZ}, s52
    v_mul_u32_u24 v{QP.V_OA}, 160, v{T+2}
    v_lshl_add_u32 v{QP.V_OA}, v{T+4}, 3, v{QP.V_OA}
    s_mul_i32 s54, s{S_WAVE}, 5120
    s_add_u32 s54, s54, {LDS_SP}
    v_add_u32 v{QP.V_OA}, s54, v{QP.V_OA}
    v_bfe_u32 v{T+4}, v{V_LANE}, 1, 1
    v_xor_b32 v{T+4}, v{T+3}, v{T+4}
    v_lshlrev_b32 v{T+4}, 4, v{T+4}
    v_lshl_add_u32 v{T+4}, v{T+2}, 8, v{T+4}
    v_and_b32 v{T+5}, 1, v{V_LANE}
    v_lshl_add_u32 v{T+4}, v{T+5}, 3, v{T+4}
    v_add_u32 v{V_VA}, {LDS_V}, v{T+4}""")
    for db in range(1, 8): b(f"v_xor_b32 v{V_VA+db}, {32*db}, v{V_VA}")
    b(f"""v_and_b32 v{T}, 15, v{V_LANE}
    v_lshrrev_b32 v{T+1}, 4, v{V_LANE}
    v_and_b32 v{T+2}, 7, v{V_LANE}
    v_lshlrev_b32 v{V_PFA}, 7, v{T+2}
    v_lshlrev_b32 v{T+2}, 1, v{T+2}
    v_xor_b32 v{T+2}, v{T+2}, v{T+1}
    v_lshlrev_b32 v{T+2}, 4, v{T+2}
    v_lshl_add_u32 v{V_KA}, v{T}, 8, v{T+2}
    v_xor_b32 v{V_KA+1}, 64, v{V_KA}
    v_xor_b32 v{V_KA+2}, 128, v{V_KA}
    v_xor_b32 v{V_KA+3}, 192, v{V_KA}
    v_lshlrev_b32 v{T+2}, 1, v{T+1}
    v_xor_b32 v{T+2}, v{T+2}, v{T}
    v_lshlrev_b32 v{T+2}, 4, v{T+2}
    v_lshl_add_u32 v{V_DM}, v{T+1}, 8, v{T+2}
    v_xor_b32 v{V_DM+1}, 128, v{V_DM}
    v_mov_b32 v{T+6}, 0x3f803f80
    v_cmp_gt_u32 vcc, 2, v{T}
    v_mov_b32 v{T+7}, 0x44444444
    v_mov_b32 v{T+8}, 0xeeeeeeee
    v_cndmask_b32 v{V_ONE}, 0, v{T+6}, vcc
    v_cmp_eq_u32 vcc, 1, v{T+5}
    v_mov_b32 v{V_ONE+1}, v{V_ONE}
    v_mov_b32 v{V_ONE+2}, v{V_ONE}
    v_mov_b32 v{V_ONE+3}, v{V_ONE}
    v_cndmask_b32 v{V_IDX}, v{T+7}, v{T+8}, vcc""")
    for n in range(5):
        b(f"""v_add_u32 v{T}, {64*n}, v{V_LANE}
        v_mul_u32_u24 v{T+1}, 6554, v{T}
        v_lshrrev_b32 v{T+1}, 16, v{T+1}
        v_mul_u32_u24 v{T+2}, 10, v{T+1}
        v_sub_u32 v{T}, v{T}, v{T+2}
        v_mul_u32_u24 v{T+1}, 1280, v{T+1}
        v_lshl_add_u32 v{QP.V_OD+n}, v{T}, 4, v{T+1}""")
    qproj(e, b.items)
    e(f"s_cmp_lg_u32 s{S_PASS}, 0\ns_cbranch_scc1 K_truemax\nK_it0:")
    attn_iter(e, 0, first_pv=True, pf=True, late=[(6, signal(C_H, S_QB, 21))], kbase=K1B)
    stamp(e, 5)
    e(f"s_mov_b32 s{S_CNT}, 7")
    e.mark("loop0")
    for i in range(1, 5): attn_iter(e, i, pf=True)
    e.mark("loop1")
    for i in range(5, 9): attn_iter(e, i, pf=True)
    e.mark("loop2")
    e("K_tail:")
    stamp(e, 6)
    late29 = [(6, R(f"v_mov_b32 v{V_T+1}, v{V_HPA}")), (8, poll_ld(V_T, V_T+1, S_DBG))]
    late29 += [(11+4*(k//2), [it]) for k, it in enumerate(G1.setup1())]
    attn_iter(e, 9, dma=False, late=late29, extra=list(zip([67, 75, 83, 91, 99, 107, 111, 115], G1.wl(0))))
    spin(e, V_T, V_T+1, 8, have=True, cmp=f"v_cmp_gt_u32 vcc, 32, v{V_T}", srd=S_DBG)
    e(f"""s_cmp_eq_u32 s{S_G1}, 0
    s_cbranch_scc1 K_plain
    s_cmp_lg_u32 s{S_PASS}, 0
    s_cbranch_scc1 K_plain""")
    tail_gemm1(e)
    final(e)
    e.mark("cold")
    e("K_plain:")
    tail_plain(e)
    e(f"K_late:\nv_lshlrev_b32 v{FS.V_SD}, 4, v{V_LANE}")
    spin(e, FS.V_FD, FS.V_FA, 4)
    for g in FS.direct0("untracked") + FS.dma(1, "untracked") + FS.dma(2, "untracked"):
        for it in g: e.add(it)
    e("s_branch K_final")
    e("K_redo_u:\ns_waitcnt lgkmcnt(0)\ns_barrier")
    for it in g1_red_reads(): e.add(it)
    e("s_waitcnt lgkmcnt(0)")
    for it in gelu_items(G1.V_L16, 50): e.add(it)
    e("s_waitcnt lgkmcnt(0)\ns_barrier")
    for part in u_out(G1.V_L16, 50):
        for g in part:
            for it in g: e.add(it)
    e(f"""K_redo:
    s_mov_b32 s{S_PASS}, 1
    s_waitcnt vmcnt(0) lgkmcnt(0)
    s_barrier""")
    for it in signal(C_U, S_UG, V_T+8): e.add(it)
    QP.addr_dma(e, 40)
    e("s_branch K_start")
    KA2 = V_P+32
    e(f"K_truemax:\ns_mov_b32 s50, s{S_W4K}\ns_mov_b32 s51, 33")
    for k in range(4): e(f"v_add_u32 v{KA2+k}, {LDS_SP}, v{V_KA+k}")
    for qb in range(4): e(f"v_mov_b32 v{V_M+4*qb}, 0xff800000")
    e(f"K_mloop:\ns_and_b32 s50, s50, 0x7ffff\ns_add_u32 m0, s{S_W4K}, {LDS_SP}\ns_nop 0")
    for n in range(4): e(f"buffer_load_dwordx4 v{V_DM+(n&1)}, s[{S_K}:{S_K+3}], s50 offen offset:{1024*n} lds")
    e("s_add_u32 s50, s50, 16384\ns_waitcnt vmcnt(0)\ns_barrier")
    for it in k_reads(0, "fb", va=KA2): e.add(it)
    e("s_waitcnt lgkmcnt(0)\ns_barrier")
    for n in range(64):
        kb, qb, ks = n//16, (n//4) % 4, n % 4
        c = "0" if ks == 0 else vr(Sreg(kb,qb), 4)
        e(f"{MF} {vr(Sreg(kb,qb),4)}, {ar(Kreg(kb,ks),4)}, {vr(Qreg(qb,ks),4)}, {c}")
    e("s_nop 7")
    for kb in range(4):
        for qb in range(4):
            sx, m = Sreg(kb,qb), V_M+4*qb
            e(f"v_max3_f32 v{m}, v{m}, v{sx}, v{sx+1}\nv_max3_f32 v{m}, v{m}, v{sx+2}, v{sx+3}")
    e("s_sub_u32 s51, s51, 1\ns_cmp_lg_u32 s51, 0\ns_cbranch_scc1 K_mloop")
    for qb in range(4):
        m = V_M+4*qb
        xlane(e, m, m+1, "v_max_f32")
        e(f"v_sub_f32 v{m}, 0, v{m}\nv_mov_b32 v{m+1}, v{m}\nv_mov_b32 v{m+2}, v{m}\nv_mov_b32 v{m+3}, v{m}")
    for x in range(64): e(f"v_add_f32 v{V_S+x}, v{V_S+x}, v{V_M+4*((x//4)%4)}")
    for x in range(61): e(f"v_exp_f32 v{V_S+x}, v{V_S+x}")
    for x in range(0, 60, 2):
        kb, qb, r = x//16, (x//4) % 4, x % 4
        e(f"v_cvt_pk_bf16_f32 v{Preg(0,qb,kb//2)+2*(kb%2)+r//2}, v{V_S+x}, v{V_S+x+1}")
    e("s_nop 1\ns_branch K_it0")
    e("K_exit:\ns_endpgm\nK_last:")
    lines = resolve(e.items)
    i0, i1, i2 = (lines.index(("mark", m)) for m in ("loop0", "loop1", "loop2"))
    b1, b2 = lines[i0+1:i1], lines[i1+1:i2]
    assert b1 == b2, [(x, y) for x, y in zip(b1, b2) if x != y][:5]
    if ts and Ctx.fine == "l":
        b2 = b2 + ["s_memtime s[84:85]", "s_memrealtime s[86:87]", f"s_add_u32 s56, s{S_CNT}, 14", "s_waitcnt lgkmcnt(0)", "v_writelane_b32 v0, s84, s56" if False else "s_mov_b32 m0, s56", "s_nop 1", "v_writelane_b32 v0, s84, m0", "s_add_u32 m0, m0, 32", "s_nop 1", "v_writelane_b32 v0, s86, m0"]
    loop = [("mark", "a64"), "K_loop:"] + b2 + [f"s_sub_u32 s{S_CNT}, s{S_CNT}, 1", f"s_cmp_lg_u32 s{S_CNT}, 0", "s_cbranch_scc1 K_loop"]
    lines = lines[:i0] + loop + lines[i2+1:]
    lines = place_pages(lines)
    ref = open("recurrent_scan__mha_block_cached__mixer_token_mlp__prompt.s.ref").read().split("\n")
    head = [l for l in ref if l.startswith(";") and "@launch" not in l]
    out = head + [f"; @launch grid=(256,1,1) block=(256,1,1) lds={LDS_SZ}", '.amdgcn_target "amdgcn-amd-amdhsa--gfx950"', ".text"]
    out += lines + ['.section .rodata,"a"', kdesc(NAME, 512, 256, 102)]
    return "\n".join(out) + "\n"

if __name__ == "__main__":
    import os
    Ctx.touch = bool(os.environ.get("TOUCH"))
    if os.environ.get("OUT"):
        open(os.environ["OUT"], "w").write(gen(False)); sys.exit(0)
    open("f_nt.s", "w").write(gen(False))
    Ctx.fine = sys.argv[1] if len(sys.argv) > 1 else None
    open("f_ts.s", "w").write(gen(True))
```

```python
from asmlib import *
import math, sys

XN_OFF, HT_OFF, U_OFF, WOF_OFF, OF_OFF = 0x0, 0x280000, 0x500000, 0x800000, 0x1000000
PART_OFF = 0x2000000
WS_SZ = 0x4000000
TS_OFF = 0x4000000
NAME = "recurrent_scan__mha_block_cached__mixer_token_mlp__prompt_kernel"
MF = "v_mfma_f32_16x16x32_bf16"
V_LANE, V_KA, V_VA, V_DM, V_IDX, V_T, V_ONE = 1, 2, 6, 14, 16, 17, 28
V_PFA, V_PFD, V_PFL = 24, 25, 18
V_HPD, V_HPA, V_P1A, V_PHA = 20, 26, 27, 17
S_G1, S_P1, S_PH = 78, 79, 101
V_Q, V_S, V_P, V_M, V_L = 32, 96, 160, 224, 240
A_O, A_K, A_V = 0, 128, 192
S_K, S_V, S_WQ, S_WS, S_W1, S_B1, S_W2, S_WO, S_X, S_DBG, S_B2, S_OUT, S_CODE, S_TS = 4, 8, 12, 16, 20, 24, 28, 32, 36, 60, 64, 68, 72, 84
S_W4K, S_KOFF, S_VOFF, S_CNT, S_WAVE, S_PASS, S_OST, S_STATE, S_PF = 40, 41, 42, 43, 44, 45, 57, 58, 59
S_CPF = 3
S_QB, S_XCD, S_UG, S_SLOT, S_TAG = 80, 81, 82, 83, 88
LDS_K, LDS_V, LDS_SP, LDS_FLAG, LDS_SZ = 0, 65536, 131072, 98304, 163840
LAG = 10
NTQ = ""
SC = " sc1"

import os
OPT = dict(x.split('=') for x in os.environ.get('OPT', '').split(',') if x)
def opt(k, d): return type(d)(OPT.get(k, d))
class Ctx:
    ts = False
    touch = False
    fine = None
    uid = 0
def lab(p):
    Ctx.uid += 1
    return f"L{p}_{Ctx.uid}"
def R(t): return [("raw", x.strip()) for x in t.strip("\n").split("\n") if x.strip()]

def stamp(e, idx):
    if Ctx.ts:
        e(f"s_memtime s[84:85]\ns_memrealtime s[86:87]\ns_waitcnt lgkmcnt(0)\nv_writelane_b32 v0, s84, {idx}\nv_writelane_b32 v0, s86, {32+idx}")

FL_OFF = 0xE00000
C_XN, C_H, C_O, C_U, C_P = 0, 1, 2, 3, 4
def signal(kind, sg, t):
    l = lab("sig")
    if kind == C_H:
        st = f"v_mov_b32 v{t}, 1\nv_lshlrev_b32 v{t+1}, 4, v{t+1}\ns_mov_b64 exec, 1\nbuffer_atomic_add v{t}, v{t+1}, s[{S_DBG}:{S_DBG+3}], 0 offen offset:64 sc1"
    else:
        st = f"v_mov_b32 v{t}, s{S_TAG}\nv_lshlrev_b32 v{t+1}, 7, v{t+1}\nv_add_u32 v{t+1}, {FL_OFF+kind*32768}, v{t+1}\ns_mov_b64 exec, 1\nbuffer_store_dword v{t}, v{t+1}, s[{S_WS}:{S_WS+3}], 0 offen sc1"
    return R(f"""s_bitcmp1_b32 s{S_STATE}, {kind}
    s_cbranch_scc1 {l}
    s_bitset1_b32 s{S_STATE}, {kind}
    v_mov_b32 v{t+1}, s{sg}
    {st}
    s_mov_b64 exec, -1
    {l}:""")
def flag_addr(a, kind, sg, n):
    r = R(f"v_min_u32 v{a}, {n-1}, v{V_LANE}\nv_lshlrev_b32 v{a}, 7, v{a}")
    if sg is not None: r += R(f"s_lshl_b32 s56, s{sg}, 12\ns_add_u32 s56, s56, {FL_OFF+kind*32768}\nv_add_u32 v{a}, s56, v{a}")
    else: r += R(f"v_add_u32 v{a}, {FL_OFF+kind*32768}, v{a}")
    return r
def poll_ld(d, a, srd=None):
    srd = S_WS if srd is None else srd
    return [("vm", "poll", f"buffer_load_dword v{d}, v{a}, s[{srd}:{srd+3}], 0 offen sc1")]
def spin_items(*a, **k):
    t = Em(); spin(t, *a, **k); return t.items
def spin(e, d, a, sleep, have=False, cmp=None, srd=None):
    l0, l1 = lab("spin"), lab("spun")
    srd = S_WS if srd is None else srd
    cmp = cmp or f"v_cmp_ne_u32 vcc, s{S_TAG}, v{d}"
    if have: e(f"{cmp}\ns_cbranch_vccz {l1}")
    e(f"""s_mov_b32 s56, 0x40000
    {l0}:
    buffer_load_dword v{d}, v{a}, s[{srd}:{srd+3}], 0 offen sc1
    s_waitcnt vmcnt(0)
    {cmp}
    s_cbranch_vccz {l1}
    s_sleep {sleep}
    s_sub_u32 s56, s56, 1
    s_cmp_lg_u32 s56, 0
    s_cbranch_scc1 {l0}
    {l1}:""")

S_SEL = 100
def ppack(d, x):
    if opt('TR', 0): return f"v_perm_b32 v{d}, v{x+1}, v{x}, s{S_SEL}"
    return f"v_cvt_pk_bf16_f32 v{d}, v{x}, v{x+1}"
def Sreg(kb, qb): return V_S + 16*kb + 4*qb
def Preg(par, qb, t): return V_P + 32*par + 8*qb + 4*t
def Qreg(qb, ks): return V_Q + 16*qb + 4*ks
def Kreg(kb, ks): return A_K + 16*kb + 4*ks
def Vreg(db, t): return A_V + 8*db + 4*t
def Oreg(db, qb): return A_O + 16*db + 4*qb

def allreduce32(e, v, t):
    for k in (8, 4, 2, 1):
        e(f"s_nop 1\nv_add_f32_dpp v{v}, v{v}, v{v} row_ror:{k} row_mask:0xf bank_mask:0xf")
    e(f"v_mov_b32 v{t}, v{v}\ns_nop 1\nv_permlane16_swap_b32 v{t}, v{v}\ns_nop 1\nv_add_f32 v{v}, v{v}, v{t}")
def round_bf16(e, v): e(f"v_cvt_pk_bf16_f32 v{v}, v{v}, v{v}\nv_and_b32 v{v}, 0xffff0000, v{v}")
def unpack(e, src, dst, n, smask):
    for i in range(n): e(f"v_lshlrev_b32 v{dst+2*i}, 16, v{src+i}\nv_and_b32 v{dst+2*i+1}, s{smask}, v{src+i}")
def pk(op, d, a, b, bc=False):
    return f"v_pk_{op}_f32 {vr(d,2)}, {vr(a,2)}, {vr(b,2)}" + (" op_sel_hi:[1,0]" if bc else "")
def ln_finish(e, D, OUT, B, T=None):
    T = D if T is None else T
    for i in range(0, 20, 2): e(pk("mul", T+i, D+i, B, True))
    for i in range(10): e(f"v_cvt_pk_bf16_f32 v{OUT+i}, v{T+2*i}, v{T+2*i+1}")
def layernorm(e, X, D, OUT, A, smask, scale=None):
    B, T = A+2, A+4
    e(pk("add", A, X, X+2))
    for i in range(4, 20, 2): e(pk("add", A, A, X+i))
    e(f"v_add_f32 v{A}, v{A}, v{A+1}")
    allreduce32(e, A, T)
    e(f"v_mul_f32 v{A}, {fhex(-1.0/640)}, v{A}")
    for i in range(0, 20, 2): e(pk("add", D+i, X+i, A, True))
    e(pk("mul", B, D, D))
    for i in range(2, 20, 2): e(f"v_pk_fma_f32 {vr(B,2)}, {vr(D+i,2)}, {vr(D+i,2)}, {vr(B,2)}")
    e(f"v_add_f32 v{B}, v{B}, v{B+1}")
    allreduce32(e, B, T)
    e(f"v_mul_f32 v{B}, {fhex(1.0/640)}, v{B}")
    round_bf16(e, A); round_bf16(e, B)
    e(f"v_add_f32 v{B}, {fhex(1e-5)}, v{B}")
    round_bf16(e, B)
    e(f"v_sqrt_f32 v{B}, v{B}\ns_nop 0")
    round_bf16(e, B)
    e(f"v_rcp_f32 v{B}, v{B}")
    for i in range(0, 20, 2): e(pk("add", D+i, X+i, A, True))
    for i in range(10): e(f"v_cvt_pk_bf16_f32 v{OUT+i}, v{D+2*i}, v{D+2*i+1}")
    unpack(e, OUT, D, 10, smask)
    if scale is None: ln_finish(e, D, OUT, B)
    else:
        e(f"v_mul_f32 v{T}, {fhex(scale)}, v{B}")
        ln_finish(e, D, OUT, T, X)

def dma_kv(which, slot, tag):
    base = (LDS_K if which == "K" else LDS_V) + 16384*slot
    s, off = (S_K, S_KOFF) if which == "K" else (S_V, S_VOFF)
    m0 = ("raw", f"s_add_u32 m0, s{S_W4K}, {base}")
    d = [("vm", tag, f"buffer_load_dwordx4 v{V_DM+(n&1)}, s[{s}:{s+3}], s{off} offen offset:{1024*n}{opt('KVF', '').replace('_', ' ')} lds") for n in range(4)]
    inc = ("raw", f"s_add_u32 s{off}, s{off}, 16384")
    return m0, d, inc
def k_reads(slot, tag, kbase=A_K, va=V_KA):
    return [("ds", tag, f"ds_read_b128 {ar(Kreg(kb,ks)-A_K+kbase,4)}, v{va+ks} offset:{16384*slot+4096*kb}") for kb in range(4) for ks in range(4)]
def v_reads(slot, tag):
    return [("ds", (tag, db), f"ds_read_b64_tr_b16 {ar(Vreg(db,t)+2*hj,2)}, v{V_VA+db} offset:{16384*slot+4096*(2*t+hj)}")
            for db in range(8) for t in range(2) for hj in range(2)]

def attn_iter(e, i, do_qk=True, do_pv=True, first_pv=False, dma=True, wrap_in=True, extra=None, pf=False, endbar=True, late=None, sm_first=False, kbase=A_K, vnext=False, vpre=False):
    NG = 132
    mf = [None]*NG
    gaps = [[] for _ in range(NG)]
    par = i & 1
    if do_qk:
        for n in range(64):
            kb, qb, ks = n//16, (n//4) % 4, n % 4
            c = vr(V_M+4*qb, 4) if ks == 0 else vr(Sreg(kb,qb), 4)
            if opt('BZ', 1) and qb % 2: ks = 3-ks
            mf[n] = f"{MF} {vr(Sreg(kb,qb),4)}, {ar(Kreg(kb,ks)-A_K+kbase,4)}, {vr(Qreg(qb,ks),4)}, {c}"
    if do_pv:
        for m in range(64):
            db, qb, t = m//8, (m//2) % 4, m % 2
            c = "0" if (first_pv and t == 0) else None
            if opt('BZ', 1):
                if qb % 2: t = 1-t
                if db % 2: qb = 3-qb
            c = c or ar(Oreg(db,qb), 4)
            mf[64+m] = f"{MF} {ar(Oreg(db,qb),4)}, {vr(Preg(par,qb,t),4)}, {ar(Vreg(db,t),4)}, {c}"
        for qb in range(4):
            mf[128+qb] = f"v_smfmac_f32_16x16x64_bf16 {vr(V_L+4*qb,4)}, {vr(V_ONE,4)}, {vr(Preg(par,qb,0),8)}, v{V_IDX}"
        if sm_first: mf[64:132] = mf[128:132] + mf[64:128]
        elif opt('SM', 0) == 1: mf[64:132] = [x for k in range(4) for x in mf[64+16*k:80+16*k] + [mf[128+k]]]
        elif opt('SM', 0) == 2: mf[64:132] = mf[128:132] + mf[64:128]
        if not vpre:
            for j, it in enumerate(v_reads(i % 4, ("V", i))): gaps[1+2*j].append(it)
        gaps[63].append(("wait", None, (("V", i), 5)))
        gaps[75].append(("wait", None, (("V", i), 7)))
    if do_qk and dma != "nok":
        kpos = [65,69,71,73,77,79,81,85,87,89,93,95,97,101,103,105]
        for p, it in zip(kpos, k_reads((i+2) % 4, ("K", i+2))): gaps[p].insert(0, it)
    if dma is True:
        m0, d, inc = dma_kv("K", (i+5) % 4, ("D", i))
        gaps[6].append(m0)
        for j in range(4): gaps[67+8*j].insert(0, d[j])
        gaps[91].append(inc)
        m0, d, inc = dma_kv("V", (i+3) % 4, ("D", i))
        gaps[95].append(m0)
        for j in range(4): gaps[99+8*j].insert(0, d[j])
        gaps[123].append(inc)
    if pf:
        k = i % 4
        def ld(va, sp, so, d=V_PFL, fl=""): return ("vm", ("D", i), f"buffer_load_dword v{d}, v{va}, s[{sp}:{sp+3}], {so} offen{fl}")
        if k == 0 and opt('WM', 1):
            gaps[111].insert(0, ld(V_PFA, S_W2, f"s{S_PF}"))
            gaps[119].insert(0, ld(V_PFA, S_X, f"s{S_PF}"))
            gaps[119].append(("raw", f"s_add_u32 s{S_PF}, s{S_PF}, 1024"))
        if k == 1:
            gaps[6] += R(f"s_cmp_le_u32 s{S_CNT}, 3\ns_cselect_b32 s56, 0, 256")
            gaps[8].insert(0, ld(V_HPA, S_DBG, "s56", V_HPD, " sc1"))
            gaps[111] += R(f"s_cmp_le_u32 s{S_CNT}, 2\ns_cselect_b32 s56, s{S_P1}, {0x1000000}")
            gaps[119].insert(0, ld(V_P1A, S_W1, "s56"))
            gaps[119].append(("raw", f"s_sub_u32 s{S_P1}, s{S_P1}, {8*3456}"))
        if k == 2 and opt('CP', 1):
            gaps[111] += R(f"s_cmp_eq_u32 s{S_CNT}, 2\ns_cselect_b32 s56, s{S_CPF}, {0x1000000}")
            gaps[119].insert(0, ld(V_PFA, S_CODE, "s56"))
        if k == 0 and i > 0:
            gaps[109].insert(0, ("raw", f"v_cmp_gt_u32 vcc, 32, v{V_HPD}"))
            gaps[113] = R(f"s_cmp_eq_u64 vcc, 0\ns_cselect_b32 s56, s{S_PH}, {WS_SZ}") + gaps[113]
            gaps[121] = R(f"s_cmp_ge_u32 s{S_CNT}, 2\ns_cselect_b32 s56, s56, {WS_SZ}") + gaps[121]
        if k == 0:
            if i == 0: gaps[121].insert(0, ("raw", f"s_mov_b32 s56, {WS_SZ}"))
            hp_ = 125 if opt('WP', 127) != 131 else 127
            gaps[hp_].insert(0, ("vm", ("D", i+1), f"buffer_load_dword v{V_PFL}, v{V_PHA}, s[{S_WS}:{S_WS+3}], s56 offen"))
            gaps[8].append(("raw", f"s_sub_u32 s{S_PH}, s{S_PH}, 5120"))
    if extra:
        for pos, grp in extra: gaps[pos] = list(grp) + gaps[pos]
    if vnext:
        for j, it in enumerate(v_reads((i+1) % 4, ("V", i+1))): gaps[73+2*j if j < 28 else 100+j].insert(0, it)
    if late:
        for pos, grp in late: gaps[pos] += list(grp)
    def expi(x): return ("raw", f"v_exp_f32 v{V_S+x}, v{V_S+x}")
    def cvti(c, p):
        x = 2*c; kb, qb, r = x//16, (x//4) % 4, x % 4
        return ("raw", ppack(Preg(p,qb,kb//2)+2*(kb%2)+r//2, V_S+x))
    for x in range(64):
        n = 2*x + LAG
        if n < NG:
            if do_qk: gaps[n].append(expi(x))
        elif wrap_in: gaps[n-NG].append(expi(x))
    for c in range(32):
        n = 4*c + LAG + 3
        if n < NG:
            if do_qk: gaps[n].append(cvti(c, par ^ 1))
        elif wrap_in: gaps[n-NG].append(cvti(c, par))
    if do_qk and endbar:
        wp, bp = (opt('WP', 127), opt('BP', 127)) if dma is True else (131, 131)
        if endbar is True:
            vt = ("D", i-2) if dma is True else "poll"
            gaps[wp].insert(0, ("wait", vt, "ALL"))
        if wp == bp: gaps[bp].insert(1 if endbar is True else 0, ("raw", "s_barrier"))
        else: gaps[bp].insert(0, ("raw", "s_barrier"))
    if pf and i > 0 and i % 4 == 0 and opt('LB', 1):
        gaps[129] = R(f"s_sub_u32 s{S_CNT}, s{S_CNT}, 1") + gaps[129]
    for n in range(NG):
        if mf[n] is not None: e(mf[n])
        elif gaps[n]: e("s_nop 0")
        for it in gaps[n]: e.add(it)

def xlane(e, v, t, op):
    e(f"v_mov_b32 v{t}, v{v}\ns_nop 1\nv_permlane16_swap_b32 v{t}, v{v}\ns_nop 1\n{op} v{v}, v{v}, v{t}")
    e(f"v_mov_b32 v{t}, v{v}\ns_nop 1\nv_permlane32_swap_b32 v{t}, v{v}\ns_nop 1\n{op} v{v}, v{v}, v{t}")

K1B = A_O+64
class QP:
    V_WD, V_WA, V_XO = V_T, V_T+2, V_T+6
    V_WL, V_OD, V_OA, V_OF = V_Q, V_Q+4, V_Q+9, V_Q+12
    S_WOFF, S_XOFF, S_TMP, S_WOS, S_WOD = 46, 47, 48, 76, 77
    @staticmethod
    def slot(j): return (j+6) % 8
    @classmethod
    def addr_dma(c, e, T):
        e(f"""v_lshrrev_b32 v{T}, 4, v{V_LANE}
        v_and_b32 v{T+1}, 15, v{V_LANE}
        v_lshlrev_b32 v{T+2}, 1, v{T}
        v_xor_b32 v{T+1}, v{T+1}, v{T+2}
        v_lshlrev_b32 v{T+1}, 4, v{T+1}
        v_lshl_add_u32 v{c.V_WD}, v{T}, 13, v{T+1}
        v_xor_b32 v{c.V_WD+1}, 128, v{c.V_WD}
        s_lshl_b32 s{c.S_WOFF}, s{S_WAVE}, 17
        s_lshl_b32 s{S_W4K}, s{S_WAVE}, 12""")
    @classmethod
    def wq_dma(c, j):
        r = [R(f"s_add_u32 m0, s{S_W4K}, {16384*c.slot(j)}")]
        for n in range(4):
            r.append([("raw", f"s_add_u32 s{c.S_TMP}, s{c.S_WOFF}, {j*64*8192+n*32768-1024*n}"),
                      ("vm", ("W", j), f"buffer_load_dwordx4 v{c.V_WD+(n&1)}, s[{S_WQ}:{S_WQ+3}], s{c.S_TMP} offen offset:{1024*n} lds")])
        return r
    @classmethod
    def wq_tiles(c, e, t0, t1):
        for j in range(t0, t1):
            for g in c.wq_dma(j):
                for it in g: e.add(it)
    @staticmethod
    def Wreg(j, a, t): return (A_K if j % 2 == 0 else A_V) + 8*a + 4*t
    @classmethod
    def w_reads(c, j):
        sl = c.slot(j)
        va = c.V_WL if sl < 4 else c.V_WA
        return [("ds", ("Wr", j), f"ds_read_b64_tr_b16 {ar(c.Wreg(j,a,t)+2*hj,2)}, v{va+a//2} offset:{16384*(sl%4)+4096*(2*t+hj)+8*(a&1)}")
                for a in range(8) for t in range(2) for hj in range(2)]

def qproj(e, bulk):
    c = QP
    V_XO, S_XOFF, S_TMP = c.V_XO, c.S_XOFF, c.S_TMP
    ACC = V_S
    WSR = f"s[{S_WS}:{S_WS+3}]"
    def Xreg(j, qb, t): return A_O + 32*(j % 4) + 8*qb + 4*t
    def xn_ld(j):
        r = []
        for qb in range(4):
            r.append([("raw", f"s_add_u32 s{S_TMP+1}, s{S_XOFF}, {qb*20480+j*2048}"),
                      ("vm", ("X", j), f"buffer_load_dwordx4 {ar(Xreg(j,qb,0),4)}, v{V_XO}, {WSR}, s{S_TMP+1} offen{SC}")])
            r.append([("vm", ("X", j), f"buffer_load_dwordx4 {ar(Xreg(j,qb,1),4)}, v{V_XO}, {WSR}, s{S_TMP+1} offen offset:1024{SC}")])
        return r
    def kv(which, tile, tag):
        m0, d, inc = dma_kv(which, tile % 4, tag)
        return [[m0], [d[0]], [d[1]], [d[2]], [d[3], inc]]
    wo_dma = []
    for n in range(5):
        wo_dma += [R(f"s_lshl_b32 s{S_TMP}, s{S_WAVE}, 13\ns_add_u32 m0, s{S_TMP}, {LDS_SP+1024*n}"),
                   [("vm", "wo", f"buffer_load_dwordx4 v{c.V_OD+n}, s[{S_WO}:{S_WO+3}], s{c.S_WOS} offen lds")]]
    hs = [[("vm", "hs", f"buffer_store_dwordx4 v[{76+4*n}:{79+4*n}], v88, {WSR}, s{50+n} offen{SC}")] for n in range(3)]
    misc = [("raw", f"v_mov_b32 v{V_L+k}, 0") for k in range(16)]
    misc += R(f"""v_and_b32 v{V_HPA}, 7, v{V_LANE}
    v_min_u32 v{V_P1A}, 6, v{V_HPA}
    v_lshlrev_b32 v{V_P1A}, 7, v{V_P1A}
    v_lshrrev_b32 v{V_PHA}, 3, v{V_LANE}
    v_mul_u32_u24 v{V_PHA}, 3456, v{V_PHA}
    v_add_u32 v{V_P1A}, v{V_P1A}, v{V_PHA}
    v_lshlrev_b32 v{V_HPA}, 4, v{V_HPA}
    v_add_u32 v{V_HPA}, 64, v{V_HPA}
    v_min_u32 v{V_PHA}, 39, v{V_LANE}
    v_lshlrev_b32 v{V_PHA}, 7, v{V_PHA}
    v_lshrrev_b32 v{V_PFD}, 2, v{V_LANE}
    v_mul_u32_u24 v{V_PFD}, 160, v{V_PFD}
    v_and_b32 v{V_PFL}, 3, v{V_LANE}
    v_lshl_add_u32 v{V_PFD}, v{V_PFL}, 3, v{V_PFD}
    s_lshl_b32 s53, s{S_WAVE}, 13
    s_add_u32 s53, s53, {LDS_SP}
    v_add_u32 v{V_PFD}, s53, v{V_PFD}
    s_lshr_b32 s53, s2, 3
    s_lshl_b32 s53, s53, 2
    s_add_u32 s53, s53, s{S_WAVE}
    s_mul_i32 s{S_P1}, s53, {16*3456}
    s_lshr_b32 s54, s{S_XCD}, 1
    s_mul_i32 s54, s54, 896
    s_add_u32 s{S_P1}, s{S_P1}, s54
    s_add_u32 s{S_P1}, s{S_P1}, {6*8*3456}
    s_mul_i32 s{S_PH}, s53, 10240
    s_and_b32 s54, s{S_XCD}, 1
    s_mul_i32 s54, s54, {20*65536}
    s_add_u32 s{S_PH}, s{S_PH}, s54
    s_add_u32 s{S_PH}, s{S_PH}, {HT_OFF+7*5120}""")
    for k, grp in enumerate(xn_ld(0)):
        for it in grp: e.add(("vm", ("X0", k//2), it[2]) if it[0] == "vm" else it)
    x1 = xn_ld(1) + [g for j in range(opt('NT', 8), 8) for g in c.wq_dma(j)]
    stp = max(2, min(8, (len(bulk)-16)//len(x1)))
    for k, it in enumerate(bulk):
        if k % stp == stp-1 and x1 and not bulk[k][1] in ('s_barrier',):
            for x in x1.pop(0): e.add(x)
        e.add(it)
    assert not x1
    def tmf(j, a, qb, t, flip=False):
        d = vr(ACC+16*a+4*qb, 4)
        cc = "0" if (j == 0 and t == 0) else d
        if flip and opt('BZ', 1): t = 1-t
        return f"{MF} {d}, {ar(c.Wreg(j,a,t),4)}, {ar(Xreg(j,qb,t),4)}, {cc}"
    for j in range(9):
        if j == 0: e.wait(("X0", 3), ("W0", 0))
        else: e.wait(("X", j), "ALL")
        if j in ((1, 3, 7) if opt('START', 0) else (1, 4, 7)): e("s_barrier")
        if Ctx.fine == "q": stamp(e, 14+j)
        grps = []
        XD = opt('XD', 3)
        if j == 1: grps += c.wq_dma(8)
        if j == 2: grps += c.wq_dma(9)
        if XD == 2:
            if j+2 < 10: grps += xn_ld(j+2)
        else:
            if j == 0: xq = [g for t in range(2, 10) for g in xn_ld(t)]
            n = 10 if j < 4 else 8
            grps += xq[:n]; xq = xq[n:]
        if j == 4: grps += kv("K", 0, "K0")
        if j == 5: grps += kv("K", 1, "K1")
        if j == 1: grps += [[("ds", "hr", f"ds_read_b64_tr_b16 v[{76+4*n+2*hj}:{76+4*n+2*hj+1}], v89 offset:{512*n+5120*hj}")] for n in range(3) for hj in range(2)]
        if 2 <= j <= 3: grps += hs[:1] if j == 2 else hs[1:]
        if j == 6: grps += kv("K", 2, ("D", -3))
        if j == 7: grps += wo_dma
        if j == 8: grps += kv("V", 0, ("D", -3)) + kv("K", 3, ("D", -2))
        rd = c.w_reads(j+1)
        if j == 0: rd = [("ds", ("W0", 2+k//4), it[2]) for k, it in enumerate(c.w_reads(0)[8:])] + rd
        gaps = [[] for _ in range(64)]
        for k, it in enumerate(rd): gaps[(k*56)//len(rd)].append(it)
        free = [n for n in range(62) if not gaps[n] or j == 0]
        busy = [n for n in range(62) if gaps[n]]
        for k, grp in enumerate(grps): gaps[free[(k*len(free))//max(len(grps),1)]] += grp
        if j in (4, 6):
            for k, it in enumerate(misc[:24] if j == 4 else misc[24:]): gaps[busy[k]].append(it)
        if j == 0:
            for a in (1, 2, 4): gaps[8*a-1].append(("wait", None, ("W0", {1: 1, 2: 3, 4: 7}[a])))
        for m in range(64):
            a, qb, t = m//8, (m//2) % 4, m % 2
            if a % 2 and opt('BZ', 1): qb = 3-qb
            e(tmf(j, a, qb, t, (m//2) % 2 == 1))
            for it in gaps[m]: e.add(it)
    e(f"s_mov_b32 s{S_SEL}, 0x07060302")
    e.wvm("K1")
    e.wait(("X", 9), "ALL"); e("s_barrier")
    stamp(e, 4)
    order = [("T",0),("T",1),("M",0),("T",2),("M",1),("T",3),("M",2),("S",0),("M",3),("S",1),("S",2),("S",3)]
    mf = []; start = {}
    for kind, qb in order:
        start[(kind, qb)] = len(mf)
        if kind == "T": mf += [tmf(9, a, qb, t, a % 2 == 1) for a in range(8) for t in range(2)]
        for kb in ([0] if kind == "M" else range(4) if kind == "S" else []):
            for ks in range(4):
                cc = vr(Sreg(kb,qb), 4) if ks else ("0" if kind == "M" else vr(V_M+4*qb, 4))
                mf.append(f"{MF} {vr(Sreg(kb,qb),4)}, {ar(Kreg(kb,ks),4)}, {vr(Qreg(qb,ks),4)}, {cc}")
    NG = len(mf)
    gaps = [[] for _ in range(NG+1)]
    for k, it in enumerate(k_reads(0, ("K", 0)) + k_reads(1, ("K", 1), kbase=K1B)): gaps[k].append(it)
    gaps[31].append(("wait", None, ("K", 0)))
    gaps[41] += [("wait", None, "ALL"), ("raw", "s_barrier")]
    if opt('START', 0):
        for k, g in enumerate(kv("K", 3, ("D", -2))): gaps[2*k] += g
    for k, g in enumerate(kv("V", 1, ("D", -2))): gaps[32+2*k] += g
    for k, g in enumerate(kv("K", 4, ("D", -1)) + kv("V", 2, ("D", -1))): gaps[43+4*k] += g
    for qb in range(4):
        for a in range(8):
            r = ACC+16*a+4*qb; q = Qreg(qb, a//2) + 2*(a & 1); g = start[("T", qb)]+2*a+1+8
            gaps[g].append(("raw", f"v_cvt_pk_bf16_f32 v{q}, v{r}, v{r+1}"))
            gaps[g+1].append(("raw", f"v_cvt_pk_bf16_f32 v{q+1}, v{r+2}, v{r+3}"))
        sx, m = Sreg(0,qb), V_M+4*qb; g = start[("M", qb)]+3+8
        for o, t in ((0, f"v_max3_f32 v{m}, v{sx}, v{sx+1}, v{sx+2}"), (1, f"v_max_f32 v{m}, v{m}, v{sx+3}"), (2, f"v_mov_b32 v{m+1}, v{m}"),
                     (4, f"v_permlane16_swap_b32 v{m+1}, v{m}"), (6, f"v_max_f32 v{m}, v{m}, v{m+1}"), (7, f"v_mov_b32 v{m+1}, v{m}"),
                     (9, f"v_permlane32_swap_b32 v{m+1}, v{m}"), (11, f"v_max_f32 v{m}, v{m}, v{m+1}"), (12, f"v_sub_f32 v{m}, 0, v{m}"),
                     (13, f"v_mov_b32 v{m+1}, v{m}"), (14, f"v_mov_b32 v{m+2}, v{m}"), (15, f"v_mov_b32 v{m+3}, v{m}")):
            gaps[g+o].append(("raw", t))
        assert g+15+2 < start[("S", qb)]
    ex = [(start[("S", qb)]+4*kb+3+8, 16*kb+4*qb+r) for qb in range(4) for kb in range(4) for r in range(4) if 16*kb+4*qb+r < 61]
    cv = []
    def cvt0(x):
        kb, qb, r = x//16, (x//4) % 4, x % 4
        return ("raw", ppack(Preg(0,qb,kb//2)+2*(kb%2)+r//2, V_S+x))
    for g in range(NG):
        room = 2-len(gaps[g])
        if room == 2 and ex and ex[0][0] <= g and len(cv) < 2:
            x = ex.pop(0)[1]
            gaps[g].append(("raw", f"v_exp_f32 v{V_S+x}, v{V_S+x}"))
            if x % 2: cv.append((g+1, x-1))
        else:
            while room > 0 and cv and cv[0][0] <= g:
                gaps[g].append(cvt0(cv.pop(0)[1])); room -= 1
    assert len(ex) >= 9
    for _, x in ex:
        gaps[NG].append(("raw", f"v_exp_f32 v{V_S+x}, v{V_S+x}"))
        if x % 2: cv.append((0, x-1))
    gaps[NG] += [cvt0(x) for _, x in cv]
    for g in range(NG+1):
        if g < NG: e(mf[g])
        for it in gaps[g]: e.add(it)
    e.wvm(("D", -3)); e("s_barrier")

class G1:
    S_FB, S_DT, S_A, S_B, S_T, S_LB = 46, 47, 48, 49, 50, 53
    V_WD, V_WA, V_L16, V_B1 = 14, 2, 15, 18
    @staticmethod
    def acc(fb, db):
        k = 5*fb+db
        return V_S+4*k if k < 16 else V_M+4*(k-16)
    @staticmethod
    def H(p, db, t):
        s, k = p % 3, 2*db+t
        if s == 0: return ar(A_K+4*k, 4)
        if s == 1: return ar(A_K+40+4*k, 4) if k < 6 else vr(V_Q+4*(k-6), 4)
        return ar(A_V+4*k, 4)
    @staticmethod
    def W(p, fb, t): return V_P + 32*(p % 2) + 8*fb + 4*t
    V_WH = 6
    @staticmethod
    def reg(p): return LDS_SP if p == 0 else 32768*(p % 3)
    @classmethod
    def setup1(c):
        T = V_T+3
        return R(f"""s_and_b32 s{c.S_FB}, s{S_UG}, 31
        s_lshr_b32 s{c.S_DT}, s{S_UG}, 5
        s_lshl_b32 s{c.S_LB}, s{S_WAVE}, 13
        s_mul_i32 s{c.S_A}, s{S_WAVE}, {512*3456}
        s_lshl_b32 s{c.S_T+1}, s{c.S_FB}, 7
        s_add_u32 s{c.S_A}, s{c.S_A}, s{c.S_T+1}
        s_mul_i32 s{c.S_B}, s{c.S_DT}, {5*65536}
        s_lshl_b32 s{c.S_T+1}, s{S_WAVE}, 14
        s_add_u32 s{c.S_B}, s{c.S_B}, s{c.S_T+1}
        v_lshrrev_b32 v{T}, 3, v{V_LANE}
        v_and_b32 v{T+1}, 7, v{V_LANE}
        v_and_b32 v{T+2}, 6, v{T}
        v_xor_b32 v{T+1}, v{T+1}, v{T+2}
        v_mul_u32_u24 v{T}, 3456, v{T}
        v_lshl_add_u32 v{c.V_WD}, v{T+1}, 4, v{T}
        v_lshlrev_b32 v{c.V_L16}, 4, v{V_LANE}""")
    @classmethod
    def setup2(c):
        T = V_T+3
        L = f"""v_lshrrev_b32 v{T}, 2, v{V_LANE}
        v_and_b32 v{T+2}, 6, v{T}
        v_bfe_u32 v{T+1}, v{V_LANE}, 1, 1
        v_xor_b32 v{T+1}, v{T+1}, v{T+2}
        v_lshlrev_b32 v{T+1}, 4, v{T+1}
        v_lshl_add_u32 v{T+1}, v{T}, 7, v{T+1}
        v_and_b32 v{T+2}, 1, v{V_LANE}
        v_lshl_add_u32 v{T+1}, v{T+2}, 3, v{T+1}
        v_add_u32 v{T+1}, s{c.S_LB}, v{T+1}"""
        for fb in range(4):
            L += f"""
            s_add_u32 s{c.S_T}, s{S_WAVE}, {fb}
            s_and_b32 s{c.S_T}, s{c.S_T}, 3
            s_lshl_b32 s{c.S_T}, s{c.S_T}, 5
            v_xor_b32 v{c.V_WA+fb}, s{c.S_T}, v{T+1}"""
        L += f"""
        v_lshrrev_b32 v{T}, 4, v{V_LANE}
        v_lshlrev_b32 v{T}, 3, v{T}
        s_lshl_b32 s{c.S_T}, s{c.S_FB}, 2
        s_add_u32 s{c.S_T}, s{c.S_T}, s{S_WAVE}
        s_lshl_b32 s{c.S_T}, s{c.S_T}, 5"""
        r = R(L)
        r.append(("vm", "b1", f"buffer_load_dwordx2 v[{c.V_B1}:{c.V_B1+1}], v{T}, s[{S_B1}:{S_B1+3}], s{c.S_T} offen"))
        return r
    @classmethod
    def sethi(c, off): return [("raw", f"v_add_u32 v{c.V_WH+fb}, {off}, v{c.V_WA+fb}") for fb in range(4)]
    @classmethod
    def wl(c, p):
        r = []
        for n in range(8):
            g = R(f"s_add_u32 m0, s{c.S_LB}, {c.reg(p)+1024*n}") if n % 4 == 0 else []
            g += [("raw", f"s_add_u32 s{c.S_T+1}, s{c.S_A}, {(64*p+8*n)*3456-1024*(n%4)}"),
                  ("vm", ("w", p), f"buffer_load_dwordx4 v{c.V_WD}, s[{S_W1}:{S_W1+3}], s{c.S_T+1} offen offset:{1024*(n%4)} lds")]
            r.append(g)
        return r
    @classmethod
    def hl(c, p):
        r = []
        for db in range(5):
            r.append([("raw", f"s_add_u32 s{c.S_T+2}, s{c.S_B}, {HT_OFF+db*65536+p*2048}"),
                      ("vm", ("h", p), f"buffer_load_dwordx4 {c.H(p,db,0)}, v{c.V_L16}, s[{S_WS}:{S_WS+3}], s{c.S_T+2} offen{SC}")])
            r.append([("vm", ("h", p), f"buffer_load_dwordx4 {c.H(p,db,1)}, v{c.V_L16}, s[{S_WS}:{S_WS+3}], s{c.S_T+2} offen offset:1024{SC}")])
        return r
    @classmethod
    def reads(c, p):
        va, o = (c.V_WA, c.reg(p)) if c.reg(p) < 65536 else (c.V_WH, 0)
        return [("ds", ("r", p), f"ds_read_b64_tr_b16 {vr(c.W(p,fb,t)+2*hj,2)}, v{va+fb} offset:{o+2048*(2*t+hj)}")
                for fb in range(4) for t in range(2) for hj in range(2)]

def o_frag_items(k, tmp, pkr, va):
    qb, t = k//4, k % 4
    r = [("raw", f"v_accvgpr_read_b32 v{tmp+j}, a{Oreg(2*t+j//4,qb)+j%4}") for j in range(8)]
    r += [("raw", f"v_mul_f32 v{tmp+j}, v{tmp+j}, v{V_L+4*qb}") for j in range(8)]
    r += [("raw", f"v_cvt_pk_bf16_f32 v{pkr+j}, v{tmp+2*j}, v{tmp+2*j+1}") for j in range(4)]
    r.append(("vm", "o", f"buffer_store_dwordx4 {vr(pkr,4)}, v{va}, s[{S_WS}:{S_WS+3}], s{S_OST} offen offset:{1024*t}{SC}"))
    if t == 3: r.append(("raw", f"s_add_u32 s{S_OST}, s{S_OST}, 0x20000"))
    return r

def rowsum_items():
    ch = []
    for qb in range(4):
        l = V_L+4*qb
        ch.append([f"v_add_f32 v{l}, v{l}, v{l+1}", f"v_mov_b32 v{l+1}, v{l}", f"v_permlane16_swap_b32 v{l+1}, v{l}", f"v_add_f32 v{l}, v{l}, v{l+1}",
                   f"v_mov_b32 v{l+1}, v{l}", f"v_permlane32_swap_b32 v{l+1}, v{l}", f"v_add_f32 v{l}, v{l}, v{l+1}"])
    r = [("raw", ch[qb][k]) for k in range(7) for qb in range(4)]
    L = V_L
    r += R(f"""s_mov_b32 s56, {fhex(2.0**40)}
    v_cmp_nge_f32 s[54:55], s56, v{L}
    v_cmp_nge_f32 vcc, s56, v{L+4}
    s_or_b64 s[54:55], s[54:55], vcc
    v_cmp_nge_f32 vcc, s56, v{L+8}
    s_or_b64 s[54:55], s[54:55], vcc
    v_cmp_nge_f32 vcc, s56, v{L+12}
    s_or_b64 s[54:55], s[54:55], vcc
    v_rcp_f32 v{L}, v{L}
    s_or_b32 s54, s54, s55
    v_rcp_f32 v{L+4}, v{L+4}
    s_lshl_b32 s55, s{S_WAVE}, 2
    v_rcp_f32 v{L+8}, v{L+8}
    s_add_u32 s55, s55, {LDS_FLAG}
    v_rcp_f32 v{L+12}, v{L+12}
    v_mov_b32 v{L+1}, s55
    v_mov_b32 v{L+2}, s54
    v_and_b32 v{V_IDX}, 48, v{V_LANE}""")
    r.append(("ds", "flw", f"ds_write_b32 v{L+1}, v{L+2}"))
    return r
def linv_items():
    return [("ds", "li", f"ds_bpermute_b32 v{V_L+4*qb+r}, v{V_IDX}, v{V_L+4*qb} offset:{4*r}") for qb in range(4) for r in (3, 2, 1, 0)]
def o_sel(e, st):
    SEL, TMP = 18, 48
    e(f"""v_and_b32 v{TMP}, 15, v{V_LANE}
    v_lshrrev_b32 v{TMP+1}, 4, v{V_LANE}
    v_lshlrev_b32 v{TMP+1}, 2, v{TMP+1}
    v_sub_u32 v{TMP}, v{TMP}, v{TMP+1}
    v_mov_b32 v{TMP+2}, 0x3f80
    v_mov_b32 v{TMP+3}, 0x3f800000
    v_cmp_eq_u32 vcc, 0, v{TMP}
    v_mov_b32 v{SEL}, 0
    v_mov_b32 v{SEL+1}, 0
    v_cndmask_b32 v{SEL+2}, 0, v{TMP+2}, vcc
    v_cmp_eq_u32 vcc, 1, v{TMP}
    v_mov_b32 v{SEL+4}, 0
    v_mov_b32 v{SEL+5}, 0
    v_cndmask_b32 v{SEL+2}, v{SEL+2}, v{TMP+3}, vcc
    v_cmp_eq_u32 vcc, 2, v{TMP}
    s_add_u32 s{st}, s{S_OST}, 0x20000
    s_add_u32 s{st+1}, s{S_OST}, 0x40000
    v_cndmask_b32 v{SEL+3}, 0, v{TMP+2}, vcc
    v_cmp_eq_u32 vcc, 3, v{TMP}
    s_add_u32 s{S_PF}, s{S_OST}, 0x60000
    s_nop 0
    v_cndmask_b32 v{SEL+3}, v{SEL+3}, v{TMP+3}, vcc""")
def o_block(e, va, st):
    SEL, PKA, TMP, DD = 18, 24, 48, 64
    so = [S_OST, st, st+1, S_PF]
    def front(u):
        t, qp = (u//2, u % 2) if opt('UO', 0) == 0 else (u % 4, u//4)
        for h in range(2):
            for q in range(2):
                o = Oreg(2*t+h, 2*qp+q); x = TMP+8*h+4*q
                for r in range(4): e(f"v_accvgpr_read_b32 v{x+r}, a{o+r}")
        if u: back(u-1, 0)
        for h in range(2):
            for q in range(2):
                x = TMP+8*h+4*q; l = V_L+4*(2*qp+q)
                for r in range(4): e(f"v_mul_f32 v{x+r}, v{x+r}, v{l+r}")
        for j in range(8): e(f"v_cvt_pk_bf16_f32 v{PKA+j}, v{TMP+2*j}, v{TMP+2*j+1}")
        if u: back(u-1, 1)
        else: e("s_nop 0")
        for q in range(2):
            for h in range(2):
                e(f"{MF} {vr(DD+16*(u%2)+8*q+4*h,4)}, {vr(PKA+4*h,4)}, {vr(SEL+2-2*q,4)}, 0")
    def back(u, q):
        t, qp = (u//2, u % 2) if opt('UO', 0) == 0 else (u % 4, u//4)
        x = DD+16*(u % 2)+8*q
        for j in range(4): e(f"v_cvt_pk_bf16_f32 v{x+j}, v{x+2*j}, v{x+2*j+1}")
        e.vm("o", f"buffer_store_dwordx4 {vr(x,4)}, v{va}, s[{S_WS}:{S_WS+3}], s{so[2*qp+q]} offen offset:{1024*t}{SC}")
    for u in range(8): front(u)
    e("s_nop 7")
    back(7, 0); back(7, 1)
def flag_read(t):
    return R(f"v_mov_b32 v{t}, {LDS_FLAG}") + [("ds", "fl", f"ds_read_b128 {vr(t+1,4)}, v{t}")]
def flag_eval(t):
    return [("wait", None, "fl")] + R(f"v_or3_b32 v{t+1}, v{t+1}, v{t+2}, v{t+3}\nv_or_b32 v{t+1}, v{t+1}, v{t+4}\ns_nop 0\nv_readfirstlane_b32 s{S_REDO}, v{t+1}\ns_nop 3")

S_REDO, S_LATE = 55, 54
def tail_gemm1(e):
    c = G1
    VN = bool(opt('VN', 1))
    w = c.wl(1)+c.wl(2)
    late30 = list(zip(range(3, 64, 4), w))
    h = c.hl(0)+c.hl(1)+c.hl(2)
    ex30 = list(zip(range(67, 131, 4), h[:16]))
    su = c.setup2()
    late30 += [(65+4*(k//2), [it]) for k, it in enumerate(su)]
    attn_iter(e, 10, dma="nok", extra=ex30, endbar="bar", late=late30, vnext=VN)
    ex31 = [(65+4*k, g) for k, g in enumerate(h[16:20])] + [(81+4*k, g) for k, g in enumerate(h[20:])]
    late31 = [(64+k, [it]) for k, it in enumerate(c.sethi(LDS_SP))] + [(70, [("wait", ("w", 0), None)])] + [(71+4*k if k < 15 else 129, [it]) for k, it in enumerate(c.reads(0))]
    B = c.V_B1
    ob = Em()
    for it in rowsum_items() + linv_items(): ob.add(it)
    ob.wvm("b1")
    ob(f"v_lshlrev_b32 v10, 16, v{B}\nv_and_b32 v11, 0xffff0000, v{B}\nv_lshlrev_b32 v12, 16, v{B+1}\nv_and_b32 v13, 0xffff0000, v{B+1}")
    o_sel(ob, 76)
    ob.wds("li")
    o_block(ob, c.V_L16, 76)
    oi = ob.items
    used = {}
    for pos, g in ex31 + late31: used[pos] = used.get(pos, 0) + 1
    for g in range(73, 132):
        n = opt('ON', 3) - used.get(g, 0)
        late31.append((g, oi[:n])); oi = oi[n:]
    attn_iter(e, 11, do_qk=False, dma=False, extra=ex31, late=late31, sm_first=True, vpre=VN)
    stamp(e, 7)
    assert not any(it[0] == "wait" for it in oi)
    oi = c.sethi(65536) + oi
    ocut = [0, (len(oi)*opt('OC', 50))//100, (len(oi)*opt('OD', 100))//100, len(oi)]
    TMP = V_T+3
    PSIG = opt('PSIG', 3)
    PC = opt('PC', 6)
    fsu = FS.setup(c.S_T, 56, 76)
    sq = FS.direct0() + FS.dma(1) + FS.dma(2)
    for p in range(8):
        if p == PC:
            e.wvm("poll")
            e(f"v_cmp_ne_u32 vcc, s{S_TAG}, v{FS.V_FD}\ns_nop 1\ns_cmp_lg_u64 vcc, 0\ns_cselect_b32 s{S_LATE}, {WS_SZ}, 0\nv_add_u32 v{FS.V_SD}, s{S_LATE}, v{FS.V_SD}")
        if p < 7: e.wvm(("w", p+1))
        e.wvm(("h", p))
        if p == PSIG: e.wvm("o")
        e.wds("ALL" if p == 0 else ("r", p))
        if Ctx.fine == "g": stamp(e, 14+p)
        gaps = [[] for _ in range(40)]
        if p == PSIG: gaps[0] += R("s_barrier") + flag_read(23)
        if p == 6: gaps[0] += R("s_barrier")
        if p < 7:
            for k, it in enumerate(c.reads(p+1)): gaps[2*k].append(it)
        if p == PC-1: gaps[opt('PG', 0)] += poll_ld(FS.V_FD, FS.V_FA)
        lds_ = (c.hl(p+2) if 1 <= p <= 5 else []) + (c.wl(p+3) if p <= 4 else [])
        for k, grp in enumerate(lds_): gaps[2*k+1 if len(lds_) > 10 else 4*k+1] += grp
        if p < 3:
            part = oi[ocut[p]:ocut[p+1]]
            for k, it in enumerate(part): gaps[(k*40)//len(part)].append(it)
        if p == PSIG:
            l0 = lab("nosig")
            gaps[6] += flag_eval(23) + R(f"s_cmp_lg_u32 s{S_REDO}, 0\ns_cbranch_scc1 {l0}") + signal(C_O, S_SLOT, TMP) + R(f"{l0}:")
        if p in (2, PC-2):
            part = fsu[0] if p == 2 else fsu[1]
            for k, g in enumerate(part): gaps[(k*40)//len(part)] += g
        if p >= PC:
            n = -(-36//(8-PC)) if not opt('SQ', '') else int(opt('SQ', '').split('/')[p-PC]); part, sq = sq[:n], sq[n:]
            for k, g in enumerate(part):
                pos = 2*((k*19)//n) + (2 if p == 7 else 1) + (0 if p == 7 else 2) if n <= 19 else 2+(k*37)//n
                pos = min(pos, 39)
                if len(g) > 1 and g[1][1] == "s_nop 0":
                    gaps[pos-1].append(g[0]); g = g[2:]
                gaps[pos] += g
        if p == 6:
            pre = R(f"v_add_u32 v10, s{c.S_LB}, v{c.V_L16}")
            for fb in range(1, 4):
                pre += R(f"s_add_u32 s{c.S_T}, s{S_WAVE}, {4-fb}\ns_and_b32 s{c.S_T}, s{c.S_T}, 3\ns_lshl_b32 s{c.S_T}, s{c.S_T}, 13\nv_add_u32 v{10+fb}, s{c.S_T}, v{c.V_L16}")
            U = FS.S_US; t = c.S_T
            pre += R(f"""s_mul_i32 s{U}, s{c.S_DT}, {5*54*1024}
            s_lshl_b32 s{t}, s{c.S_FB}, 11
            s_add_u32 s{U}, s{U}, s{t}
            s_add_u32 s{U}, s{U}, {U_OFF}""")
            for k, it in enumerate(pre): gaps[2+(k*38)//len(pre)].append(it)
        for m in range(40):
            fb, db, t = m//10, (m//2) % 5, m % 2
            if p == 7: fb = 3-fb
            elif fb % 2 and opt('BZ', 1): db = 4-db
            d = vr(c.acc(fb,db), 4)
            cc = ("v[10:13]" if fb == 0 else "0") if (p == 0 and t == 0) else d
            if (m//2) % 2 and opt('BZ', 1): t = 1-t
            e(f"{MF} {d}, {vr(c.W(p,fb,t),4)}, {c.H(p,db,t)}, {cc}")
            if p == 7 and m >= 11 and m % 2 == 1:
                k = (m-11)//2; fb2, db2 = 3-k//5, k % 5
                kk = 5*(fb2-1)+db2
                e.ds("gw", f"ds_write_b128 v10, {vr(c.acc(fb2,db2),4)} offset:{32768*(kk//8)+1024*(kk%8)}")
            for it in gaps[m]: e.add(it)
    stamp(e, 8)
    e(f"s_cmp_lg_u32 s{S_REDO}, 0\ns_cbranch_scc1 K_redo_u\ns_cmp_lg_u32 s{S_LATE}, 0\ns_cbranch_scc1 K_late")

LDS_OWN = 4*36864
def g1_red_reads():
    return [("ds", "gr", f"ds_read_b128 {vr(V_S+20+4*kk,4)}, v{11+kk//5} offset:{32768*(kk//8)+1024*(kk%8)}") for kk in range(15)]
def gelu_items(va, st):
    X = V_S; Z = X+20; K0, K1, A = Z+30, Z+31, Z+32
    r = [("raw", f"v_add_f32 v{X+k}, v{X+k}, v{X+20*j+k}") for j in range(1, 4) for k in range(20)]
    r += R(f"""v_mov_b32 v{K0}, {fhex(-2*math.log2(math.e)*math.sqrt(2/math.pi))}
    v_mov_b32 v{K1}, {fhex(-2*math.log2(math.e)*math.sqrt(2/math.pi)*0.044715)}
    s_lshr_b32 s{st}, s{S_WAVE}, 1
    s_lshl_b32 s{st}, s{st}, 10
    v_add_u32 v{A}, s{st}, v{va}
    s_and_b32 s{st}, s{S_WAVE}, 1
    s_lshl_b32 s{st}, s{st}, 3
    s_add_u32 s{st}, s{st}, {LDS_OWN}
    v_add_u32 v{A}, s{st}, v{A}""")
    st1 = lambda k: [f"v_mul_f32 v{Z+k}, v{X+k}, v{X+k}", f"v_fma_f32 v{Z+k}, v{Z+k}, v{K1}, v{K0}", f"v_mul_f32 v{Z+k}, v{Z+k}, v{X+k}"]
    for k in range(-1, 24):
        L = []
        if 0 <= k+1 < 20: L += st1(k+1)
        if 0 <= k < 20: L.append(f"v_exp_f32 v{Z+k}, v{Z+k}")
        if 0 <= k-3 < 20: L.append(f"v_mul_f32 v{X+k-3}, v{X+k-3}, v{Z+k-3}")
        if 0 <= k-1 < 20: L.append(f"v_add_f32 v{Z+k-1}, 1.0, v{Z+k-1}")
        if 0 <= k-4 < 20 and (k-4) % 2: L.append(f"v_cvt_pk_bf16_f32 v{Z+20+(k-4)//2}, v{X+k-5}, v{X+k-4}")
        if 0 <= k-2 < 20: L.append(f"v_rcp_f32 v{Z+k-2}, v{Z+k-2}")
        if k >= 19: L.append("s_nop 0")
        r += [("raw", t) for t in L]
    r += [("ds", "uw", f"ds_write_b64 v{A}, {vr(Z+20+2*db,2)} offset:{2048*db}") for db in range(5)]
    return r
def u_out(va, st):
    X = V_S; A = X+52
    rd = R(f"s_lshl_b32 s{st}, s{S_WAVE}, 10\ns_add_u32 s{st}, s{st}, {LDS_OWN}\nv_add_u32 v{A}, s{st}, v{va}")
    rd = [rd] + [[("ds", "ur", f"ds_read_b128 {vr(X+4*n,4)}, v{A} offset:{4096*n}")] for n in range(3)]
    U = FS.S_US
    sto = [R(f"s_lshr_b32 s{st}, s{S_WAVE}, 1\ns_mul_i32 s{st}, s{st}, {54*1024}\ns_add_u32 s{U}, s{U}, s{st}"),
           R(f"s_and_b32 s{st}, s{S_WAVE}, 1\ns_lshl_b32 s{st}, s{st}, 10\ns_add_u32 s{U}, s{U}, s{st}"), [("wait", None, "ur")]]
    for n in range(3):
        g = [("vm", "us", f"buffer_store_dwordx4 {vr(X+4*n,4)}, v{va}, s[{S_WS}:{S_WS+3}], s{U} offen{SC}")]
        if n == 0: g += R(f"s_add_u32 s{U}, s{U}, {2*54*1024}")
        if n == 1: g += R(f"s_add_u32 s{U}, s{U}, {2*54*1024}\ns_cmp_ge_u32 s{S_WAVE}, 2\ns_cselect_b32 s{U}, {WS_SZ}, s{U}")
        sto.append(g)
    return rd, sto

def tail_plain(e):
    attn_iter(e, 10, dma="nok", endbar="bar")
    attn_iter(e, 11, do_qk=False, dma=False, late=[(76+k, [it]) for k, it in enumerate(rowsum_items())] + [(123+k//2, [it]) for k, it in enumerate(linv_items())], sm_first=True)
    stamp(e, 7)
    o_sel(e, 76)
    e.wds("li")
    o_block(e, G1.V_L16, 76)
    for part in FS.setup(50, 51, 52):
        for g in part:
            for it in g: e.add(it)
    e("s_waitcnt vmcnt(0) lgkmcnt(0)\ns_barrier")
    for it in flag_read(19) + flag_eval(19): e.add(it)
    e(f"""s_cmp_lg_u32 s{S_PASS}, 0
    s_cbranch_scc1 K_plain_done
    s_cmp_lg_u32 s{S_REDO}, 0
    s_cbranch_scc1 K_redo
    K_plain_done:
    s_barrier""")
    for it in signal(C_O, S_SLOT, V_T+1): e.add(it)
    e(f"s_mov_b32 s{FS.S_US}, {WS_SZ}")
    for k in range(11, 14): e(f"v_mov_b32 v{k}, v{G1.V_L16}")
    if opt('PW', 0):
        e(f"v_lshlrev_b32 v20, 7, v{V_LANE}\ns_lshl_b32 s52, s{S_WAVE}, 13\ns_add_u32 s51, s51, s52\ns_add_u32 s51, s51, {8*0x20000}")
        for k in range(10): e(f"buffer_load_dword v21, v20, s[{S_WS}:{S_WS+3}], s51 offen\ns_add_u32 s51, s51, 0x20000")
    if opt('PW', 0) >= 2:
        e(f"""v_and_b32 v20, 7, v{V_LANE}
        v_lshlrev_b32 v20, 8, v20
        v_lshrrev_b32 v22, 3, v{V_LANE}
        v_lshl_add_u32 v20, v22, 12, v20
        s_and_b32 s51, s{S_QB}, 3
        s_lshl_b32 s51, s51, 2
        s_add_u32 s51, s51, s{S_WAVE}
        s_mul_i32 s51, s51, {108*4096}
        s_and_b32 s52, s{FS.S_RB}, 17
        s_lshl_b32 s52, s52, 7
        s_add_u32 s51, s51, s52""")
        for k in range(14): e(f"buffer_load_dword v21, v20, s[{S_W2}:{S_W2+3}], s51 offen\ns_add_u32 s51, s51, {8*4096}")
    stamp(e, 8)

class FS:
    S_SO, S_M0, S_G, S_KQ = 89, 98, 99, 100
    V_SR, S_DO, S_DW = 240, 59, 77
    V_SD, V_FA, V_FD = 244, 245, 246
    STG = 36864
    S_US = 79
    S_RB, S_CT, S_XA = 41, 42, 43
    XR, V_B2, V_XO = 240, 250, 251
    @staticmethod
    def slot(s): return 3 - (s-1) % 4
    @staticmethod
    def SA(s, db, t): return ar(72*(s % 2)+8*db+4*t, 4)
    @staticmethod
    def SB(s, sb, t): return ar(72*(s % 2)+40+8*sb+4*t, 4)
    @classmethod
    def setup(c, t0, t1, t2):
        L = f"""s_lshr_b32 s{c.S_KQ}, s{S_XCD}, 1
        s_and_b32 s{t0}, s{S_XCD}, 1
        s_lshl_b32 s{t0}, s{t0}, 5
        s_lshr_b32 s{t1}, s2, 3
        s_add_u32 s{t0}, s{t0}, s{t1}
        s_lshl_b32 s{c.S_G}, s{t0}, 2
        s_add_u32 s{c.S_G}, s{c.S_G}, s{c.S_KQ}
        s_lshr_b32 s{t1}, s{t0}, 3
        s_lshl_b32 s{t1}, s{t1}, 5
        s_lshl_b32 s{t2}, s{c.S_KQ}, 1
        s_add_u32 s{t1}, s{t1}, s{t2}
        s_lshl_b32 s{t1}, s{t1}, 7
        s_add_u32 s{t1}, s{t1}, {FL_OFF+C_O*32768}
        v_bfe_u32 v{c.V_FA}, v{V_LANE}, 1, 2
        v_and_b32 v{c.V_SD}, 1, v{V_LANE}
        v_lshl_add_u32 v{c.V_FA}, v{c.V_FA}, 3, v{c.V_SD}
        v_lshlrev_b32 v{c.V_FA}, 7, v{c.V_FA}
        v_add_u32 v{c.V_FA}, s{t1}, v{c.V_FA}
        v_lshlrev_b32 v{c.V_SD}, 4, v{V_LANE}
        s_lshr_b32 s{c.S_RB}, s{t0}, 2
        s_lshl_b32 s{c.S_RB}, s{c.S_RB}, 1
        s_lshr_b32 s{t2}, s{c.S_KQ}, 1
        s_add_u32 s{c.S_RB}, s{c.S_RB}, s{t2}
        s_and_b32 s{c.S_CT}, s{t0}, 3
        s_and_b32 s{t2}, s{c.S_KQ}, 1
        s_lshl_b32 s{t2}, s{t2}, 2
        s_add_u32 s{c.S_CT}, s{c.S_CT}, s{t2}
        v_and_b32 v{c.V_B2}, 15, v{V_LANE}
        v_lshrrev_b32 v252, 4, v{V_LANE}
        v_mul_u32_u24 v{c.V_XO}, 1280, v{c.V_B2}
        v_lshl_add_u32 v{c.V_XO}, v252, 3, v{c.V_XO}
        s_lshl_b32 s{c.S_XA}, s{c.S_RB}, 2
        s_add_u32 s{c.S_XA}, s{c.S_XA}, s{S_WAVE}
        s_lshl_b32 s{t2}, s{c.S_XA}, 4
        v_add_lshl_u32 v252, v{c.V_B2}, s{t2}, 1
        s_mul_i32 s{c.S_XA}, s{c.S_XA}, {16*1280}
        s_mul_i32 s{t2}, s{c.S_CT}, 160
        s_add_u32 s{c.S_XA}, s{c.S_XA}, s{t2}
        s_lshl_b32 s{t2}, s{c.S_KQ}, 15
        s_and_b32 s{t1}, s{t0}, 3
        s_mul_i32 s{t1}, s{t1}, {5*0x20000}
        s_add_u32 s{t1}, s{t1}, s{t2}
        s_add_u32 s{t1}, s{t1}, {WOF_OFF-8*0x20000}
        s_lshr_b32 s{t0}, s{t0}, 2
        s_lshl_b32 s{t0}, s{t0}, 20
        s_add_u32 s{t0}, s{t0}, s{t2}
        s_add_u32 s{t0}, s{t0}, {OF_OFF}
        s_mul_i32 s{c.S_M0}, s{S_WAVE}, 9"""
        p0 = [[it] for it in R(L)]
        p1 = []
        for n in range(9):
            so = c.S_SO+n
            p1 += [R(f"s_add_u32 s{t2}, s{c.S_M0}, {n}"), R(f"s_cmp_lt_u32 s{t2}, 16\ns_cselect_b32 s{so}, s{t0}, s{t1}"),
                   R(f"s_cmp_ge_u32 s{t2}, 26\ns_cselect_b32 s101, {15*0x20000}, 0\ns_add_u32 s{so}, s{so}, s101"),
                   R(f"s_and_b32 s101, s{t2}, 1\ns_lshl_b32 s101, s101, 10"), R(f"s_add_u32 s{so}, s{so}, s101\ns_sub_u32 s{so}, s{so}, {1024*(n%4)}"),
                   R(f"s_lshr_b32 s{t2}, s{t2}, 1\ns_lshl_b32 s{t2}, s{t2}, 17\ns_add_u32 s{so}, s{so}, s{t2}")]
        p1.append(R(f"s_lshl_b32 s{c.S_M0}, s{c.S_M0}, 10"))
        p1 += [[it] for it in R(f"""s_lshr_b32 s{t2}, s{S_WAVE}, 1
        s_lshl_b32 s101, s{t2}, 19
        s_add_u32 s{c.S_DO}, s{t0}, s101
        s_lshl_b32 s{t2}, s{t2}, 13
        v_add_u32 v{c.V_SR}, s{t2}, v{c.V_SD}
        s_and_b32 s{t2}, s{S_WAVE}, 1
        s_mul_i32 s101, s{t2}, {20*0x20000}
        s_add_u32 s101, s101, {8*0x20000}
        s_add_u32 s{c.S_DW}, s{t1}, s101
        s_mul_i32 s{t2}, s{t2}, 5
        s_add_u32 s{t2}, s{t2}, 8
        s_lshl_b32 s{t2}, s{t2}, 11
        v_add_u32 v{c.V_SR+1}, s{t2}, v{c.V_SD}
        v_add_u32 v{c.V_SR+2}, {2*c.STG}, v{c.V_SR}
        v_add_u32 v{c.V_SR+3}, {2*c.STG}, v{c.V_SR+1}""")]
        return p0, p1
    @classmethod
    def direct0(c, tag=None):
        r = []
        for k in (0, 4, 5, 6, 7, 8, 1, 2, 3):
            base, d = (c.S_DO, lambda t: c.SB(0, k, t)) if k < 4 else (c.S_DW, lambda t: c.SA(0, k-4, t))
            for t in range(2):
                g = R(f"s_add_u32 s101, s{base}, {0x20000*(k if k < 4 else k-4)}") if t == 0 else []
                x = f"buffer_load_dwordx4 {d(t)}, v{c.V_SD}, s[{S_WS}:{S_WS+3}], s101 offen offset:{1024*t}{SC}"
                r.append(g + [("vm", ("sd", 0), x) if tag is None else ("raw", x)])
        r[-1] += R(f"v_add_u32 v{c.V_SD}, 2048, v{c.V_SD}")
        return r
    @classmethod
    def xloads(c):
        r = [("vm", "e", f"buffer_load_ushort v{c.V_B2}, v252, s[{S_B2}:{S_B2+3}], 0 offen")]
        return r + [("vm", "e", f"buffer_load_dwordx2 {vr(c.XR+2*db,2)}, v{c.V_XO}, s[{S_X}:{S_X+3}], s{c.S_XA} offen offset:{32*db}") for db in range(5)]
    @classmethod
    def dma(c, s, tag=None):
        r = []
        for n in range(9):
            g = R(f"s_add_u32 m0, s{c.S_M0}, {c.STG*c.slot(s)+1024*n}\ns_nop 0") if n % 4 == 0 else []
            t = f"buffer_load_dwordx4 v{c.V_SD}, s[{S_WS}:{S_WS+3}], s{c.S_SO+n} offen offset:{1024*(n%4)}{SC} lds"
            g.append(("vm", ("sd", s), t) if tag is None else ("raw", t))
            if n == 8: g += R(f"v_add_u32 v{c.V_SD}, 2048, v{c.V_SD}")
            r.append(g)
        return r

def final(e):
    c = FS
    S_RB, S_CT, S_A, S_L0, S_B, S_T = c.S_RB, c.S_CT, c.S_XA, 40, 76, 46
    S_YA, S_YB, S_PO, S_PI = 52, 53, 54, 55
    V_L16, V_WD, V_WA, V_WH, V_L8, V_SR, VT = G1.V_L16, 3, 4, 8, 12, c.V_SR, 216
    V_XO, V_B2, XR = c.V_XO, c.V_B2, c.XR
    V_PA, V_PD = 221, 222
    ACS, ACY = 16, 96
    WSR = f"s[{S_WS}:{S_WS+3}]"
    e("K_final:")
    stamp(e, 9)
    SA, SB = c.SA, c.SB
    def sreads(s):
        sl = c.slot(s); hi = 2*(sl//2); o = c.STG*(sl % 2)
        r = []
        for k in range(5):
            for t in range(2):
                if k < 4: r.append(("ds", ("sr", s), f"ds_read_b128 {SB(s,k,t)}, v{V_SR+hi} offset:{o+2048*k+1024*t}"))
                r.append(("ds", ("sr", s), f"ds_read_b128 {SA(s,k,t)}, v{V_SR+1+hi} offset:{o+2048*k+1024*t}"))
        return r
    YB = [c.STG*c.slot(12+y) for y in range(3)]
    YLO = YB[2]
    PSZ = 10240
    ysetup = R(f"""v_lshrrev_b32 v{VT}, 3, v{V_LANE}
    v_and_b32 v{VT+1}, 7, v{V_LANE}
    v_and_b32 v{V_WD}, 6, v{VT}
    v_xor_b32 v{VT+1}, v{VT+1}, v{V_WD}
    v_lshlrev_b32 v{VT}, 12, v{VT}
    v_lshl_add_u32 v{V_WD}, v{VT+1}, 4, v{VT}
    v_lshrrev_b32 v{VT}, 2, v{V_LANE}
    v_and_b32 v{V_WH}, 6, v{VT}
    v_bfe_u32 v{VT+1}, v{V_LANE}, 1, 1
    v_xor_b32 v{VT+1}, v{VT+1}, v{V_WH}
    v_lshlrev_b32 v{VT+1}, 4, v{VT+1}
    v_lshl_add_u32 v{VT+1}, v{VT}, 7, v{VT+1}
    v_and_b32 v{VT}, 1, v{V_LANE}
    v_lshl_add_u32 v{VT+1}, v{VT}, 3, v{VT+1}
    s_lshl_b32 s{S_L0}, s{S_WAVE}, 13
    v_add_u32 v{VT+1}, s{S_L0}, v{VT+1}
    v_add_u32 v{VT+1}, {YLO}, v{VT+1}
    v_lshlrev_b32 v{V_L8}, 3, v{V_LANE}
    s_mul_i32 s{S_YA}, s{S_WAVE}, {7*64*4096}
    s_lshl_b32 s{S_T}, s{S_RB}, 7
    s_add_u32 s{S_YA}, s{S_YA}, s{S_T}
    s_mul_i32 s{S_YB}, s{S_CT}, {5*54*1024}
    s_mul_i32 s{S_T}, s{S_WAVE}, {7*2048}
    s_add_u32 s{S_YB}, s{S_YB}, s{S_T}""")
    for sb in range(4):
        ysetup += R(f"""s_add_u32 s{S_T}, s{S_WAVE}, {sb}
        s_and_b32 s{S_T}, s{S_T}, 3
        s_lshl_b32 s{S_T}, s{S_T}, 5
        v_xor_b32 v{V_WA+sb}, s{S_T}, v{VT+1}
        v_add_u32 v{V_WH+sb}, {YB[0]-YLO}, v{V_WA+sb}""")
    ysetup += R(f"""s_and_b32 s{S_T}, s{c.S_G}, 0xfc
    s_add_u32 s{S_T}, s{S_T}, s{S_WAVE}
    s_lshl_b32 s{S_T}, s{S_T}, 2
    s_add_u32 s{S_T}, s{S_T}, s{c.S_KQ}
    s_mul_i32 s{S_PO}, s{S_T}, {PSZ}
    s_add_u32 s{S_PO}, s{S_PO}, {PART_OFF}
    s_mul_i32 s{S_PI}, s{c.S_G}, {4*PSZ}
    s_mul_i32 s{S_T}, s{S_WAVE}, 2560
    s_add_u32 s{S_PI}, s{S_PI}, s{S_T}
    s_add_u32 s{S_PI}, s{S_PI}, {PART_OFF}
    s_mov_b32 s{S_B}, {fhex(-math.log2(math.e))}""")
    def XF(k): return 224+k if k < 16 else 252+(k-16)
    def YA(p, db, t):
        k = 8*db+4*t
        return [ar(144+k, 4), ar(184+k, 4), vr(176+k, 4), ar(k, 4)][p % 4]
    def YBr(p, sb, t, n=4, o=0): return ar((224 if p % 2 == 0 else 40)+8*sb+4*t+o, n)
    def yloads(p):
        r = []
        for n in range(8):
            g = R(f"s_add_u32 m0, s{S_L0}, {YB[p%3]+1024*n}") if n % 4 == 0 else []
            r.append(g+[("raw", f"s_add_u32 s{S_T}, s{S_YA}, {(64*p+8*n)*4096-1024*(n%4)}"),
                        ("vm", ("w", p), f"buffer_load_dwordx4 v{V_WD}, s[{S_W2}:{S_W2+3}], s{S_T} offen offset:{1024*(n%4)} lds")])
        for db in range(5):
            g = [("raw", f"s_add_u32 s{S_T+1}, s{S_YB}, {U_OFF+db*54*1024+p*2048}")]
            if p == 6: g += R(f"s_cmp_eq_u32 s{S_WAVE}, 3\ns_cselect_b32 s{S_T+1}, {WS_SZ}, s{S_T+1}")
            r.append(g+[("vm", ("a", p), f"buffer_load_dwordx4 {YA(p,db,0)}, v{V_L16}, {WSR}, s{S_T+1} offen{SC}")])
            r.append([("vm", ("a", p), f"buffer_load_dwordx4 {YA(p,db,1)}, v{V_L16}, {WSR}, s{S_T+1} offen offset:1024{SC}")])
        return r
    def yreads(p):
        y = p % 3
        va, o = (V_WH, 0) if y == 0 else (V_WA, YB[y]-YLO)
        return [("ds", ("r", p), f"ds_read_b64_tr_b16 {YBr(p,sb,t,2,2*hj)}, v{va+sb} offset:{o+2048*(2*t+hj)}")
                for sb in range(4) for t in range(2) for hj in range(2)]
    V_OW, V_OW8, S_OWN = 13, 223, 50
    ysetup += R(f"""v_add_u32 v{V_OW}, {LDS_OWN}, v{V_L16}
    v_add_u32 v{V_OW8}, {LDS_OWN}, v{V_L8}""")
    own = R(f"s_cmp_eq_u32 s{S_WAVE}, s{c.S_KQ}\ns_cselect_b64 s[{S_OWN}:{S_OWN+1}], -1, 0\ns_cselect_b32 s{S_PO}, {WS_SZ}, s{S_PO}")
    def pstore(sb):
        b = ACS+20*sb
        r = [[("raw", f"v_cvt_pk_bf16_f32 v{b+j}, v{b+2*j}, v{b+2*j+1}")] for j in range(10)]
        r.insert(4, [("vm", "ps", f"buffer_store_dwordx4 {vr(b,4)}, v{V_L16}, {WSR}, s{S_PO} offen{SC}")])
        r.insert(9, [("vm", "ps", f"buffer_store_dwordx4 {vr(b+4,4)}, v{V_L16}, {WSR}, s{S_PO} offen offset:1024{SC}")])
        r.append([("vm", "ps", f"buffer_store_dwordx2 {vr(b+8,2)}, v{V_L8}, {WSR}, s{S_PO} offen offset:2048{SC}"), ("raw", f"s_add_u32 s{S_PO}, s{S_PO}, 2560")])
        r.append(R(f"s_mov_b64 exec, s[{S_OWN}:{S_OWN+1}]") +
                 [("ds", "ow", f"ds_write_b128 v{V_OW}, {vr(b,4)} offset:{2560*sb}"), ("ds", "ow", f"ds_write_b128 v{V_OW}, {vr(b+4,4)} offset:{2560*sb+1024}"),
                  ("ds", "ow", f"ds_write_b64 v{V_OW8}, {vr(b+8,2)} offset:{2560*sb+2048}")] + R("s_mov_b64 exec, -1"))
        return r
    gl = gelu_items(V_L16, S_T+2)
    urd, ust = u_out(V_L16, S_T+2)
    y01 = yloads(0) + yloads(1) + (yloads(2)[:8] if opt('W3', 1) else [])
    GE = opt('GE', 3); US = GE+1+opt('SD', 2); D4 = opt('D4', 1)
    dq = [g for st in range(3, 16) for g in c.dma(st)]
    for s in range(16):
        if s == 13:
            e.wvm("poll")
            spin(e, V_PD, V_PA, 4, have=True)
        SBP = opt('SBP', 0)
        def sync(st):
            r = [("wait", "us", None)] if st == US else []
            if st < 15: r += [("wait", ("sd", st+1 if st else 0), "ALL"), ("raw", "s_barrier")]
            else: r += [("wait", ("w", 0), "ALL")]
            return r
        if not SBP or s <= 1:
            for it in sync(s): e.add(it)
        if Ctx.fine == "f": stamp(e, 14+s)
        gaps = [[] for _ in range(40)]
        rd = sreads(s+1) if s < 15 else yreads(0)
        if s == 0:
            for k, it in enumerate(g1_red_reads()): gaps[k].append(it)
            gaps[18] += [("wait", ("sd", 1), "gr"), ("raw", "s_barrier")]
            for k, it in enumerate(rd): gaps[19+k].append(it)
        else:
            RS = opt('RS', 9)
            for k, it in enumerate(rd): gaps[[m for m in range(40) if m % 4 != 3][(k*RS)//3] if (s < 15 and RS < 5) else (2*k if s < 15 else k)].append(it)
        nd = 12 if (D4 and 1 <= s <= 3) else 9
        mine, dq = dq[:nd], dq[nd:]
        for k, g in enumerate(mine):
            pos = 21+2*k if s == 0 else (4*k+3 if nd == 9 else 2*((3*k)//2)+3)
            if g[0][0] == "raw":
                gaps[pos-1].append(g[0]); g = g[2:]
            gaps[pos] += g
        if D4 and s >= 12:
            cuts = [0, 8, 20, 32, 44] if opt('W3', 1) else [0, 8, 18, 28, 36]
            part = y01[cuts[s-12]:cuts[s-11]]
            for k, g in enumerate(part): gaps[(4*k+3 if len(part) <= 10 else 2*((3*k)//2)+3) if s < 15 else (3*k)//2+1] += g
        if not D4 and s >= 13:
            for k, g in enumerate(y01[12*(s-13):12*(s-12)]): gaps[(2*((3*k)//2)+1) if s < 15 else k+1] += g
        if s <= GE:
            if s == 0: glv = [x for x in gl if x[0] != "ds"]; gld = [x for x in gl if x[0] == "ds"]
            cost = lambda it: 2 if it[1].startswith(("v_exp", "v_rcp")) else (0.3 if it[1].startswith("s_") else 1)
            g0, g1 = (20 if s == 0 else 0), (24 if s == GE else 40)
            room = [max(0, 2 - sum(1 for it in gaps[m] if not (it[0] == "raw" and it[1].startswith("s_")))) for m in range(40)]
            cap = sum(room[g0:g1]); capl = cap + 52*(GE-s-1) + (30 if s < GE else 0) if s < GE else cap
            quota = sum(map(cost, glv))*cap/capl
            acc = 0; used = 0
            for m in range(g0, g1):
                acc += quota*room[m]/cap
                while glv and (used + cost(glv[0])/2 <= acc or (s == GE and m == g1-1)):
                    used += cost(glv[0]); gaps[m].append(glv.pop(0))
            if s == GE:
                assert not glv
                for k, it in enumerate(gld): gaps[25+2*k].insert(0, it)
        if s == GE+1:
            for k, g in enumerate(urd): gaps[2*k+1] += g
            for k, g in enumerate(ust): gaps[4*k+9] += g
        if s == US: gaps[1] += signal(C_U, S_UG, V_PA)
        if 8 <= s < 12:
            n = -(-len(ysetup)//4); q = s-8
            for k, it in enumerate(ysetup[q*n:(q+1)*n]): gaps[2*k].append(it)
        if s == 11:
            for k, it in enumerate(flag_addr(V_PA, C_U, S_CT, 27)): gaps[4*k+1].append(it)
        if s == 12: gaps[1] += poll_ld(V_PD, V_PA); gaps[39] += own
        if SBP and 1 <= s < 15: gaps[SBP] += sync(s+1)
        if s == 15:
            for sb in range(2):
                for k, g in enumerate(pstore(sb)): gaps[18+10*sb+(k*10)//14] += g
        for m in range(40):
            sb, db, t = m//10, (m//2) % 5, m % 2
            if sb % 2 and s < 15 and opt('BZ', 1): db = 4-db
            d = vr(ACS+20*sb+4*db, 4)
            cc = "0" if (s == 0 and t == 0) else d
            if (m//2) % 2 and opt('BZ', 1): t = 1-t
            e(f"{MF} {d}, {SA(s,db,t)}, {SB(s,sb,t)}, {cc}")
            for it in gaps[m]: e.add(it)
    stamp(e, 10)
    V_RW, V_RR = 218, V_WA
    PS = opt('PS', 1)
    PL, SS = ACS, ACS+48
    def psum(src):
        r = []
        for j in range(10):
            x = PL+12*src+j
            if src == 0: r += R(f"v_lshlrev_b32 v{SS+2*j}, 16, v{x}\nv_and_b32 v{SS+2*j+1}, 0xffff0000, v{x}")
            else: r += R(f"v_lshlrev_b32 v{SS+20}, 16, v{x}\nv_and_b32 v{x}, 0xffff0000, v{x}\nv_add_f32 v{SS+2*j}, v{SS+2*j}, v{SS+20}\nv_add_f32 v{SS+2*j+1}, v{SS+2*j+1}, v{x}")
        return r
    for p in range(7):
        if p < 6: e.wvm(("w", p+1))
        if p == PS: e.wvm("ps")
        if p == 5 and opt('PL', 3) == 3: e.wvm("pl")
        e.wait(("a", p), "ALL")
        if Ctx.fine == "g": stamp(e, 24+p)
        gaps = [[] for _ in range(40)]
        if p < 6:
            for k, it in enumerate(yreads(p+1)): gaps[2*k].append(it)
        sh = 0
        if p == 0:
            for k, g in enumerate(pstore(2)): gaps[k//2] += g
            for k, g in enumerate(pstore(3)): gaps[7+k//2] += g
            sh = 4
        PP = opt('PL', 3)
        if p == PP: gaps[16] += poll_ld(V_PD, V_PA)
        if opt('W3', 1): lds_ = (yloads(p+2)[8:] if p+2 < 7 else []) + (yloads(p+3)[:8] if p+3 < 7 else [])
        else: lds_ = yloads(p+2) if p+2 < 7 else []
        for k, g in enumerate(lds_): gaps[min(2*k+1+sh, 39)] += g
        if p == PP:
            gaps[36] += [("wait", "poll", None)] + spin_items(V_PD, V_PA, 2, have=True)
            for k in range(1, 4):
                b = PL+12*k
                gaps[36+k] += R(f"s_add_u32 s{S_T+2}, s{c.S_KQ}, {k}\ns_and_b32 s{S_T+2}, s{S_T+2}, 3\ns_mul_i32 s{S_T+2}, s{S_T+2}, {PSZ}\ns_add_u32 s{S_T+2}, s{S_T+2}, s{S_PI}")
                gaps[36+k] += [("vm", "pl", f"buffer_load_dwordx4 {vr(b,4)}, v{V_L16}, {WSR}, s{S_T+2} offen{SC}"),
                               ("vm", "pl", f"buffer_load_dwordx4 {vr(b+4,4)}, v{V_L16}, {WSR}, s{S_T+2} offen offset:1024{SC}"),
                               ("vm", "pl", f"buffer_load_dwordx2 {vr(b+8,2)}, v{V_L8}, {WSR}, s{S_T+2} offen offset:2048{SC}")]
        if p == 5:
            for k, it in enumerate(c.xloads()): gaps[4*k+1].append(it)
        if p == PS:
            gaps[0] += R("s_barrier") + signal(C_P, c.S_G, VT)
            gaps[2] += R(f"s_mul_i32 s{S_T+2}, s{S_WAVE}, 2560\nv_add_u32 v{V_OW}, s{S_T+2}, v{V_OW}\nv_add_u32 v{V_OW8}, s{S_T+2}, v{V_OW8}")
            gaps[32] += [("ds", "or", f"ds_read_b128 {vr(PL,4)}, v{V_OW}")]
            gaps[34] += [("ds", "or", f"ds_read_b128 {vr(PL+4,4)}, v{V_OW} offset:1024")]
            gaps[36] += [("ds", "or", f"ds_read_b64 {vr(PL+8,2)}, v{V_OW8} offset:2048")]
        if p == PS+1:
            pa = R(f"""v_min_u32 v{V_PA}, 2, v{V_LANE}
            v_add_u32 v{V_PA}, s{c.S_KQ}, v{V_PA}
            v_add_u32 v{V_PA}, 1, v{V_PA}
            v_and_b32 v{V_PA}, 3, v{V_PA}
            s_and_b32 s{S_T+2}, s{c.S_G}, 0xfc
            v_add_u32 v{V_PA}, s{S_T+2}, v{V_PA}
            v_lshlrev_b32 v{V_PA}, 7, v{V_PA}
            v_add_u32 v{V_PA}, {FL_OFF+C_P*32768}, v{V_PA}""") + psum(0)
            for k, it in enumerate(pa): gaps[k if k < 8 else (k*40)//len(pa)].append(it)
        if p == 5 and PP == 3:
            ps = psum(1) + psum(2)[:20]
            for k, it in enumerate(ps): gaps[(k*40)//len(ps)].append(it)
        if p == 6:
            ra = R(f"v_add_u32 v{V_RW}, s{S_L0}, v{V_L16}\nv_add_u32 v{V_RW+1}, {YB[0]}, v{V_RW}\nv_add_u32 v{V_RW}, {YLO}, v{V_RW}")
            for k in range(1, 4):
                ra += R(f"s_add_u32 s{S_T}, s{S_WAVE}, {4-k}\ns_and_b32 s{S_T}, s{S_T}, 3\ns_lshl_b32 s{S_T}, s{S_T}, 13\ns_add_u32 s{S_T}, s{S_T}, {YB[k-1]}\nv_add_u32 v{V_RR+k}, s{S_T}, v{V_L16}")
            if PP == 3: ra += psum(2)[20:] + psum(3)[:20]
            for k, it in enumerate(ra): gaps[(k*40)//len(ra) if PP == 3 else k//2].append(it)
        for m in range(40):
            db, sb, t = m//8, (m//2) % 4, m % 2
            if p == 6: sb, db = 3-m//10, (m//2) % 5
            elif db % 2 and opt('BZ', 1): sb = 3-sb
            d = vr(ACY+20*sb+4*db, 4)
            cc = "0" if (p == 0 and t == 0) else d
            if (m//2) % 2 and opt('BZ', 1): t = 1-t
            e(f"{MF} {d}, {YA(p,db,t)}, {YBr(p,sb,t)}, {cc}")
            if p == 6 and m >= 11 and m % 2 == 1:
                k = (m-11)//2; sb2, db2 = 3-k//5, k % 5
                va, o = (V_RW+1, 0) if sb2 == 1 else (V_RW, YB[sb2-1]-YLO)
                e.ds("yw", f"ds_write_b128 v{va}, {vr(ACY+20*sb2+4*db2,4)} offset:{o+1024*db2}")
            for it in gaps[m]: e.add(it)
    stamp(e, 11)
    Y, Z = ACY, ACY+20
    UN = 176
    def psum2(src):
        for j in range(10): e(f"v_lshlrev_b32 v{UN+2*j}, 16, v{PL+12*src+j}\nv_and_b32 v{UN+2*j+1}, s{S_T}, v{PL+12*src+j}")
        for k in range(0, 20, 2): e(pk("add", SS+k, SS+k, UN+k))
    e(f"s_mov_b32 s{S_T}, 0xffff0000")
    if PP == 3:
        for it in psum(3)[20:]: e.add(it)
    else:
        e.wvm("pl")
        psum2(1)
    e.wds("ALL"); e("s_barrier")
    for sb in range(1, 4):
        for db in range(5): e.ds(("yr", sb), f"ds_read_b128 {vr(ACY+20*sb+4*db,4)}, v{V_RR+sb} offset:{1024*db}")
    if PP != 3: psum2(2); psum2(3)
    e.wvm("e")
    e(f"v_lshlrev_b32 v{VT}, 16, v{V_B2}\nv_lshlrev_b32 v{VT+1}, 16, v{V_B2}\ns_mov_b32 s{S_B+1}, s{S_B}")
    for k in range(10): e(f"v_lshlrev_b32 v{XF(2*k)}, 16, v{XR+k}\nv_and_b32 v{XF(2*k+1)}, 0xffff0000, v{XR+k}")
    for k in range(0, 20, 2): e(pk("add", Y+k, Y+k, VT))
    for sb in range(1, 4):
        e.wds(("yr", sb))
        for k in range(0, 20, 2): e(pk("add", Y+k, Y+k, Y+20*sb+k))
    for k in range(0, 20, 2): e(f"v_pk_mul_f32 {vr(Z+k,2)}, {vr(Y+k,2)}, s[{S_B}:{S_B+1}]")
    for k in range(20): e(f"v_exp_f32 v{Z+k}, v{Z+k}")
    for k in range(0, 20, 2): e(pk("mul", Y+k, Y+k, SS+k))
    for k in range(0, 20, 2): e(f"v_pk_add_f32 {vr(Z+k,2)}, {vr(Z+k,2)}, 1.0 op_sel_hi:[1,0]")
    for db in range(5):
        for k in range(4*db, 4*db+4): e(f"v_rcp_f32 v{Z+k}, v{Z+k}")
        if db:
            d0 = db-1
            e(f"v_cvt_pk_bf16_f32 v{Z+20+2*d0}, v{XF(4*d0)}, v{XF(4*d0+1)}\nv_cvt_pk_bf16_f32 v{Z+21+2*d0}, v{XF(4*d0+2)}, v{XF(4*d0+3)}")
            e(f"buffer_store_dwordx2 {vr(Z+20+2*d0,2)}, v{V_XO}, s[{S_OUT}:{S_OUT+3}], s{S_A} offen offset:{32*d0}")
        else: e("s_nop 0")
        for k in range(4*db, 4*db+4, 2): e(f"v_pk_fma_f32 {vr(XF(k),2)}, {vr(Y+k,2)}, {vr(Z+k,2)}, {vr(XF(k),2)}")
    e(f"v_cvt_pk_bf16_f32 v{Z+28}, v{XF(16)}, v{XF(17)}\nv_cvt_pk_bf16_f32 v{Z+29}, v{XF(18)}, v{XF(19)}")
    e(f"buffer_store_dwordx2 {vr(Z+28,2)}, v{V_XO}, s[{S_OUT}:{S_OUT+3}], s{S_A} offen offset:128")
    stamp(e, 12)
    if Ctx.ts:
        e(f"""s_add_u32 s4, s{S_WS}, {TS_OFF}
        s_addc_u32 s5, s{S_WS+1}, 0
        s_mov_b32 s6, 0x100000
        s_mov_b32 s7, 0x20000
        s_lshl_b32 s8, s2, 2
        s_add_u32 s8, s8, s{S_WAVE}
        s_lshl_b32 s8, s8, 8
        v_lshlrev_b32 v10, 2, v{V_LANE}
        buffer_store_dword v0, v10, s[4:7], s8 offen""")
    e("K_end:\ns_endpgm")

def insn_sizes(lines):
    import subprocess, re, tempfile, os
    body = [l for l in lines if isinstance(l, str) and not l.startswith(".")]
    body += [f"K_pg{w}:" for w in range(4)]
    d = tempfile.mkdtemp()
    open(d+"/a.s", "w").write('.amdgcn_target "amdgcn-amd-amdhsa--gfx950"\n.text\n' + "\n".join(body) + "\n")
    subprocess.run(["clang", "-x", "assembler", "-target", "amdgcn-amd-amdhsa", "-mcpu=gfx950", "-c", d+"/a.s", "-o", d+"/a.o"], check=True)
    t = subprocess.run(["llvm-objdump", "-d", "--mcpu=gfx950", d+"/a.o"], capture_output=True, text=True).stdout
    sz = [4*len(m.group(1).split()) for m in re.finditer(r"// [0-9A-F]{12}: ((?:[0-9A-F]{8} ?)+)", t)]
    assert len(sz) == sum(1 for l in body if not l.endswith(":")), (len(sz), len(body))
    return sz
def place_pages(lines):
    sz = iter(insn_sizes(lines))
    out = [".p2align 12"] if opt('AL', 1) == 0 else []
    off = 0x300 if opt('AL', 1) == 0 else None
    nxt = 4096; active = False; masked = False; stubs = []
    for l in lines:
        if not isinstance(l, str):
            if l[1] == "align" and opt('AL', 1): out += ["s_branch K_al", ".p2align 12", "K_al:"]; off = 0
            if l[1] == "warm": active = True; nxt = (off//4096+1)*4096
            if l[1] == "cold": active = False
            if l[1] == "a64":
                while off % 64: out.append("s_nop 0"); off += 4
            continue
        if l.startswith(".") or l.endswith(":"):
            out.append(l); continue
        n = next(sz)
        if active and off >= nxt and not masked:
            stubs.append(len(out)); out.append(None); off += 8 if opt('SN', 0) else 4; nxt += 4096
        if l.startswith("s_mov_b64 exec"): masked = not l.endswith("-1")
        out.append(l)
        if off is not None: off += n
    for k, pos in enumerate(stubs):
        tgt = f"K_pg{k+3}" if k+3 < len(stubs) else f"K_back{k%3}"
        out[pos] = f"K_pg{k}:\ns_cbranch_execz {tgt}" + ("\ns_nop 0" if opt('SN', 0) else "")
    Ctx.npages = len(stubs)
    return out

def gen(ts=False):
    Ctx.ts = ts; Ctx.uid = 0
    e = Em()
    WSR = f"s[{S_WS}:{S_WS+3}]"
    LN_R, LN_L, LT, LN_X, X, D, O1, O2, TA, A0, TG, SB = 96, 97, 98, 100, 110, 130, 150, 160, 170, 176, 182, 184
    XS, HS = LDS_SP, LDS_SP
    e(khead(NAME))
    e("s_cmp_ge_u32 s2, 256\ns_cbranch_scc1 K_exit")
    for s, off in ((S_X,0),(S_DBG,88),(S_WQ,24),(S_WS,96),(S_K,8),(S_V,16),(S_WO,32)):
        e(f"s_load_dwordx2 s[{s}:{s+1}], s[0:1], {off}")
    e(f"s_getpc_b64 s[{S_CODE}:{S_CODE+1}]\nK_pc:")
    e(f"""v_and_b32 v{V_LANE}, 63, v0
    v_lshrrev_b32 v{V_T}, 6, v0
    s_mov_b32 s{S_CODE+2}, K_last-K_pc
    v_readfirstlane_b32 s{S_WAVE}, v{V_T}
    s_mov_b32 s{S_CODE+3}, 0x20000
    s_lshr_b32 s51, s2, 3
    v_lshlrev_b32 v{LT}, 7, v{V_LANE}
    s_cmp_lt_u32 s{S_WAVE}, 2
    s_cbranch_scc1 K_nocp
    s_lshl_b32 s49, s51, 1
    s_add_u32 s49, s49, s{S_WAVE}
    s_and_b32 s49, s49, 15
    s_lshl_b32 s49, s49, 13
    buffer_load_dword v{V_PFD}, v{LT}, s[{S_CODE}:{S_CODE+3}], s49 offen
    K_nocp:
    s_and_b32 s{S_XCD}, s2, 7
    s_lshr_b32 s52, s51, 3
    s_and_b32 s{S_QB}, s51, 7
    s_lshl_b32 s53, s52, 3
    s_add_u32 s53, s53, s{S_XCD}
    s_lshl_b32 s54, s{S_QB}, 5
    s_add_u32 s{S_SLOT}, s53, s54""")
    e(f"""v_lshrrev_b32 v{LN_R}, 5, v0
    v_and_b32 v{LN_L}, 31, v0
    s_lshr_b32 s54, s{S_SLOT}, 2
    s_lshl_b32 s54, s54, 5
    s_and_b32 s55, s{S_SLOT}, 3
    s_lshl_b32 s55, s55, 2
    s_add_u32 s54, s54, s55
    v_and_b32 v{LT}, 3, v{LN_R}
    v_lshrrev_b32 v{LT+1}, 2, v{LN_R}
    v_lshl_add_u32 v{LT}, v{LT+1}, 4, v{LT}
    v_add_u32 v{LT}, s54, v{LT}
    v_mul_u32_u24 v{LT}, 1280, v{LT}
    v_lshl_add_u32 v{LT}, v{LN_L}, 3, v{LT}
    s_mov_b32 s{S_X+2}, {2048*1280}
    s_mov_b32 s{S_X+3}, 0x20000
    s_mov_b32 s{S_DBG+2}, 256
    s_mov_b32 s{S_DBG+3}, 0x20000
    v_mov_b32 v{TG}, 0
    s_memrealtime s[90:91]
    s_waitcnt lgkmcnt(0)""")
    for j in range(5):
        e(f"buffer_load_dwordx2 v[{LN_X+2*j}:{LN_X+2*j+1}], v{LT}, s[{S_X}:{S_X+3}], 0 offen offset:{256*j}")
    e.mark("xout")
    e(f"""s_lshl_b32 s48, s2, 2
    s_add_u32 s48, s48, s{S_WAVE}
    s_cmp_lg_u32 s48, 1
    s_cbranch_scc1 K_notag
    s_or_b32 s90, s90, 1
    v_mov_b32 v{TG+1}, s90
    s_mov_b64 exec, 1
    buffer_store_dword v{TG+1}, v{TG}, s[{S_DBG}:{S_DBG+3}], 0 offen sc1
    s_mov_b64 exec, -1
    K_notag:
    s_lshl_b32 s50, s{S_XCD}, 2
    s_add_u32 s50, s50, s52
    s_lshl_b32 s56, s50, 8
    s_sub_u32 s{S_WQ+2}, {640*8192}, s56
    s_mov_b32 s{S_WQ+3}, 0x20000
    s_add_u32 s{S_WQ}, s{S_WQ}, s56
    s_addc_u32 s{S_WQ+1}, s{S_WQ+1}, 0""")
    def wq_pf():
        e(f"""s_cmp_lt_u32 s{S_WAVE}, 2
        s_cbranch_scc1 K_nopf
        v_lshrrev_b32 v{LT}, 1, v{V_LANE}
        v_and_b32 v{LT+1}, 1, v{V_LANE}
        v_lshlrev_b32 v{LT+1}, 7, v{LT+1}
        v_lshl_add_u32 v{LT}, v{LT}, 17, v{LT+1}
        s_lshl_b32 s48, s{S_QB}, 1
        s_add_u32 s48, s48, s{S_WAVE}
        s_sub_u32 s48, s48, 2
        s_lshl_b32 s48, s48, 13
        buffer_load_dword v{V_PFD}, v{LT}, s[{S_WQ}:{S_WQ+3}], s48 offen{NTQ}
        s_add_u32 s48, s48, {32*16*8192}
        buffer_load_dword v{V_PFD}, v{LT}, s[{S_WQ}:{S_WQ+3}], s48 offen{NTQ}
        K_nopf:""")
    if opt('QF', 0) == 0: wq_pf()
    for s, off in ((S_W1,48),(S_B1,56),(S_W2,64),(S_B2,72),(S_OUT,80)):
        e(f"s_load_dwordx2 s[{s}:{s+1}], s[0:1], {off}")
    e(f"""s_mov_b32 s{S_WS+2}, {WS_SZ}
    s_mov_b32 s{S_WS+3}, 0x20000
    s_mov_b32 s{S_PASS}, 0
    s_lshr_b32 s48, s2, 5
    s_lshr_b32 s53, s{S_XCD}, 1
    s_mul_i32 s53, s53, 7
    s_add_u32 s53, s53, s48
    s_cmp_lt_u32 s48, 7
    s_cselect_b32 s{S_G1}, 1, 0
    s_cmp_lt_u32 s53, 27
    s_cselect_b32 s{S_G1}, s{S_G1}, 0
    s_and_b32 s48, s{S_XCD}, 1
    s_lshl_b32 s48, s48, 2
    s_and_b32 s{S_UG}, s{S_QB}, 3
    s_add_u32 s{S_UG}, s{S_UG}, s48
    s_lshl_b32 s{S_UG}, s{S_UG}, 5
    s_add_u32 s{S_UG}, s{S_UG}, s53
    s_cmp_eq_u32 s{S_G1}, 0
    s_cselect_b32 s{S_STATE}, {1<<C_U}, 0
    s_cmp_lg_u32 s{S_WAVE}, 0
    s_cselect_b32 s{S_STATE}, -1, s{S_STATE}
    s_mov_b32 s49, 0xffff0000""")
    e(f"""v_mul_u32_u24 v{A0}, 1280, v{LN_R}
    v_lshl_add_u32 v{A0}, v{LN_L}, 3, v{A0}
    v_add_u32 v{A0}, {XS}, v{A0}
    v_and_b32 v{SB}, 3, v{V_LANE}
    v_bfe_u32 v{SB+1}, v{V_LANE}, 2, 2
    v_bfe_u32 v{SB+2}, v{V_LANE}, 4, 1
    v_lshrrev_b32 v{SB+3}, 5, v{V_LANE}
    v_lshl_add_u32 v{A0+1}, v{SB+2}, 2, v{SB}
    v_mul_u32_u24 v{A0+1}, 1280, v{A0+1}
    v_lshl_add_u32 v{A0+1}, v{SB+3}, 6, v{A0+1}
    v_lshl_add_u32 v{A0+1}, v{SB+1}, 3, v{A0+1}
    v_add_u32 v{A0+1}, {XS}, v{A0+1}
    s_lshr_b32 s54, s{S_SLOT}, 2
    s_lshl_b32 s54, s54, 1
    v_add_u32 v{A0+2}, s54, v{SB+2}
    v_mul_u32_u24 v{A0+2}, 20, v{A0+2}
    v_add_u32 v{A0+2}, v{A0+2}, v{SB+3}
    v_lshlrev_b32 v{A0+2}, 6, v{A0+2}
    v_lshl_add_u32 v{A0+2}, v{SB+1}, 4, v{A0+2}
    v_add_u32 v{A0+2}, v{A0+2}, v{SB}
    v_add_u32 v{A0+2}, s55, v{A0+2}
    v_lshlrev_b32 v{A0+2}, 4, v{A0+2}""")
    QP.addr_dma(e, SB+4)
    e(f"""s_lshl_b32 s52, s50, 19
    s_add_u32 s{S_K}, s{S_K}, s52
    s_addc_u32 s{S_K+1}, s{S_K+1}, 0
    s_add_u32 s{S_V}, s{S_V}, s52
    s_addc_u32 s{S_V+1}, s{S_V+1}, 0""")
    for s, sz in ((S_K,524288),(S_V,524288),(S_WO,4096*1280),(S_W1,2048*3456),(S_B1,3456),(S_W2,1728*4096),(S_B2,4096),(S_OUT,2048*1280)):
        e(f"s_mov_b32 s{s+2}, {sz}\ns_mov_b32 s{s+3}, 0x20000")
    e(f"""s_lshr_b32 s{S_CPF}, s2, 3
    s_lshl_b32 s{S_CPF}, s{S_CPF}, 2
    s_add_u32 s{S_CPF}, s{S_CPF}, s{S_WAVE}
    s_lshl_b32 s{S_CPF}, s{S_CPF}, 10
    s_and_b32 s{S_CPF}, s{S_CPF}, 0xffff
    s_add_u32 s{S_CPF}, s{S_CPF}, K_tail-K_pc""")
    if ts: e("v_mov_b32 v0, 0")
    stamp(e, 0)
    e.mark("align")
    if opt('QF', 0) == 0: e(f"s_cmp_lt_u32 s{S_WAVE}, 2\ns_cbranch_scc1 K_w0\ns_waitcnt vmcnt(2)\ns_branch K_w1\nK_w0:\ns_waitcnt vmcnt(0)\nK_w1:")
    else: e("s_waitcnt vmcnt(0)")
    stamp(e, 1)
    if opt('QF', 0) == 1: wq_pf()
    e(f"buffer_load_dword v{TG+1}, v{TG}, s[{S_DBG}:{S_DBG+3}], 0 offen sc1")
    def kv_pf():
        e(f"""s_cmp_lg_u32 s{S_WAVE}, 1
        s_cbranch_scc1 K_nokv
        v_lshlrev_b32 v{LT}, 7, v{V_LANE}
        s_lshl_b32 s48, s{S_QB}, 13
        buffer_load_dword v{V_PFD}, v{LT}, s[{S_K}:{S_K+3}], s48 offen
        buffer_load_dword v{V_PFD}, v{LT}, s[{S_V}:{S_V+3}], s48 offen
        v_lshrrev_b32 v{LT}, 1, v{V_LANE}
        v_mul_u32_u24 v{LT}, 1280, v{LT}
        v_and_b32 v{LT+1}, 1, v{V_LANE}
        v_lshl_add_u32 v{LT}, v{LT+1}, 7, v{LT}
        s_lshr_b32 s48, s2, 1
        s_mul_i32 s48, s48, {32*1280}
        s_and_b32 s53, s2, 1
        s_mul_i32 s53, s53, 640
        s_add_u32 s48, s48, s53
        buffer_load_dword v{V_PFD}, v{LT}, s[{S_WO}:{S_WO+3}], s48 offen
        buffer_load_dword v{V_PFD}, v{LT}, s[{S_WO}:{S_WO+3}], s48 offen offset:256
        buffer_load_dword v{V_PFD}, v{LT}, s[{S_WO}:{S_WO+3}], s48 offen offset:384
        K_nokv:""")
    if opt('KP', 0) == 1: kv_pf()
    unpack(e, LN_X, X, 10, 49)
    layernorm(e, X, D, O1, TA, 49, scale=math.log2(math.e)/math.sqrt(128.0))
    e("s_waitcnt lgkmcnt(0)")
    for j in range(5): e(f"ds_write_b64 v{A0}, v[{O1+2*j}:{O1+2*j+1}] offset:{256*j}")
    if Ctx.fine == "s": stamp(e, 14)
    e(f"s_waitcnt lgkmcnt(0)\ns_barrier\ns_cmp_lg_u32 s{S_WAVE}, 0\ns_cbranch_scc1 K_noxs")
    for n in range(10): e(f"ds_read2_b64 v[{SB+4*n}:{SB+4*n+3}], v{A0+1} offset0:{16*n} offset1:{16*n+4}")
    for n in range(10):
        if n % 2 == 0: e(f"s_mov_b32 s54, {2048*n}")
        e(f"s_waitcnt lgkmcnt({9-n})\nbuffer_store_dwordx4 v[{SB+4*n}:{SB+4*n+3}], v{A0+2}, {WSR}, s54 offen offset:{2048*(n%2)}{SC}")
    e("K_noxs:")
    if opt('KP', 0) == 2: kv_pf()
    if Ctx.fine == "s": stamp(e, 15)
    e("K_start:")
    T = 64
    urgent = R(f"""v_lshrrev_b32 v{T+2}, 2, v{V_LANE}
    v_and_b32 v{T+3}, 7, v{T+2}
    v_lshlrev_b32 v{T+3}, 1, v{T+3}
    v_and_b32 v{T+4}, 3, v{V_LANE}
    v_xor_b32 v{T+5}, v{T+3}, v{T+4}
    v_lshlrev_b32 v{T+5}, 4, v{T+5}
    v_lshl_add_u32 v{QP.V_WL}, v{T+2}, 8, v{T+5}
    v_xor_b32 v{QP.V_WL+1}, 64, v{QP.V_WL}
    v_xor_b32 v{QP.V_WL+2}, 128, v{QP.V_WL}
    v_xor_b32 v{QP.V_WL+3}, 192, v{QP.V_WL}""")
    urgent += [("raw", f"v_add_u32 v{QP.V_WA+k}, {LDS_V}, v{QP.V_WL+k}") for k in range(4)]
    urgent += flag_addr(T+9, C_XN, S_QB, 8) + R(f"s_lshl_b32 s56, s{S_WAVE}, 10\nv_add_u32 v{T+9}, s56, v{T+9}")
    urgent += R(f"""v_bfe_u32 v89, v{V_LANE}, 2, 2
    v_mul_u32_u24 v89, 1280, v89
    v_lshrrev_b32 v{T}, 4, v{V_LANE}
    s_lshl_b32 s54, s{S_WAVE}, 2
    v_add_u32 v{T}, s54, v{T}
    v_lshl_add_u32 v89, v{T}, 5, v89
    v_lshl_add_u32 v89, v{T+4}, 3, v89
    v_add_u32 v89, {HS}, v89
    v_lshlrev_b32 v88, 16, v{T}
    v_and_b32 v{T+1}, 15, v{V_LANE}
    v_lshl_add_u32 v88, v{T+1}, 4, v88
    s_lshl_b32 s55, s{S_QB}, 4
    s_add_u32 s55, s55, s54
    s_mul_i32 s{QP.S_XOFF}, s55, 20480
    v_lshlrev_b32 v{QP.V_XO}, 4, v{V_LANE}""")
    b = Em()
    b(f"""s_lshl_b32 s50, s{S_XCD}, 2
    s_lshr_b32 s52, s2, 6
    s_add_u32 s50, s50, s52
    s_mov_b32 s{S_KOFF}, s{S_W4K}
    s_mov_b32 s{S_VOFF}, s{S_W4K}
    s_lshl_b32 s{S_OST}, s55, 17
    s_lshl_b32 s54, s50, 12
    s_add_u32 s{S_OST}, s{S_OST}, s54
    s_add_u32 s{S_OST}, s{S_OST}, {OF_OFF}
    s_lshl_b32 s{S_PF}, s2, 2
    s_add_u32 s{S_PF}, s{S_PF}, s{S_WAVE}
    s_lshl_b32 s54, s50, 2
    s_add_u32 s54, s54, s{S_WAVE}
    s_mul_i32 s{QP.S_WOS}, s54, {32*1280}
    s_mul_i32 s53, s{S_QB}, 160
    s_add_u32 s{QP.S_WOS}, s{QP.S_WOS}, s53
    s_mul_i32 s{QP.S_WOD}, s{S_QB}, {5*0x20000}
    s_lshl_b32 s54, s54, 10
    s_add_u32 s{QP.S_WOD}, s{QP.S_WOD}, s54
    s_add_u32 s{QP.S_WOD}, s{QP.S_WOD}, {WOF_OFF}
    s_mul_i32 s{S_PF}, s{S_PF}, {56*128}
    s_lshl_b32 s50, s{S_SLOT}, 8
    s_add_u32 s50, s50, {HT_OFF}
    s_cmp_lg_u32 s{S_PASS}, 0
    s_cselect_b32 s50, {WS_SZ}, s50
    s_add_u32 s51, s50, 0x100000
    s_add_u32 s52, s50, 0x200000
    s_cmp_ge_u32 s{S_WAVE}, 2
    s_cselect_b32 s52, {WS_SZ}, s52
    v_bfe_u32 v{T+4}, v{V_LANE}, 1, 1
    v_xor_b32 v{T+4}, v{T+3}, v{T+4}
    v_lshlrev_b32 v{T+4}, 4, v{T+4}
    v_lshl_add_u32 v{T+4}, v{T+2}, 8, v{T+4}
    v_and_b32 v{T+5}, 1, v{V_LANE}
    v_lshl_add_u32 v{T+4}, v{T+5}, 3, v{T+4}
    v_add_u32 v{V_VA}, {LDS_V}, v{T+4}""")
    for db in range(1, 8): b(f"v_xor_b32 v{V_VA+db}, {32*db}, v{V_VA}")
    b(f"""v_and_b32 v{T}, 15, v{V_LANE}
    v_lshrrev_b32 v{T+1}, 4, v{V_LANE}
    v_and_b32 v{T+2}, 7, v{V_LANE}
    v_lshlrev_b32 v{V_PFA}, 7, v{T+2}
    v_lshlrev_b32 v{T+2}, 1, v{T+2}
    v_xor_b32 v{T+2}, v{T+2}, v{T+1}
    v_lshlrev_b32 v{T+2}, 4, v{T+2}
    v_lshl_add_u32 v{V_KA}, v{T}, 8, v{T+2}
    v_xor_b32 v{V_KA+1}, 64, v{V_KA}
    v_xor_b32 v{V_KA+2}, 128, v{V_KA}
    v_xor_b32 v{V_KA+3}, 192, v{V_KA}
    v_lshlrev_b32 v{T+2}, 1, v{T+1}
    v_xor_b32 v{T+2}, v{T+2}, v{T}
    v_lshlrev_b32 v{T+2}, 4, v{T+2}
    v_lshl_add_u32 v{V_DM}, v{T+1}, 8, v{T+2}
    v_xor_b32 v{V_DM+1}, 128, v{V_DM}
    v_mov_b32 v{T+6}, 0x3f803f80
    v_cmp_gt_u32 vcc, 2, v{T}
    v_mov_b32 v{T+7}, 0x44444444
    v_mov_b32 v{T+8}, 0xeeeeeeee
    v_cndmask_b32 v{V_ONE}, 0, v{T+6}, vcc
    v_cmp_eq_u32 vcc, 1, v{T+5}
    v_mov_b32 v{V_ONE+1}, v{V_ONE}
    v_mov_b32 v{V_ONE+2}, v{V_ONE}
    v_mov_b32 v{V_ONE+3}, v{V_ONE}
    v_cndmask_b32 v{V_IDX}, v{T+7}, v{T+8}, vcc""")
    for n in range(5):
        b(f"""v_add_u32 v{T}, {64*n}, v{V_LANE}
        v_mul_u32_u24 v{T+1}, 6554, v{T}
        v_lshrrev_b32 v{T+1}, 16, v{T+1}
        v_mul_u32_u24 v{T+2}, 10, v{T+1}
        v_sub_u32 v{T}, v{T}, v{T+2}
        v_mul_u32_u24 v{T+1}, 1280, v{T+1}
        v_lshl_add_u32 v{QP.V_OD+n}, v{T}, 4, v{T+1}""")
    for it in urgent: e.add(it)
    urgent = []
    if Ctx.fine == "s": stamp(e, 16)
    e.vm("xs", "s_nop 0")
    grp = []
    for it in b.items:
        if it[1].startswith("s_cselect") or (grp and grp[-1][0][1].startswith("v_cmp") and not grp[-1][-1][1].startswith("v_cndmask")): grp[-1].append(it)
        else: grp.append([it])
    NT = opt('NT', 8)
    wq = [g for j in range(NT) for g in QP.wq_dma(j)]
    nu = -(-len(grp)//len(wq))
    hp = [int(x) for x in opt('HQ', '10/5/15/25').split('/')]
    e.mark("warm")
    for k, g in enumerate(wq):
        if k == hp[0]:
            l0 = lab("w0")
            e(f"s_bitcmp1_b32 s{S_STATE}, {C_XN}\ns_cbranch_scc1 {l0}")
            e.wvm("xs")
            spin(e, TG+1, TG, 1, have=True, cmp=f"v_cmp_eq_u32 vcc, 0, v{TG+1}", srd=S_DBG)
            e(f"v_readfirstlane_b32 s{S_TAG}, v{TG+1}\ns_nop 1")
            for it in signal(C_XN, S_SLOT, LT): e.add(it)
            e(f"{l0}:")
            stamp(e, 2)
        for w in range(1, 4):
            if k == hp[w]:
                e(f"s_cmp_lg_u32 s{S_WAVE}, {w}\ns_cbranch_scc1 K_hop{w}\ns_mov_b64 exec, 0\ns_branch K_pg{w-1}\nK_back{w-1}:\ns_mov_b64 exec, -1\nK_hop{w}:")
        if k == len(wq)-opt('PB', 1): e.vm("xp", f"buffer_load_dword v{T+10}, v{T+9}, {WSR}, 0 offen sc1")
        for it in g + [x for y in grp[:nu] for x in y]: e.add(it)
        grp = grp[nu:]
    assert not grp
    if Ctx.fine == "s": stamp(e, 21)
    b = Em()
    b(f"s_mov_b32 s53, 0xffff0000\nv_min_u32 v{A0}, {LDS_SP+8*1280}, v{A0}\nv_max_u32 v{A0}, {LDS_SP}, v{A0}\nv_and_b32 v{A0}, -8, v{A0}")
    ln_finish(b, D, O2, TA+2)
    unpack(b, O2, X, 10, 53)
    layernorm(b, X, D, O2, TA, 53)
    cut = (len(b.items)*opt('LC', 60))//100
    while b.items[cut][1].startswith(("s_nop", "v_add_f32_dpp", "v_perm")): cut += 1
    for it in b.items[:cut]: e.add(it)
    b.items = b.items[cut:]
    e.wvm("xp")
    l0 = lab("tag")
    e(f"s_cmp_lg_u32 s{S_PASS}, 0\ns_cbranch_scc1 {l0}")
    spin(e, TG+1, TG, 1, have=True, cmp=f"v_cmp_eq_u32 vcc, 0, v{TG+1}", srd=S_DBG)
    e(f"v_readfirstlane_b32 s{S_TAG}, v{TG+1}\ns_nop 1\n{l0}:")
    spin(e, T+10, T+9, 1, have=True)
    stamp(e, 3)
    b("s_barrier")
    for k, it in enumerate(QP.w_reads(0)[:8]): b.add(("ds", ("W0", k//4), it[2]))
    for j in range(5): b.ds("hw", f"ds_write_b64 v{A0}, v[{O2+2*j}:{O2+2*j+1}] offset:{256*j}")
    qproj(e, b.items)
    e(f"s_cmp_lg_u32 s{S_PASS}, 0\ns_cbranch_scc1 K_truemax\nK_it0:")
    l0_ = [(g, [("ds", "wor", f"ds_read_b64_tr_b16 {ar(A_K+2*k,2)}, v{V_PFD} offset:{32*(k//2)+2560*(k%2)}")]) for k, g in enumerate((3, 6, 6, 7, 8, 8, 9, 11, 15, 19))]
    l0_.append((23, [("wait", None, "wor")]))
    l0_ += [(27+8*f, [("vm", "wos", f"buffer_store_dwordx4 {ar(A_K+4*f,4)}, v{QP.V_XO}, s[{S_WS}:{S_WS+3}], s{QP.S_WOD} offen{SC}")]) for f in range(5)]
    l0_ += [(31+8*f, R(f"s_add_u32 s{QP.S_WOD}, s{QP.S_WOD}, 0x20000")) for f in range(4)]
    l0_ += [(126, [("wait", "wos", None)]), (131, signal(C_H, S_QB, 21))]
    attn_iter(e, 0, first_pv=True, pf=True, late=l0_, kbase=K1B)
    stamp(e, 5)
    e(f"s_mov_b32 s{S_CNT}, 7")
    e.mark("loop0")
    for i in range(1, 5): attn_iter(e, i, pf=True)
    e.mark("loop1")
    for i in range(5, 9): attn_iter(e, i, pf=True)
    e.mark("loop2")
    e("K_tail:")
    stamp(e, 6)
    late29 = [(8, poll_ld(V_T, V_HPA, S_DBG)), (129, R(f"v_and_b32 v24, 7, v{V_LANE}\nv_lshl_add_u32 v24, v24, 4, 64"))]
    late29 += [(11+4*(k//2), [it]) for k, it in enumerate(G1.setup1())]
    attn_iter(e, 9, dma=False, late=late29, extra=list(zip([67, 75, 83, 91, 99, 107, 111, 115], G1.wl(0))))
    spin(e, V_T, 24, 8, have=True, cmp=f"v_cmp_gt_u32 vcc, 32, v{V_T}", srd=S_DBG)
    e(f"""s_cmp_eq_u32 s{S_G1}, 0
    s_cbranch_scc1 K_plain
    s_cmp_lg_u32 s{S_PASS}, 0
    s_cbranch_scc1 K_plain""")
    tail_gemm1(e)
    final(e)
    e.mark("cold")
    e("K_plain:")
    tail_plain(e)
    e(f"K_late:\nv_lshlrev_b32 v{FS.V_SD}, 4, v{V_LANE}")
    spin(e, FS.V_FD, FS.V_FA, 4)
    for g in FS.direct0("untracked") + FS.dma(1, "untracked") + FS.dma(2, "untracked"):
        for it in g: e.add(it)
    e("s_branch K_final")
    e("K_redo_u:\ns_waitcnt lgkmcnt(0)\ns_barrier")
    for it in g1_red_reads(): e.add(it)
    e("s_waitcnt lgkmcnt(0)")
    for it in gelu_items(G1.V_L16, 50): e.add(it)
    e("s_waitcnt lgkmcnt(0)\ns_barrier")
    for part in u_out(G1.V_L16, 50):
        for g in part:
            for it in g: e.add(it)
    e(f"""K_redo:
    s_mov_b32 s{S_PASS}, 1
    s_waitcnt vmcnt(0) lgkmcnt(0)
    s_barrier""")
    for it in signal(C_U, S_UG, V_T+8): e.add(it)
    QP.addr_dma(e, 40)
    e("s_branch K_start")
    KA2 = V_P+32
    e(f"K_truemax:\ns_waitcnt vmcnt(0)\ns_barrier\ns_mov_b32 s{QP.S_WOD}, {WS_SZ}\ns_mov_b32 s50, s{S_W4K}\ns_mov_b32 s51, 33")
    for k in range(4): e(f"v_add_u32 v{KA2+k}, {LDS_SP}, v{V_KA+k}")
    for qb in range(4): e(f"v_mov_b32 v{V_M+4*qb}, 0xff800000")
    e(f"K_mloop:\ns_and_b32 s50, s50, 0x7ffff\ns_add_u32 m0, s{S_W4K}, {LDS_SP}\ns_nop 0")
    for n in range(4): e(f"buffer_load_dwordx4 v{V_DM+(n&1)}, s[{S_K}:{S_K+3}], s50 offen offset:{1024*n} lds")
    e("s_add_u32 s50, s50, 16384\ns_waitcnt vmcnt(0)\ns_barrier")
    for it in k_reads(0, "fb", va=KA2): e.add(it)
    e("s_waitcnt lgkmcnt(0)\ns_barrier")
    for n in range(64):
        kb, qb, ks = n//16, (n//4) % 4, n % 4
        c = "0" if ks == 0 else vr(Sreg(kb,qb), 4)
        e(f"{MF} {vr(Sreg(kb,qb),4)}, {ar(Kreg(kb,ks),4)}, {vr(Qreg(qb,ks),4)}, {c}")
    e("s_nop 7")
    for kb in range(4):
        for qb in range(4):
            sx, m = Sreg(kb,qb), V_M+4*qb
            e(f"v_max3_f32 v{m}, v{m}, v{sx}, v{sx+1}\nv_max3_f32 v{m}, v{m}, v{sx+2}, v{sx+3}")
    e("s_sub_u32 s51, s51, 1\ns_cmp_lg_u32 s51, 0\ns_cbranch_scc1 K_mloop")
    for qb in range(4):
        m = V_M+4*qb
        xlane(e, m, m+1, "v_max_f32")
        e(f"v_sub_f32 v{m}, 0, v{m}\nv_mov_b32 v{m+1}, v{m}\nv_mov_b32 v{m+2}, v{m}\nv_mov_b32 v{m+3}, v{m}")
    for x in range(64): e(f"v_add_f32 v{V_S+x}, v{V_S+x}, v{V_M+4*((x//4)%4)}")
    for x in range(61): e(f"v_exp_f32 v{V_S+x}, v{V_S+x}")
    for x in range(0, 60, 2):
        kb, qb, r = x//16, (x//4) % 4, x % 4
        e(ppack(Preg(0,qb,kb//2)+2*(kb%2)+r//2, V_S+x))
    e("s_nop 1\ns_branch K_it0")
    e("K_exit:\ns_endpgm\nK_last:")
    lines = resolve(e.items)
    i0, i1, i2 = (lines.index(("mark", m)) for m in ("loop0", "loop1", "loop2"))
    b1, b2 = lines[i0+1:i1], lines[i1+1:i2]
    def wle(x, y):
        import re
        mx, my = re.match(r's_waitcnt vmcnt\((\d+)\)(.*)', x), re.match(r's_waitcnt vmcnt\((\d+)\)(.*)', y)
        return mx and my and mx.group(2) == my.group(2)
    b2 = [y if x == y else min(x, y, key=lambda t: int(t.split('(')[1].split(')')[0])) for x, y in zip(b1, b2) if x == y or wle(x, y)]
    assert len(b1) == len(b2), [(x, y) for x, y in zip(b1, b2) if x != y][:5]
    if ts and Ctx.fine == "l":
        b2 = b2 + ["s_memtime s[84:85]", "s_memrealtime s[86:87]", f"s_add_u32 s56, s{S_CNT}, 14", "s_waitcnt lgkmcnt(0)", "v_writelane_b32 v0, s84, s56" if False else "s_mov_b32 m0, s56", "s_nop 1", "v_writelane_b32 v0, s84, m0", "s_add_u32 m0, m0, 32", "s_nop 1", "v_writelane_b32 v0, s86, m0"]
    loop = [("mark", "a64"), "K_loop:"] + b2 + ([f"s_cmp_lg_u32 s{S_CNT}, 0", "s_cbranch_scc1 K_loop"] if opt('LB', 1) else [f"s_sub_u32 s{S_CNT}, s{S_CNT}, 1", f"s_cmp_lg_u32 s{S_CNT}, 0", "s_cbranch_scc1 K_loop"])
    lines = lines[:i0] + loop + lines[i2+1:]
    lines = place_pages(lines)
    ref = open("recurrent_scan__mha_block_cached__mixer_token_mlp__prompt.s.ref").read().split("\n")
    head = [l for l in ref if l.startswith(";") and "@launch" not in l]
    out = head + [f"; @launch grid=(256,1,1) block=(256,1,1) lds={LDS_SZ}", '.amdgcn_target "amdgcn-amd-amdhsa--gfx950"', ".text"]
    out += lines + ['.section .rodata,"a"', kdesc(NAME, 512, 256, 102)]
    return "\n".join(out) + "\n"

if __name__ == "__main__":
    import os
    Ctx.touch = bool(os.environ.get("TOUCH"))
    if os.environ.get("OUT"):
        open(os.environ["OUT"], "w").write(gen(False)); sys.exit(0)
    open("f_nt.s", "w").write(gen(False))
    Ctx.fine = sys.argv[1] if len(sys.argv) > 1 else None
    open("f_ts.s", "w").write(gen(True))
```

```python
from asmlib import *
import math, sys, os

XN_OFF, HT_OFF, U_OFF, WOF_OFF, OF_OFF = 0x0, 0x280000, 0x580000, 0x800000, 0x1000000
PART_OFF = 0x2400000
OP = 0x20000 + int(os.environ.get('OPAD', '4352'))
HPI = 65536 + int(os.environ.get('HPAD', '0'))
HCH = -(-20*HPI//(256*128))*128
WS_SZ = 0x4000000
TS_OFF = 0x4000000
NAME = "recurrent_scan__mha_block_cached__mixer_token_mlp__prompt_kernel"
MF = "v_mfma_f32_16x16x32_bf16"
V_LANE, V_KA, V_VA, V_DM, V_IDX, V_T, V_ONE = 1, 2, 6, 14, 16, 17, 28
V_PFA, V_PFD, V_PFL = 24, 25, 18
V_HPD, V_HPA, V_P1A, V_PHA = 20, 26, 27, 17
S_G1, S_P1, S_PH = 78, 79, 101
V_Q, V_S, V_P, V_M, V_L = 32, 96, 160, 224, 240
A_O, A_K, A_V = 0, 128, 192
S_K, S_V, S_WQ, S_WS, S_W1, S_B1, S_W2, S_WO, S_X, S_DBG, S_B2, S_OUT, S_CODE, S_TS = 4, 8, 12, 16, 20, 24, 28, 32, 36, 60, 64, 68, 72, 84
S_W4K, S_KOFF, S_VOFF, S_CNT, S_WAVE, S_PASS, S_OST, S_STATE, S_PF = 40, 41, 42, 43, 44, 45, 57, 58, 59
S_CPF = 3
S_QB, S_XCD, S_UG, S_SLOT, S_TAG = 80, 81, 82, 83, 88
LDS_K, LDS_V, LDS_SP, LDS_FLAG, LDS_SZ = 0, 65536, 131072, 98304, 163840
LAG = 10
NTQ = os.environ.get("NTQ", "")
SC = " sc1"

import os
OPT = dict(x.split('=') for x in os.environ.get('OPT', '').split(',') if x)
def opt(k, d): return type(d)(OPT.get(k, d))
class Ctx:
    ts = False
    touch = False
    fine = None
    uid = 0
def lab(p):
    Ctx.uid += 1
    return f"L{p}_{Ctx.uid}"
def R(t): return [("raw", x.strip()) for x in t.strip("\n").split("\n") if x.strip()]

def stamp(e, idx):
    if os.environ.get("DIAG") == str(idx): e("s_memrealtime s[84:85]\ns_waitcnt lgkmcnt(0)")
    if Ctx.ts:
        e(f"s_memtime s[84:85]\ns_memrealtime s[86:87]\ns_waitcnt lgkmcnt(0)\nv_writelane_b32 v0, s84, {idx}\nv_writelane_b32 v0, s86, {32+idx}")

FL_OFF = 0xE00000
C_XN, C_H, C_O, C_U, C_P = 0, 1, 2, 3, 4
def signal(kind, sg, t):
    l = lab("sig")
    if kind == C_H:
        st = f"v_mov_b32 v{t}, 1\nv_lshlrev_b32 v{t+1}, 4, v{t+1}\ns_mov_b64 exec, 1\nbuffer_atomic_add v{t}, v{t+1}, s[{S_DBG}:{S_DBG+3}], 0 offen offset:64 sc1"
    else:
        st = f"v_mov_b32 v{t}, s{S_TAG}\nv_lshlrev_b32 v{t+1}, 7, v{t+1}\nv_add_u32 v{t+1}, {FL_OFF+kind*32768}, v{t+1}\ns_mov_b64 exec, 1\nbuffer_store_dword v{t}, v{t+1}, s[{S_WS}:{S_WS+3}], 0 offen sc1"
    return R(f"""s_bitcmp1_b32 s{S_STATE}, {kind}
    s_cbranch_scc1 {l}
    s_bitset1_b32 s{S_STATE}, {kind}
    v_mov_b32 v{t+1}, s{sg}
    {st}
    s_mov_b64 exec, -1
    {l}:""")
def flag_addr(a, kind, sg, n):
    r = R(f"v_min_u32 v{a}, {n-1}, v{V_LANE}\nv_lshlrev_b32 v{a}, 7, v{a}")
    if sg is not None: r += R(f"s_lshl_b32 s56, s{sg}, 12\ns_add_u32 s56, s56, {FL_OFF+kind*32768}\nv_add_u32 v{a}, s56, v{a}")
    else: r += R(f"v_add_u32 v{a}, {FL_OFF+kind*32768}, v{a}")
    return r
def poll_ld(d, a, srd=None):
    srd = S_WS if srd is None else srd
    return [("vm", "poll", f"buffer_load_dword v{d}, v{a}, s[{srd}:{srd+3}], 0 offen sc1")]
def spin_items(*a, **k):
    t = Em(); spin(t, *a, **k); return t.items
def spin(e, d, a, sleep, have=False, cmp=None, srd=None):
    l0, l1 = lab("spin"), lab("spun")
    srd = S_WS if srd is None else srd
    cmp = cmp or f"v_cmp_ne_u32 vcc, s{S_TAG}, v{d}"
    if have: e(f"{cmp}\ns_cbranch_vccz {l1}")
    e(f"""s_mov_b32 s56, 0x40000
    {l0}:
    buffer_load_dword v{d}, v{a}, s[{srd}:{srd+3}], 0 offen sc1
    s_waitcnt vmcnt(0)
    {cmp}
    s_cbranch_vccz {l1}
    s_sleep {sleep}
    s_sub_u32 s56, s56, 1
    s_cmp_lg_u32 s56, 0
    s_cbranch_scc1 {l0}
    {l1}:""")

S_SEL = 100
def ppack(d, x):
    if opt('TR', 0): return f"v_perm_b32 v{d}, v{x+1}, v{x}, s{S_SEL}"
    return f"v_cvt_pk_bf16_f32 v{d}, v{x}, v{x+1}"
def Sreg(kb, qb): return V_S + 16*kb + 4*qb
def Preg(par, qb, t): return V_P + 32*par + 8*qb + 4*t
def Qreg(qb, ks): return V_Q + 16*qb + 4*ks
def Kreg(kb, ks): return A_K + 16*kb + 4*ks
def Vreg(db, t): return A_V + 8*db + 4*t
def Oreg(db, qb): return A_O + 16*db + 4*qb

def allreduce32(e, v, t):
    for k in (8, 4, 2, 1):
        e(f"s_nop 1\nv_add_f32_dpp v{v}, v{v}, v{v} row_ror:{k} row_mask:0xf bank_mask:0xf")
    e(f"v_mov_b32 v{t}, v{v}\ns_nop 1\nv_permlane16_swap_b32 v{t}, v{v}\ns_nop 1\nv_add_f32 v{v}, v{v}, v{t}")
def round_bf16(e, v): e(f"v_cvt_pk_bf16_f32 v{v}, v{v}, v{v}\nv_and_b32 v{v}, 0xffff0000, v{v}")
def unpack(e, src, dst, n, smask):
    for i in range(n): e(f"v_lshlrev_b32 v{dst+2*i}, 16, v{src+i}\nv_and_b32 v{dst+2*i+1}, s{smask}, v{src+i}")
def pk(op, d, a, b, bc=False):
    return f"v_pk_{op}_f32 {vr(d,2)}, {vr(a,2)}, {vr(b,2)}" + (" op_sel_hi:[1,0]" if bc else "")
def ln_finish(e, D, OUT, B, T=None):
    T = D if T is None else T
    for i in range(0, 20, 2): e(pk("mul", T+i, D+i, B, True))
    for i in range(10): e(f"v_cvt_pk_bf16_f32 v{OUT+i}, v{T+2*i}, v{T+2*i+1}")
def layernorm(e, X, D, OUT, A, smask, scale=None):
    B, T = A+2, A+4
    e(pk("add", A, X, X+2))
    for i in range(4, 20, 2): e(pk("add", A, A, X+i))
    e(f"v_add_f32 v{A}, v{A}, v{A+1}")
    allreduce32(e, A, T)
    e(f"v_mul_f32 v{A}, {fhex(-1.0/640)}, v{A}")
    for i in range(0, 20, 2): e(pk("add", D+i, X+i, A, True))
    e(pk("mul", B, D, D))
    for i in range(2, 20, 2): e(f"v_pk_fma_f32 {vr(B,2)}, {vr(D+i,2)}, {vr(D+i,2)}, {vr(B,2)}")
    e(f"v_add_f32 v{B}, v{B}, v{B+1}")
    allreduce32(e, B, T)
    e(f"v_mul_f32 v{B}, {fhex(1.0/640)}, v{B}")
    round_bf16(e, A); round_bf16(e, B)
    e(f"v_add_f32 v{B}, {fhex(1e-5)}, v{B}")
    round_bf16(e, B)
    e(f"v_sqrt_f32 v{B}, v{B}\ns_nop 0")
    round_bf16(e, B)
    e(f"v_rcp_f32 v{B}, v{B}")
    for i in range(0, 20, 2): e(pk("add", D+i, X+i, A, True))
    for i in range(10): e(f"v_cvt_pk_bf16_f32 v{OUT+i}, v{D+2*i}, v{D+2*i+1}")
    unpack(e, OUT, D, 10, smask)
    if scale is None: ln_finish(e, D, OUT, B)
    else:
        e(f"v_mul_f32 v{T}, {fhex(scale)}, v{B}")
        ln_finish(e, D, OUT, T, X)

def dma_kv(which, slot, tag):
    base = (LDS_K if which == "K" else LDS_V) + 16384*slot
    s, off = (S_K, S_KOFF) if which == "K" else (S_V, S_VOFF)
    m0 = ("raw", f"s_add_u32 m0, s{S_W4K}, {base}")
    d = [("vm", tag, f"buffer_load_dwordx4 v{V_DM+(n&1)}, s[{s}:{s+3}], s{off} offen offset:{1024*n}{opt('KVF', '').replace('_', ' ')} lds") for n in range(4)]
    inc = ("raw", f"s_add_u32 s{off}, s{off}, 16384")
    return m0, d, inc
def k_reads(slot, tag, kbase=A_K, va=V_KA):
    return [("ds", tag, f"ds_read_b128 {ar(Kreg(kb,ks)-A_K+kbase,4)}, v{va+ks} offset:{16384*slot+4096*kb}") for kb in range(4) for ks in range(4)]
def v_reads(slot, tag):
    return [("ds", (tag, db), f"ds_read_b64_tr_b16 {ar(Vreg(db,t)+2*hj,2)}, v{V_VA+db} offset:{16384*slot+4096*(2*t+hj)}")
            for db in range(8) for t in range(2) for hj in range(2)]

def attn_iter(e, i, do_qk=True, do_pv=True, first_pv=False, dma=True, wrap_in=True, extra=None, pf=False, endbar=True, late=None, sm_first=False, kbase=A_K, vnext=False, vpre=False):
    NG = 132
    mf = [None]*NG
    gaps = [[] for _ in range(NG)]
    par = i & 1
    if do_qk:
        for n in range(64):
            kb, qb, ks = n//16, (n//4) % 4, n % 4
            c = vr(V_M+4*qb, 4) if ks == 0 else vr(Sreg(kb,qb), 4)
            if opt('BZ', 1) and qb % 2: ks = 3-ks
            mf[n] = f"{MF} {vr(Sreg(kb,qb),4)}, {ar(Kreg(kb,ks)-A_K+kbase,4)}, {vr(Qreg(qb,ks),4)}, {c}"
    if do_pv:
        for m in range(64):
            db, qb, t = m//8, (m//2) % 4, m % 2
            c = "0" if (first_pv and t == 0) else None
            if opt('BZ', 1):
                if qb % 2: t = 1-t
                if db % 2: qb = 3-qb
            c = c or ar(Oreg(db,qb), 4)
            mf[64+m] = f"{MF} {ar(Oreg(db,qb),4)}, {vr(Preg(par,qb,t),4)}, {ar(Vreg(db,t),4)}, {c}"
        for qb in range(4):
            mf[128+qb] = f"v_smfmac_f32_16x16x64_bf16 {vr(V_L+4*qb,4)}, {vr(V_ONE,4)}, {vr(Preg(par,qb,0),8)}, v{V_IDX}"
        if sm_first: mf[64:132] = mf[128:132] + mf[64:128]
        elif opt('SM', 0) == 1: mf[64:132] = [x for k in range(4) for x in mf[64+16*k:80+16*k] + [mf[128+k]]]
        elif opt('SM', 0) == 2: mf[64:132] = mf[128:132] + mf[64:128]
        if not vpre:
            for j, it in enumerate(v_reads(i % 4, ("V", i))): gaps[1+2*j].append(it)
        gaps[63].append(("wait", None, (("V", i), 5)))
        gaps[75].append(("wait", None, (("V", i), 7)))
    if do_qk and dma != "nok":
        kpos = [65,69,71,73,77,79,81,85,87,89,93,95,97,101,103,105]
        for p, it in zip(kpos, k_reads((i+2) % 4, ("K", i+2))): gaps[p].insert(0, it)
    if dma is True:
        m0, d, inc = dma_kv("K", (i+5) % 4, ("D", i))
        gaps[6].append(m0)
        for j in range(4): gaps[67+8*j].insert(0, d[j])
        gaps[91].append(inc)
        m0, d, inc = dma_kv("V", (i+3) % 4, ("D", i))
        gaps[95].append(m0)
        for j in range(4): gaps[99+8*j].insert(0, d[j])
        gaps[123].append(inc)
    if pf:
        k = i % 4
        def ld(va, sp, so, d=V_PFL, fl=""): return ("vm", ("D", i), f"buffer_load_dword v{d}, v{va}, s[{sp}:{sp+3}], {so} offen{fl}")
        if k == 0 and opt('WM', 1):
            gaps[111].insert(0, ld(V_PFA, S_W2, f"s{S_PF}"))
            gaps[119].insert(0, ld(V_PFA, S_X, f"s{S_PF}"))
            gaps[119].append(("raw", f"s_add_u32 s{S_PF}, s{S_PF}, 1024"))
        if k == 1:
            gaps[6] += R(f"s_cmp_le_u32 s{S_CNT}, 3\ns_cselect_b32 s56, 0, 256")
            gaps[8].insert(0, ld(V_HPA, S_DBG, "s56", V_HPD, " sc1"))
            gaps[111] += R(f"s_cmp_le_u32 s{S_CNT}, 2\ns_cselect_b32 s56, s{S_P1}, {0x1000000}")
            gaps[119].insert(0, ld(V_P1A, S_W1, "s56"))
            gaps[119].append(("raw", f"s_sub_u32 s{S_P1}, s{S_P1}, {8*3456}"))
        if k == 2 and opt('CP', 1):
            gaps[111] += R(f"s_cmp_eq_u32 s{S_CNT}, 2\ns_cselect_b32 s56, s{S_CPF}, {0x1000000}")
            gaps[119].insert(0, ld(V_PFA, S_CODE, "s56"))
        if opt('PT', 0) and i > 0:
            if k == 1: gaps[117] = R(f"s_cmp_ge_u32 s{S_CNT}, 4\ns_cselect_b32 s55, s54, {WS_SZ}") + gaps[117]
            gaps[121 if k else 117].insert(0, ("vm", ("D", i), f"buffer_load_dword v{V_PFL}, v{V_PFA}, s[{S_WS}:{S_WS+3}], s55 offen offset:{1024*k}"))
            if k == 2: gaps[8].append(("raw", f"s_add_u32 s54, s54, 0x20000"))
        if k == 0 and i > 0:
            gaps[109].insert(0, ("raw", f"v_cmp_gt_u32 vcc, 32, v{V_HPD}"))
            gaps[113] = R(f"s_cmp_eq_u64 vcc, 0\ns_cselect_b32 s56, s{S_PH}, {WS_SZ}") + gaps[113]
            gaps[121] = R(f"s_cmp_ge_u32 s{S_CNT}, 2\ns_cselect_b32 s56, s56, {WS_SZ}") + gaps[121]
        if k == 0:
            if i == 0: gaps[121].insert(0, ("raw", f"s_mov_b32 s56, {WS_SZ}"))
            hp_ = 125 if opt('WP', 127) != 131 else 127
            gaps[hp_].insert(0, ("vm", ("D", i+1), f"buffer_load_dword v{V_PFL}, v{V_PHA}, s[{S_WS}:{S_WS+3}], s56 offen"))
            gaps[8].append(("raw", f"s_sub_u32 s{S_PH}, s{S_PH}, {HCH}"))
    if extra:
        for pos, grp in extra: gaps[pos] = list(grp) + gaps[pos]
    if vnext:
        for j, it in enumerate(v_reads((i+1) % 4, ("V", i+1))): gaps[73+2*j if j < 28 else 100+j].insert(0, it)
    if late:
        for pos, grp in late: gaps[pos] += list(grp)
    def expi(x): return ("raw", f"v_exp_f32 v{V_S+x}, v{V_S+x}")
    def cvti(c, p):
        x = 2*c; kb, qb, r = x//16, (x//4) % 4, x % 4
        return ("raw", ppack(Preg(p,qb,kb//2)+2*(kb%2)+r//2, V_S+x))
    for x in range(64):
        n = 2*x + LAG
        if n < NG:
            if do_qk: gaps[n].append(expi(x))
        elif wrap_in: gaps[n-NG].append(expi(x))
    for c in range(32):
        n = 4*c + LAG + 3
        if n < NG:
            if do_qk: gaps[n].append(cvti(c, par ^ 1))
        elif wrap_in: gaps[n-NG].append(cvti(c, par))
    if do_qk and endbar:
        wp, bp = (opt('WP', 127), opt('BP', 127)) if dma is True else (131, 131)
        if endbar is True:
            vt = ("D", i-2) if dma is True else "poll"
            gaps[wp].insert(0, ("wait", vt, "ALL"))
        if wp == bp: gaps[bp].insert(1 if endbar is True else 0, ("raw", "s_barrier"))
        else: gaps[bp].insert(0, ("raw", "s_barrier"))
    if pf and i > 0 and i % 4 == 0 and opt('LB', 1):
        gaps[129] = R(f"s_sub_u32 s{S_CNT}, s{S_CNT}, 1") + gaps[129]
    for n in range(NG):
        if mf[n] is not None: e(mf[n])
        elif gaps[n]: e("s_nop 0")
        for it in gaps[n]: e.add(it)

def xlane(e, v, t, op):
    e(f"v_mov_b32 v{t}, v{v}\ns_nop 1\nv_permlane16_swap_b32 v{t}, v{v}\ns_nop 1\n{op} v{v}, v{v}, v{t}")
    e(f"v_mov_b32 v{t}, v{v}\ns_nop 1\nv_permlane32_swap_b32 v{t}, v{v}\ns_nop 1\n{op} v{v}, v{v}, v{t}")

K1B = A_O+64
class QP:
    V_WD, V_WA, V_XO = V_T, V_T+2, V_T+6
    V_WL, V_OD, V_OA, V_OF = V_Q, V_Q+4, V_Q+9, V_Q+12
    S_WOFF, S_XOFF, S_TMP, S_WOS, S_WOD = 46, 47, 48, 76, 77
    @staticmethod
    def slot(j): return (j+6) % 8
    @classmethod
    def addr_dma(c, e, T):
        e(f"""v_lshrrev_b32 v{T}, 4, v{V_LANE}
        v_and_b32 v{T+1}, 15, v{V_LANE}
        v_lshlrev_b32 v{T+2}, 1, v{T}
        v_xor_b32 v{T+1}, v{T+1}, v{T+2}
        v_lshlrev_b32 v{T+1}, 4, v{T+1}
        v_lshl_add_u32 v{c.V_WD}, v{T}, 13, v{T+1}
        v_xor_b32 v{c.V_WD+1}, 128, v{c.V_WD}
        s_lshl_b32 s{c.S_WOFF}, s{S_WAVE}, 17
        s_lshl_b32 s{S_W4K}, s{S_WAVE}, 12""")
    @classmethod
    def wq_dma(c, j):
        r = [R(f"s_add_u32 m0, s{S_W4K}, {16384*c.slot(j)}")]
        for n in range(4):
            r.append([("raw", f"s_add_u32 s{c.S_TMP}, s{c.S_WOFF}, {j*64*8192+n*32768-1024*n}"),
                      ("vm", ("W", j), f"buffer_load_dwordx4 v{c.V_WD+(n&1)}, s[{S_WQ}:{S_WQ+3}], s{c.S_TMP} offen offset:{1024*n} lds")])
        return r
    @classmethod
    def wq_tiles(c, e, t0, t1):
        for j in range(t0, t1):
            for g in c.wq_dma(j):
                for it in g: e.add(it)
    @staticmethod
    def Wreg(j, a, t): return (A_K if j % 2 == 0 else A_V) + 8*a + 4*t
    @classmethod
    def w_reads(c, j):
        sl = c.slot(j)
        va = c.V_WL if sl < 4 else c.V_WA
        return [("ds", ("Wr", j), f"ds_read_b64_tr_b16 {ar(c.Wreg(j,a,t)+2*hj,2)}, v{va+a//2} offset:{16384*(sl%4)+4096*(2*t+hj)+8*(a&1)}")
                for a in range(8) for t in range(2) for hj in range(2)]

def qproj(e, bulk):
    c = QP
    V_XO, S_XOFF, S_TMP = c.V_XO, c.S_XOFF, c.S_TMP
    ACC = V_S
    WSR = f"s[{S_WS}:{S_WS+3}]"
    def Xreg(j, qb, t): return A_O + 32*(j % 4) + 8*qb + 4*t
    def xn_ld(j):
        r = []
        for qb in range(4):
            r.append([("raw", f"s_add_u32 s{S_TMP+1}, s{S_XOFF}, {qb*20480+j*2048}"),
                      ("vm", ("X", j), f"buffer_load_dwordx4 {ar(Xreg(j,qb,0),4)}, v{V_XO}, {WSR}, s{S_TMP+1} offen{SC}")])
            r.append([("vm", ("X", j), f"buffer_load_dwordx4 {ar(Xreg(j,qb,1),4)}, v{V_XO}, {WSR}, s{S_TMP+1} offen offset:1024{SC}")])
        return r
    def kv(which, tile, tag):
        m0, d, inc = dma_kv(which, tile % 4, tag)
        return [[m0], [d[0]], [d[1]], [d[2]], [d[3], inc]]
    wo_dma = []
    for n in range(5):
        wo_dma += [R(f"s_lshl_b32 s{S_TMP}, s{S_WAVE}, 13\ns_add_u32 m0, s{S_TMP}, {LDS_SP+1024*n}"),
                   [("vm", "wo", f"buffer_load_dwordx4 v{c.V_OD+n}, s[{S_WO}:{S_WO+3}], s{c.S_WOS} offen lds")]]
    hs = [[("vm", "hs", f"buffer_store_dwordx4 v[{76+4*n}:{79+4*n}], v88, {WSR}, s{50+n} offen{SC}")] for n in range(3)]
    misc = [("raw", f"v_mov_b32 v{V_L+k}, 0") for k in range(16)]
    misc += R(f"""v_and_b32 v{V_HPA}, 7, v{V_LANE}
    v_min_u32 v{V_P1A}, 6, v{V_HPA}
    v_lshlrev_b32 v{V_P1A}, 7, v{V_P1A}
    v_lshrrev_b32 v{V_PHA}, 3, v{V_LANE}
    v_mul_u32_u24 v{V_PHA}, 3456, v{V_PHA}
    v_add_u32 v{V_P1A}, v{V_P1A}, v{V_PHA}
    v_lshlrev_b32 v{V_HPA}, 4, v{V_HPA}
    v_add_u32 v{V_HPA}, 64, v{V_HPA}
    v_min_u32 v{V_PHA}, {HCH//128-1}, v{V_LANE}
    v_lshlrev_b32 v{V_PHA}, 7, v{V_PHA}
    v_lshrrev_b32 v{V_PFD}, 2, v{V_LANE}
    v_mul_u32_u24 v{V_PFD}, 160, v{V_PFD}
    v_and_b32 v{V_PFL}, 3, v{V_LANE}
    v_lshl_add_u32 v{V_PFD}, v{V_PFL}, 3, v{V_PFD}
    s_lshl_b32 s53, s{S_WAVE}, 13
    s_add_u32 s53, s53, {LDS_SP}
    v_add_u32 v{V_PFD}, s53, v{V_PFD}
    s_lshr_b32 s53, s2, 3
    s_lshl_b32 s53, s53, 2
    s_add_u32 s53, s53, s{S_WAVE}
    s_mul_i32 s{S_P1}, s53, {16*3456}
    s_lshr_b32 s54, s{S_XCD}, 1
    s_mul_i32 s54, s54, 896
    s_add_u32 s{S_P1}, s{S_P1}, s54
    s_add_u32 s{S_P1}, s{S_P1}, {6*8*3456}
    s_mul_i32 s{S_PH}, s53, {2*HCH}
    s_and_b32 s54, s{S_XCD}, 1
    s_mul_i32 s54, s54, {20*HPI}
    s_add_u32 s{S_PH}, s{S_PH}, s54
    s_add_u32 s{S_PH}, s{S_PH}, {HT_OFF+7*HCH}""")
    for k, grp in enumerate(xn_ld(0)):
        for it in grp: e.add(("vm", ("X0", k//2), it[2]) if it[0] == "vm" else it)
    x1 = xn_ld(1) + [g for j in range(opt('NT', 8), 8) for g in c.wq_dma(j)]
    stp = max(2, min(8, (len(bulk)-16)//len(x1)))
    for k, it in enumerate(bulk):
        if k % stp == stp-1 and x1 and not bulk[k][1] in ('s_barrier',):
            for x in x1.pop(0): e.add(x)
        e.add(it)
    assert not x1
    def tmf(j, a, qb, t, flip=False):
        d = vr(ACC+16*a+4*qb, 4)
        cc = "0" if (j == 0 and t == 0) else d
        if flip and opt('BZ', 1): t = 1-t
        return f"{MF} {d}, {ar(c.Wreg(j,a,t),4)}, {ar(Xreg(j,qb,t),4)}, {cc}"
    for j in range(9):
        if j == 0: e.wait(("X0", 3), ("W0", 0))
        else: e.wait(("X", j), "ALL")
        if j in ((1, 3, 7) if opt('START', 0) else (1, 4, 7)): e("s_barrier")
        if Ctx.fine == "q": stamp(e, 14+j)
        grps = []
        XD = opt('XD', 3)
        if j == 1: grps += c.wq_dma(8)
        if j == 2: grps += c.wq_dma(9)
        if XD == 2:
            if j+2 < 10: grps += xn_ld(j+2)
        else:
            if j == 0: xq = [g for t in range(2, 10) for g in xn_ld(t)]
            n = 10 if j < 4 else 8
            grps += xq[:n]; xq = xq[n:]
        if j == 4: grps += kv("K", 0, "K0")
        if j == 5: grps += kv("K", 1, "K1")
        if j == 1: grps += [[("ds", "hr", f"ds_read_b64_tr_b16 v[{76+4*n+2*hj}:{76+4*n+2*hj+1}], v89 offset:{512*n+5120*hj}")] for n in range(3) for hj in range(2)]
        if 2 <= j <= 3: grps += hs[:1] if j == 2 else hs[1:]
        if j == 6: grps += kv("K", 2, ("D", -3))
        if j == 7: grps += wo_dma
        if j == 8: grps += kv("V", 0, ("D", -3)) + kv("K", 3, ("D", -2))
        rd = c.w_reads(j+1)
        if j == 0: rd = [("ds", ("W0", 2+k//4), it[2]) for k, it in enumerate(c.w_reads(0)[8:])] + rd
        gaps = [[] for _ in range(64)]
        for k, it in enumerate(rd): gaps[(k*56)//len(rd)].append(it)
        free = [n for n in range(62) if not gaps[n] or j == 0]
        busy = [n for n in range(62) if gaps[n]]
        for k, grp in enumerate(grps): gaps[free[(k*len(free))//max(len(grps),1)]] += grp
        if j in (4, 6):
            for k, it in enumerate(misc[:24] if j == 4 else misc[24:]): gaps[busy[k]].append(it)
        if j == 0:
            for a in (1, 2, 4): gaps[8*a-1].append(("wait", None, ("W0", {1: 1, 2: 3, 4: 7}[a])))
        for m in range(64):
            a, qb, t = m//8, (m//2) % 4, m % 2
            if a % 2 and opt('BZ', 1): qb = 3-qb
            e(tmf(j, a, qb, t, (m//2) % 2 == 1))
            for it in gaps[m]: e.add(it)
    e(f"s_mov_b32 s{S_SEL}, 0x07060302")
    e.wvm("K1")
    e.wait(("X", 9), "ALL"); e("s_barrier")
    stamp(e, 4)
    order = [("T",0),("T",1),("M",0),("T",2),("M",1),("T",3),("M",2),("S",0),("M",3),("S",1),("S",2),("S",3)]
    mf = []; start = {}
    for kind, qb in order:
        start[(kind, qb)] = len(mf)
        if kind == "T": mf += [tmf(9, a, qb, t, a % 2 == 1) for a in range(8) for t in range(2)]
        for kb in ([0] if kind == "M" else range(4) if kind == "S" else []):
            for ks in range(4):
                cc = vr(Sreg(kb,qb), 4) if ks else ("0" if kind == "M" else vr(V_M+4*qb, 4))
                mf.append(f"{MF} {vr(Sreg(kb,qb),4)}, {ar(Kreg(kb,ks),4)}, {vr(Qreg(qb,ks),4)}, {cc}")
    NG = len(mf)
    gaps = [[] for _ in range(NG+1)]
    for k, it in enumerate(k_reads(0, ("K", 0)) + k_reads(1, ("K", 1), kbase=K1B)): gaps[k].append(it)
    gaps[31].append(("wait", None, ("K", 0)))
    gaps[41] += [("wait", None, "ALL"), ("raw", "s_barrier")]
    if opt('START', 0):
        for k, g in enumerate(kv("K", 3, ("D", -2))): gaps[2*k] += g
    for k, g in enumerate(kv("V", 1, ("D", -2))): gaps[32+2*k] += g
    for k, g in enumerate(kv("K", 4, ("D", -1)) + kv("V", 2, ("D", -1))): gaps[43+4*k] += g
    for qb in range(4):
        for a in range(8):
            r = ACC+16*a+4*qb; q = Qreg(qb, a//2) + 2*(a & 1); g = start[("T", qb)]+2*a+1+8
            gaps[g].append(("raw", f"v_cvt_pk_bf16_f32 v{q}, v{r}, v{r+1}"))
            gaps[g+1].append(("raw", f"v_cvt_pk_bf16_f32 v{q+1}, v{r+2}, v{r+3}"))
        sx, m = Sreg(0,qb), V_M+4*qb; g = start[("M", qb)]+3+8
        for o, t in ((0, f"v_max3_f32 v{m}, v{sx}, v{sx+1}, v{sx+2}"), (1, f"v_max_f32 v{m}, v{m}, v{sx+3}"), (2, f"v_mov_b32 v{m+1}, v{m}"),
                     (4, f"v_permlane16_swap_b32 v{m+1}, v{m}"), (6, f"v_max_f32 v{m}, v{m}, v{m+1}"), (7, f"v_mov_b32 v{m+1}, v{m}"),
                     (9, f"v_permlane32_swap_b32 v{m+1}, v{m}"), (11, f"v_max_f32 v{m}, v{m}, v{m+1}"), (12, f"v_sub_f32 v{m}, 0, v{m}"),
                     (13, f"v_mov_b32 v{m+1}, v{m}"), (14, f"v_mov_b32 v{m+2}, v{m}"), (15, f"v_mov_b32 v{m+3}, v{m}")):
            gaps[g+o].append(("raw", t))
        assert g+15+2 < start[("S", qb)]
    ex = [(start[("S", qb)]+4*kb+3+8, 16*kb+4*qb+r) for qb in range(4) for kb in range(4) for r in range(4) if 16*kb+4*qb+r < 61]
    cv = []
    def cvt0(x):
        kb, qb, r = x//16, (x//4) % 4, x % 4
        return ("raw", ppack(Preg(0,qb,kb//2)+2*(kb%2)+r//2, V_S+x))
    for g in range(NG):
        room = 2-len(gaps[g])
        if room == 2 and ex and ex[0][0] <= g and len(cv) < 2:
            x = ex.pop(0)[1]
            gaps[g].append(("raw", f"v_exp_f32 v{V_S+x}, v{V_S+x}"))
            if x % 2: cv.append((g+1, x-1))
        else:
            while room > 0 and cv and cv[0][0] <= g:
                gaps[g].append(cvt0(cv.pop(0)[1])); room -= 1
    assert len(ex) >= 9
    for _, x in ex:
        gaps[NG].append(("raw", f"v_exp_f32 v{V_S+x}, v{V_S+x}"))
        if x % 2: cv.append((0, x-1))
    gaps[NG] += [cvt0(x) for _, x in cv]
    for g in range(NG+1):
        if g < NG: e(mf[g])
        for it in gaps[g]: e.add(it)
    e.wvm(("D", -3)); e("s_barrier")

class G1:
    S_FB, S_DT, S_A, S_B, S_T, S_LB = 46, 47, 48, 49, 50, 53
    V_WD, V_WA, V_L16, V_B1 = 14, 2, 15, 18
    @staticmethod
    def acc(fb, db):
        k = 5*fb+db
        return V_S+4*k if k < 16 else V_M+4*(k-16)
    @staticmethod
    def H(p, db, t):
        s, k = p % 3, 2*db+t
        if s == 0: return ar(A_K+4*k, 4)
        if s == 1: return ar(A_K+40+4*k, 4) if k < 6 else vr(V_Q+4*(k-6), 4)
        return ar(A_V+4*k, 4)
    @staticmethod
    def W(p, fb, t): return V_P + 32*(p % 2) + 8*fb + 4*t
    V_WH = 6
    @staticmethod
    def reg(p): return LDS_SP if p == 0 else 32768*(p % 3)
    @classmethod
    def setup1(c):
        T = V_T+3
        return R(f"""s_and_b32 s{c.S_FB}, s{S_UG}, 31
        s_lshr_b32 s{c.S_DT}, s{S_UG}, 5
        s_lshl_b32 s{c.S_LB}, s{S_WAVE}, 13
        s_mul_i32 s{c.S_A}, s{S_WAVE}, {512*3456}
        s_lshl_b32 s{c.S_T+1}, s{c.S_FB}, 7
        s_add_u32 s{c.S_A}, s{c.S_A}, s{c.S_T+1}
        s_mul_i32 s{c.S_B}, s{c.S_DT}, {5*HPI}
        s_lshl_b32 s{c.S_T+1}, s{S_WAVE}, 14
        s_add_u32 s{c.S_B}, s{c.S_B}, s{c.S_T+1}
        v_lshrrev_b32 v{T}, 3, v{V_LANE}
        v_and_b32 v{T+1}, 7, v{V_LANE}
        v_and_b32 v{T+2}, 6, v{T}
        v_xor_b32 v{T+1}, v{T+1}, v{T+2}
        v_mul_u32_u24 v{T}, 3456, v{T}
        v_lshl_add_u32 v{c.V_WD}, v{T+1}, 4, v{T}
        v_lshlrev_b32 v{c.V_L16}, 4, v{V_LANE}""")
    @classmethod
    def setup2(c):
        T = V_T+3
        L = f"""v_lshrrev_b32 v{T}, 2, v{V_LANE}
        v_and_b32 v{T+2}, 6, v{T}
        v_bfe_u32 v{T+1}, v{V_LANE}, 1, 1
        v_xor_b32 v{T+1}, v{T+1}, v{T+2}
        v_lshlrev_b32 v{T+1}, 4, v{T+1}
        v_lshl_add_u32 v{T+1}, v{T}, 7, v{T+1}
        v_and_b32 v{T+2}, 1, v{V_LANE}
        v_lshl_add_u32 v{T+1}, v{T+2}, 3, v{T+1}
        v_add_u32 v{T+1}, s{c.S_LB}, v{T+1}"""
        for fb in range(4):
            L += f"""
            s_add_u32 s{c.S_T}, s{S_WAVE}, {fb}
            s_and_b32 s{c.S_T}, s{c.S_T}, 3
            s_lshl_b32 s{c.S_T}, s{c.S_T}, 5
            v_xor_b32 v{c.V_WA+fb}, s{c.S_T}, v{T+1}"""
        L += f"""
        v_lshrrev_b32 v{T}, 4, v{V_LANE}
        v_lshlrev_b32 v{T}, 3, v{T}
        s_lshl_b32 s{c.S_T}, s{c.S_FB}, 2
        s_add_u32 s{c.S_T}, s{c.S_T}, s{S_WAVE}
        s_lshl_b32 s{c.S_T}, s{c.S_T}, 5"""
        r = R(L)
        r.append(("vm", "b1", f"buffer_load_dwordx2 v[{c.V_B1}:{c.V_B1+1}], v{T}, s[{S_B1}:{S_B1+3}], s{c.S_T} offen"))
        return r
    @classmethod
    def sethi(c, off): return [("raw", f"v_add_u32 v{c.V_WH+fb}, {off}, v{c.V_WA+fb}") for fb in range(4)]
    @classmethod
    def wl(c, p):
        r = []
        for n in range(8):
            g = R(f"s_add_u32 m0, s{c.S_LB}, {c.reg(p)+1024*n}") if n % 4 == 0 else []
            g += [("raw", f"s_add_u32 s{c.S_T+1}, s{c.S_A}, {(64*p+8*n)*3456-1024*(n%4)}"),
                  ("vm", ("w", p), f"buffer_load_dwordx4 v{c.V_WD}, s[{S_W1}:{S_W1+3}], s{c.S_T+1} offen offset:{1024*(n%4)} lds")]
            r.append(g)
        return r
    @classmethod
    def hl(c, p):
        r = []
        for db in range(5):
            r.append([("raw", f"s_add_u32 s{c.S_T+2}, s{c.S_B}, {HT_OFF+db*HPI+p*2048}"),
                      ("vm", ("h", p), f"buffer_load_dwordx4 {c.H(p,db,0)}, v{c.V_L16}, s[{S_WS}:{S_WS+3}], s{c.S_T+2} offen{SC}")])
            r.append([("vm", ("h", p), f"buffer_load_dwordx4 {c.H(p,db,1)}, v{c.V_L16}, s[{S_WS}:{S_WS+3}], s{c.S_T+2} offen offset:1024{SC}")])
        return r
    @classmethod
    def reads(c, p):
        va, o = (c.V_WA, c.reg(p)) if c.reg(p) < 65536 else (c.V_WH, 0)
        return [("ds", ("r", p), f"ds_read_b64_tr_b16 {vr(c.W(p,fb,t)+2*hj,2)}, v{va+fb} offset:{o+2048*(2*t+hj)}")
                for fb in range(4) for t in range(2) for hj in range(2)]

def o_frag_items(k, tmp, pkr, va):
    qb, t = k//4, k % 4
    r = [("raw", f"v_accvgpr_read_b32 v{tmp+j}, a{Oreg(2*t+j//4,qb)+j%4}") for j in range(8)]
    r += [("raw", f"v_mul_f32 v{tmp+j}, v{tmp+j}, v{V_L+4*qb}") for j in range(8)]
    r += [("raw", f"v_cvt_pk_bf16_f32 v{pkr+j}, v{tmp+2*j}, v{tmp+2*j+1}") for j in range(4)]
    r.append(("vm", "o", f"buffer_store_dwordx4 {vr(pkr,4)}, v{va}, s[{S_WS}:{S_WS+3}], s{S_OST} offen offset:{1024*t}{SC}"))
    if t == 3: r.append(("raw", f"s_add_u32 s{S_OST}, s{S_OST}, 0x20000"))
    return r

def rowsum_items():
    ch = []
    for qb in range(4):
        l = V_L+4*qb
        ch.append([f"v_add_f32 v{l}, v{l}, v{l+1}", f"v_mov_b32 v{l+1}, v{l}", f"v_permlane16_swap_b32 v{l+1}, v{l}", f"v_add_f32 v{l}, v{l}, v{l+1}",
                   f"v_mov_b32 v{l+1}, v{l}", f"v_permlane32_swap_b32 v{l+1}, v{l}", f"v_add_f32 v{l}, v{l}, v{l+1}"])
    r = [("raw", ch[qb][k]) for k in range(7) for qb in range(4)]
    L = V_L
    r += R(f"""s_mov_b32 s56, {fhex(2.0**40)}
    v_cmp_nge_f32 s[54:55], s56, v{L}
    v_cmp_nge_f32 vcc, s56, v{L+4}
    s_or_b64 s[54:55], s[54:55], vcc
    v_cmp_nge_f32 vcc, s56, v{L+8}
    s_or_b64 s[54:55], s[54:55], vcc
    v_cmp_nge_f32 vcc, s56, v{L+12}
    s_or_b64 s[54:55], s[54:55], vcc
    v_rcp_f32 v{L}, v{L}
    s_or_b32 s54, s54, s55
    v_rcp_f32 v{L+4}, v{L+4}
    s_lshl_b32 s55, s{S_WAVE}, 2
    v_rcp_f32 v{L+8}, v{L+8}
    s_add_u32 s55, s55, {LDS_FLAG}
    v_rcp_f32 v{L+12}, v{L+12}
    v_mov_b32 v{L+1}, s55
    v_mov_b32 v{L+2}, s54
    v_and_b32 v{V_IDX}, 48, v{V_LANE}""")
    r.append(("ds", "flw", f"ds_write_b32 v{L+1}, v{L+2}"))
    return r
def linv_items():
    return [("ds", "li", f"ds_bpermute_b32 v{V_L+4*qb+r}, v{V_IDX}, v{V_L+4*qb} offset:{4*r}") for qb in range(4) for r in (3, 2, 1, 0)]
def o_sel(e, st):
    SEL, TMP = 18, 48
    e(f"""v_and_b32 v{TMP}, 15, v{V_LANE}
    v_lshrrev_b32 v{TMP+1}, 4, v{V_LANE}
    v_lshlrev_b32 v{TMP+1}, 2, v{TMP+1}
    v_sub_u32 v{TMP}, v{TMP}, v{TMP+1}
    v_mov_b32 v{TMP+2}, 0x3f80
    v_mov_b32 v{TMP+3}, 0x3f800000
    v_cmp_eq_u32 vcc, 0, v{TMP}
    v_mov_b32 v{SEL}, 0
    v_mov_b32 v{SEL+1}, 0
    v_cndmask_b32 v{SEL+2}, 0, v{TMP+2}, vcc
    v_cmp_eq_u32 vcc, 1, v{TMP}
    v_mov_b32 v{SEL+4}, 0
    v_mov_b32 v{SEL+5}, 0
    v_cndmask_b32 v{SEL+2}, v{SEL+2}, v{TMP+3}, vcc
    v_cmp_eq_u32 vcc, 2, v{TMP}
    s_add_u32 s{st}, s{S_OST}, {OP}
    s_add_u32 s{st+1}, s{S_OST}, {2*OP}
    v_cndmask_b32 v{SEL+3}, 0, v{TMP+2}, vcc
    v_cmp_eq_u32 vcc, 3, v{TMP}
    s_add_u32 s{S_PF}, s{S_OST}, {3*OP}
    s_nop 0
    v_cndmask_b32 v{SEL+3}, v{SEL+3}, v{TMP+3}, vcc""")
def o_block(e, va, st):
    SEL, PKA, TMP, DD = 18, 24, 48, 64
    so = [S_OST, st, st+1, S_PF]
    def front(u):
        t, qp = (u//2, u % 2) if opt('UO', 0) == 0 else (u % 4, u//4)
        for h in range(2):
            for q in range(2):
                o = Oreg(2*t+h, 2*qp+q); x = TMP+8*h+4*q
                for r in range(4): e(f"v_accvgpr_read_b32 v{x+r}, a{o+r}")
        if u: back(u-1, 0)
        for h in range(2):
            for q in range(2):
                x = TMP+8*h+4*q; l = V_L+4*(2*qp+q)
                for r in range(4): e(f"v_mul_f32 v{x+r}, v{x+r}, v{l+r}")
        for j in range(8): e(f"v_cvt_pk_bf16_f32 v{PKA+j}, v{TMP+2*j}, v{TMP+2*j+1}")
        if u: back(u-1, 1)
        else: e("s_nop 0")
        for q in range(2):
            for h in range(2):
                e(f"{MF} {vr(DD+16*(u%2)+8*q+4*h,4)}, {vr(PKA+4*h,4)}, {vr(SEL+2-2*q,4)}, 0")
    def back(u, q):
        t, qp = (u//2, u % 2) if opt('UO', 0) == 0 else (u % 4, u//4)
        x = DD+16*(u % 2)+8*q
        for j in range(4): e(f"v_cvt_pk_bf16_f32 v{x+j}, v{x+2*j}, v{x+2*j+1}")
        e.vm("o", f"buffer_store_dwordx4 {vr(x,4)}, v{va}, s[{S_WS}:{S_WS+3}], s{so[2*qp+q]} offen offset:{1024*t}{SC}")
    for u in range(8): front(u)
    e("s_nop 7")
    back(7, 0); back(7, 1)
def flag_read(t):
    return R(f"v_mov_b32 v{t}, {LDS_FLAG}") + [("ds", "fl", f"ds_read_b128 {vr(t+1,4)}, v{t}")]
def flag_eval(t):
    return [("wait", None, "fl")] + R(f"v_or3_b32 v{t+1}, v{t+1}, v{t+2}, v{t+3}\nv_or_b32 v{t+1}, v{t+1}, v{t+4}\ns_nop 0\nv_readfirstlane_b32 s{S_REDO}, v{t+1}\ns_nop 3")

S_REDO, S_LATE = 55, 54
def tail_gemm1(e):
    c = G1
    VN = bool(opt('VN', 1))
    w = c.wl(1)+c.wl(2)
    late30 = list(zip(range(3, 64, 4), w))
    h = c.hl(0)+c.hl(1)+c.hl(2)
    ex30 = list(zip(range(67, 131, 4), h[:16]))
    su = c.setup2()
    late30 += [(65+4*(k//2), [it]) for k, it in enumerate(su)]
    attn_iter(e, 10, dma="nok", extra=ex30, endbar="bar", late=late30, vnext=VN)
    ex31 = [(65+4*k, g) for k, g in enumerate(h[16:20])] + [(81+4*k, g) for k, g in enumerate(h[20:])]
    late31 = [(64+k, [it]) for k, it in enumerate(c.sethi(LDS_SP))] + [(70, [("wait", ("w", 0), None)])] + [(71+4*k if k < 15 else 129, [it]) for k, it in enumerate(c.reads(0))]
    B = c.V_B1
    ob = Em()
    for it in rowsum_items() + linv_items(): ob.add(it)
    ob.wvm("b1")
    ob(f"v_lshlrev_b32 v10, 16, v{B}\nv_and_b32 v11, 0xffff0000, v{B}\nv_lshlrev_b32 v12, 16, v{B+1}\nv_and_b32 v13, 0xffff0000, v{B+1}")
    o_sel(ob, 76)
    ob.wds("li")
    o_block(ob, c.V_L16, 76)
    oi = ob.items
    used = {}
    for pos, g in ex31 + late31: used[pos] = used.get(pos, 0) + 1
    for g in range(73, 132):
        n = opt('ON', 3) - used.get(g, 0)
        late31.append((g, oi[:n])); oi = oi[n:]
    attn_iter(e, 11, do_qk=False, dma=False, extra=ex31, late=late31, sm_first=True, vpre=VN)
    stamp(e, 7)
    assert not any(it[0] == "wait" for it in oi)
    oi = c.sethi(65536) + oi
    ocut = [0, (len(oi)*opt('OC', 50))//100, (len(oi)*opt('OD', 100))//100, len(oi)]
    TMP = V_T+3
    PSIG = opt('PSIG', 3)
    PC = opt('PC', 6)
    fsu = FS.setup(c.S_T, 56, 76)
    sq = FS.direct0() + FS.dma(1) + FS.dma(2)
    for p in range(8):
        if p == PC:
            e.wvm("poll")
            e(f"v_cmp_ne_u32 vcc, s{S_TAG}, v{FS.V_FD}\ns_nop 1\ns_cmp_lg_u64 vcc, 0\ns_cselect_b32 s{S_LATE}, {WS_SZ}, 0\nv_add_u32 v{FS.V_SD}, s{S_LATE}, v{FS.V_SD}")
        if p < 7: e.wvm(("w", p+1))
        e.wvm(("h", p))
        if p == PSIG: e.wvm("o")
        e.wds("ALL" if p == 0 else ("r", p))
        if Ctx.fine == "g": stamp(e, 14+p)
        gaps = [[] for _ in range(40)]
        if p == PSIG: gaps[0] += R("s_barrier") + flag_read(23)
        if p == 6: gaps[0] += R("s_barrier")
        if p < 7:
            for k, it in enumerate(c.reads(p+1)): gaps[2*k].append(it)
        if p == PC-1: gaps[opt('PG', 0)] += poll_ld(FS.V_FD, FS.V_FA)
        lds_ = (c.hl(p+2) if 1 <= p <= 5 else []) + (c.wl(p+3) if p <= 4 else [])
        for k, grp in enumerate(lds_): gaps[2*k+1 if len(lds_) > 10 else 4*k+1] += grp
        if p < 3:
            part = oi[ocut[p]:ocut[p+1]]
            for k, it in enumerate(part): gaps[(k*40)//len(part)].append(it)
        if p == PSIG:
            l0 = lab("nosig")
            gaps[6] += flag_eval(23) + R(f"s_cmp_lg_u32 s{S_REDO}, 0\ns_cbranch_scc1 {l0}") + signal(C_O, S_SLOT, TMP) + R(f"{l0}:")
        if p in (2, PC-2):
            part = fsu[0] if p == 2 else fsu[1]
            for k, g in enumerate(part): gaps[(k*40)//len(part)] += g
        if p >= PC:
            n = -(-36//(8-PC)) if not opt('SQ', '') else int(opt('SQ', '').split('/')[p-PC]); part, sq = sq[:n], sq[n:]
            for k, g in enumerate(part):
                pos = 2*((k*19)//n) + (2 if p == 7 else 1) + (0 if p == 7 else 2) if n <= 19 else 2+(k*37)//n
                pos = min(pos, 39)
                if len(g) > 1 and g[1][1] == "s_nop 0":
                    gaps[pos-1].append(g[0]); g = g[2:]
                gaps[pos] += g
        if p == 6:
            pre = R(f"v_add_u32 v10, s{c.S_LB}, v{c.V_L16}")
            for fb in range(1, 4):
                pre += R(f"s_add_u32 s{c.S_T}, s{S_WAVE}, {4-fb}\ns_and_b32 s{c.S_T}, s{c.S_T}, 3\ns_lshl_b32 s{c.S_T}, s{c.S_T}, 13\nv_add_u32 v{10+fb}, s{c.S_T}, v{c.V_L16}")
            U = FS.S_US; t = c.S_T
            pre += R(f"""s_mul_i32 s{U}, s{c.S_DT}, {5*54*1024}
            s_lshl_b32 s{t}, s{c.S_FB}, 11
            s_add_u32 s{U}, s{U}, s{t}
            s_add_u32 s{U}, s{U}, {U_OFF}""")
            for k, it in enumerate(pre): gaps[2+(k*38)//len(pre)].append(it)
        for m in range(40):
            fb, db, t = m//10, (m//2) % 5, m % 2
            if p == 7: fb = 3-fb
            elif fb % 2 and opt('BZ', 1): db = 4-db
            d = vr(c.acc(fb,db), 4)
            cc = ("v[10:13]" if fb == 0 else "0") if (p == 0 and t == 0) else d
            if (m//2) % 2 and opt('BZ', 1): t = 1-t
            e(f"{MF} {d}, {vr(c.W(p,fb,t),4)}, {c.H(p,db,t)}, {cc}")
            if p == 7 and m >= 11 and m % 2 == 1:
                k = (m-11)//2; fb2, db2 = 3-k//5, k % 5
                kk = 5*(fb2-1)+db2
                e.ds("gw", f"ds_write_b128 v10, {vr(c.acc(fb2,db2),4)} offset:{32768*(kk//8)+1024*(kk%8)}")
            for it in gaps[m]: e.add(it)
    stamp(e, 8)
    e(f"s_cmp_lg_u32 s{S_REDO}, 0\ns_cbranch_scc1 K_redo_u\ns_cmp_lg_u32 s{S_LATE}, 0\ns_cbranch_scc1 K_late")

LDS_OWN = 4*36864
def g1_red_reads():
    return [("ds", "gr", f"ds_read_b128 {vr(V_S+20+4*kk,4)}, v{11+kk//5} offset:{32768*(kk//8)+1024*(kk%8)}") for kk in range(15)]
def gelu_items(va, st):
    X = V_S; Z = X+20; K0, K1, A = Z+30, Z+31, Z+32
    r = [("raw", f"v_add_f32 v{X+k}, v{X+k}, v{X+20*j+k}") for j in range(1, 4) for k in range(20)]
    r += R(f"""v_mov_b32 v{K0}, {fhex(-2*math.log2(math.e)*math.sqrt(2/math.pi))}
    v_mov_b32 v{K1}, {fhex(-2*math.log2(math.e)*math.sqrt(2/math.pi)*0.044715)}
    s_lshr_b32 s{st}, s{S_WAVE}, 1
    s_lshl_b32 s{st}, s{st}, 10
    v_add_u32 v{A}, s{st}, v{va}
    s_and_b32 s{st}, s{S_WAVE}, 1
    s_lshl_b32 s{st}, s{st}, 3
    s_add_u32 s{st}, s{st}, {LDS_OWN}
    v_add_u32 v{A}, s{st}, v{A}""")
    st1 = lambda k: [f"v_mul_f32 v{Z+k}, v{X+k}, v{X+k}", f"v_fma_f32 v{Z+k}, v{Z+k}, v{K1}, v{K0}", f"v_mul_f32 v{Z+k}, v{Z+k}, v{X+k}"]
    for k in range(-1, 24):
        L = []
        if 0 <= k+1 < 20: L += st1(k+1)
        if 0 <= k < 20: L.append(f"v_exp_f32 v{Z+k}, v{Z+k}")
        if 0 <= k-3 < 20: L.append(f"v_mul_f32 v{X+k-3}, v{X+k-3}, v{Z+k-3}")
        if 0 <= k-1 < 20: L.append(f"v_add_f32 v{Z+k-1}, 1.0, v{Z+k-1}")
        if 0 <= k-4 < 20 and (k-4) % 2: L.append(f"v_cvt_pk_bf16_f32 v{Z+20+(k-4)//2}, v{X+k-5}, v{X+k-4}")
        if 0 <= k-2 < 20: L.append(f"v_rcp_f32 v{Z+k-2}, v{Z+k-2}")
        if k >= 19: L.append("s_nop 0")
        r += [("raw", t) for t in L]
    r += [("ds", "uw", f"ds_write_b64 v{A}, {vr(Z+20+2*db,2)} offset:{2048*db}") for db in range(5)]
    return r
def u_out(va, st):
    X = V_S; A = X+52
    rd = R(f"s_lshl_b32 s{st}, s{S_WAVE}, 10\ns_add_u32 s{st}, s{st}, {LDS_OWN}\nv_add_u32 v{A}, s{st}, v{va}")
    rd = [rd] + [[("ds", "ur", f"ds_read_b128 {vr(X+4*n,4)}, v{A} offset:{4096*n}")] for n in range(3)]
    U = FS.S_US
    sto = [R(f"s_lshr_b32 s{st}, s{S_WAVE}, 1\ns_mul_i32 s{st}, s{st}, {54*1024}\ns_add_u32 s{U}, s{U}, s{st}"),
           R(f"s_and_b32 s{st}, s{S_WAVE}, 1\ns_lshl_b32 s{st}, s{st}, 10\ns_add_u32 s{U}, s{U}, s{st}"), [("wait", None, "ur")]]
    for n in range(3):
        g = [("vm", "us", f"buffer_store_dwordx4 {vr(X+4*n,4)}, v{va}, s[{S_WS}:{S_WS+3}], s{U} offen{SC}")]
        if n == 0: g += R(f"s_add_u32 s{U}, s{U}, {2*54*1024}")
        if n == 1: g += R(f"s_add_u32 s{U}, s{U}, {2*54*1024}\ns_cmp_ge_u32 s{S_WAVE}, 2\ns_cselect_b32 s{U}, {WS_SZ}, s{U}")
        sto.append(g)
    return rd, sto

def tail_plain(e):
    attn_iter(e, 10, dma="nok", endbar="bar")
    attn_iter(e, 11, do_qk=False, dma=False, late=[(76+k, [it]) for k, it in enumerate(rowsum_items())] + [(123+k//2, [it]) for k, it in enumerate(linv_items())], sm_first=True)
    stamp(e, 7)
    o_sel(e, 76)
    e.wds("li")
    o_block(e, G1.V_L16, 76)
    for part in FS.setup(50, 51, 52):
        for g in part:
            for it in g: e.add(it)
    e("s_waitcnt vmcnt(0) lgkmcnt(0)\ns_barrier")
    for it in flag_read(19) + flag_eval(19): e.add(it)
    e(f"""s_cmp_lg_u32 s{S_PASS}, 0
    s_cbranch_scc1 K_plain_done
    s_cmp_lg_u32 s{S_REDO}, 0
    s_cbranch_scc1 K_redo
    K_plain_done:
    s_barrier""")
    for it in signal(C_O, S_SLOT, V_T+1): e.add(it)
    e(f"s_mov_b32 s{FS.S_US}, {WS_SZ}")
    for k in range(11, 14): e(f"v_mov_b32 v{k}, v{G1.V_L16}")
    if opt('PW', 0):
        e(f"v_lshlrev_b32 v20, 7, v{V_LANE}\ns_lshl_b32 s52, s{S_WAVE}, 13\ns_add_u32 s51, s51, s52\ns_add_u32 s51, s51, {8*OP}")
        for k in range(10): e(f"buffer_load_dword v21, v20, s[{S_WS}:{S_WS+3}], s51 offen\ns_add_u32 s51, s51, 0x20000")
    if opt('PW', 0) >= 2:
        e(f"""v_and_b32 v20, 7, v{V_LANE}
        v_lshlrev_b32 v20, 8, v20
        v_lshrrev_b32 v22, 3, v{V_LANE}
        v_lshl_add_u32 v20, v22, 12, v20
        s_and_b32 s51, s{S_QB}, 3
        s_lshl_b32 s51, s51, 2
        s_add_u32 s51, s51, s{S_WAVE}
        s_mul_i32 s51, s51, {108*4096}
        s_and_b32 s52, s{FS.S_RB}, 17
        s_lshl_b32 s52, s52, 7
        s_add_u32 s51, s51, s52""")
        for k in range(14): e(f"buffer_load_dword v21, v20, s[{S_W2}:{S_W2+3}], s51 offen\ns_add_u32 s51, s51, {8*4096}")
    if opt('PP1', 8):
        l0 = lab("park")
        e(f"s_cmp_lg_u32 s{S_WAVE}, 0\ns_cbranch_scc1 {l0}")
        spin(e, FS.V_FD, FS.V_FA, opt('PP1', 8))
        e(f"{l0}:\ns_barrier")
    stamp(e, 8)

class FS:
    S_SO, S_M0, S_G, S_KQ = 89, 98, 99, 100
    V_SR, S_DO, S_DW = 240, 59, 77
    V_SD, V_FA, V_FD = 244, 245, 246
    STG = 36864
    S_US = 79
    S_RB, S_CT, S_XA = 41, 42, 43
    XR, V_B2, V_XO = 240, 250, 251
    @staticmethod
    def slot(s): return 3 - (s-1) % 4
    @staticmethod
    def SA(s, db, t): return ar(72*(s % 2)+8*db+4*t, 4)
    @staticmethod
    def SB(s, sb, t): return ar(72*(s % 2)+40+8*sb+4*t, 4)
    @classmethod
    def setup(c, t0, t1, t2):
        RM = opt('RM', 0)
        L = f"""s_lshr_b32 s{c.S_KQ}, s{S_XCD}, 1
        s_and_b32 s{t0}, s{S_XCD}, 1
        s_lshl_b32 s{t0}, s{t0}, 5
        s_lshr_b32 s{t1}, s2, 3
        s_add_u32 s{t0}, s{t0}, s{t1}
        s_lshl_b32 s{c.S_G}, s{t0}, 2
        s_add_u32 s{c.S_G}, s{c.S_G}, s{c.S_KQ}
        s_lshr_b32 s{t1}, s{t0}, {4 if RM else 3}
        s_lshl_b32 s{t1}, s{t1}, 5
        s_lshl_b32 s{t2}, s{c.S_KQ}, 1
        s_add_u32 s{t1}, s{t1}, s{t2}
        s_lshl_b32 s{t1}, s{t1}, 7
        s_add_u32 s{t1}, s{t1}, {FL_OFF+C_O*32768}
        v_bfe_u32 v{c.V_FA}, v{V_LANE}, 1, 2
        v_and_b32 v{c.V_SD}, 1, v{V_LANE}
        v_lshl_add_u32 v{c.V_FA}, v{c.V_FA}, 3, v{c.V_SD}
        v_and_b32 v{c.V_SD}, {8 if RM else 0}, v{V_LANE}
        v_lshl_add_u32 v{c.V_FA}, v{c.V_SD}, 4, v{c.V_FA}
        v_lshlrev_b32 v{c.V_FA}, 7, v{c.V_FA}
        v_add_u32 v{c.V_FA}, s{t1}, v{c.V_FA}
        v_lshlrev_b32 v{c.V_SD}, 4, v{V_LANE}
        s_lshr_b32 s{c.S_RB}, s{t0}, 2
        s_lshl_b32 s{c.S_RB}, s{c.S_RB}, {0 if RM else 1}
        s_lshr_b32 s{t2}, s{c.S_KQ}, 1
        s_lshl_b32 s{t2}, s{t2}, {4 if RM else 0}
        s_add_u32 s{c.S_RB}, s{c.S_RB}, s{t2}
        s_and_b32 s{c.S_CT}, s{t0}, 3
        s_and_b32 s{t2}, s{c.S_KQ}, 1
        s_lshl_b32 s{t2}, s{t2}, 2
        s_add_u32 s{c.S_CT}, s{c.S_CT}, s{t2}
        v_and_b32 v{c.V_B2}, 15, v{V_LANE}
        v_lshrrev_b32 v252, 4, v{V_LANE}
        v_mul_u32_u24 v{c.V_XO}, 1280, v{c.V_B2}
        v_lshl_add_u32 v{c.V_XO}, v252, 3, v{c.V_XO}
        s_lshl_b32 s{c.S_XA}, s{c.S_RB}, 2
        s_add_u32 s{c.S_XA}, s{c.S_XA}, s{S_WAVE}
        s_lshl_b32 s{t2}, s{c.S_XA}, 4
        v_add_lshl_u32 v252, v{c.V_B2}, s{t2}, 1
        s_mul_i32 s{c.S_XA}, s{c.S_XA}, {16*1280}
        s_mul_i32 s{t2}, s{c.S_CT}, 160
        s_add_u32 s{c.S_XA}, s{c.S_XA}, s{t2}
        s_lshl_b32 s{t2}, s{c.S_KQ}, 15
        s_and_b32 s{t1}, s{t0}, 3
        s_mul_i32 s{t1}, s{t1}, {5*OP}
        s_add_u32 s{t1}, s{t1}, s{t2}
        s_add_u32 s{t1}, s{t1}, {(WOF_OFF-(68 if RM else 8)*OP) & 0xffffffff}
        s_lshr_b32 s{t0}, s{t0}, 2
        s_mul_i32 s{t0}, s{t0}, {(4 if RM else 8)*OP}
        s_add_u32 s{t0}, s{t0}, s{t2}
        s_add_u32 s{t0}, s{t0}, {OF_OFF}
        s_mul_i32 s{c.S_M0}, s{S_WAVE}, 9"""
        p0 = [[it] for it in R(L)]
        p1 = []
        for n in range(9):
            so = c.S_SO+n
            p1 += [R(f"s_add_u32 s{t2}, s{c.S_M0}, {n}"), R(f"s_cmp_lt_u32 s{t2}, 16\ns_cselect_b32 s{so}, s{t0}, s{t1}"),
                   R(f"s_cmp_ge_u32 s{t2}, 8\ns_cselect_b32 s101, {60*OP if RM else 0}, 0\ns_add_u32 s{so}, s{so}, s101"),
                   R(f"s_cmp_ge_u32 s{t2}, 26\ns_cselect_b32 s101, {15*OP}, 0\ns_add_u32 s{so}, s{so}, s101"),
                   R(f"s_and_b32 s101, s{t2}, 1\ns_lshl_b32 s101, s101, 10"), R(f"s_add_u32 s{so}, s{so}, s101\ns_sub_u32 s{so}, s{so}, {1024*(n%4)}"),
                   R(f"s_lshr_b32 s{t2}, s{t2}, 1\ns_mul_i32 s{t2}, s{t2}, {OP}\ns_add_u32 s{so}, s{so}, s{t2}")]
        p1.append(R(f"s_lshl_b32 s{c.S_M0}, s{c.S_M0}, 10"))
        p1 += [[it] for it in R(f"""s_lshr_b32 s{t2}, s{S_WAVE}, 1
        s_mul_i32 s101, s{t2}, {(64 if RM else 4)*OP}
        s_add_u32 s{c.S_DO}, s{t0}, s101
        s_lshl_b32 s{t2}, s{t2}, 13
        v_add_u32 v{c.V_SR}, s{t2}, v{c.V_SD}
        s_and_b32 s{t2}, s{S_WAVE}, 1
        s_mul_i32 s101, s{t2}, {20*OP}
        s_add_u32 s101, s101, {(68 if RM else 8)*OP}
        s_add_u32 s{c.S_DW}, s{t1}, s101
        s_mul_i32 s{t2}, s{t2}, 5
        s_add_u32 s{t2}, s{t2}, 8
        s_lshl_b32 s{t2}, s{t2}, 11
        v_add_u32 v{c.V_SR+1}, s{t2}, v{c.V_SD}
        v_add_u32 v{c.V_SR+2}, {2*c.STG}, v{c.V_SR}
        v_add_u32 v{c.V_SR+3}, {2*c.STG}, v{c.V_SR+1}""")]
        return p0, p1
    @classmethod
    def direct0(c, tag=None):
        r = []
        for k in (0, 4, 5, 6, 7, 8, 1, 2, 3):
            base, d = (c.S_DO, lambda t: c.SB(0, k, t)) if k < 4 else (c.S_DW, lambda t: c.SA(0, k-4, t))
            for t in range(2):
                g = R(f"s_add_u32 s101, s{base}, {OP*(k if k < 4 else k-4)}") if t == 0 else []
                x = f"buffer_load_dwordx4 {d(t)}, v{c.V_SD}, s[{S_WS}:{S_WS+3}], s101 offen offset:{1024*t}{SC}"
                r.append(g + [("vm", ("sd", 0), x) if tag is None else ("raw", x)])
        r[-1] += R(f"v_add_u32 v{c.V_SD}, 2048, v{c.V_SD}")
        return r
    @classmethod
    def xloads(c):
        r = [("vm", "e", f"buffer_load_ushort v{c.V_B2}, v252, s[{S_B2}:{S_B2+3}], 0 offen")]
        return r + [("vm", "e", f"buffer_load_dwordx2 {vr(c.XR+2*db,2)}, v{c.V_XO}, s[{S_X}:{S_X+3}], s{c.S_XA} offen offset:{32*db}") for db in range(5)]
    @classmethod
    def dma(c, s, tag=None):
        r = []
        for n in range(9):
            g = R(f"s_add_u32 m0, s{c.S_M0}, {c.STG*c.slot(s)+1024*n}\ns_nop 0") if n % 4 == 0 else []
            t = f"buffer_load_dwordx4 v{c.V_SD}, s[{S_WS}:{S_WS+3}], s{c.S_SO+n} offen offset:{1024*(n%4)}{SC} lds"
            g.append(("vm", ("sd", s), t) if tag is None else ("raw", t))
            if n == 8: g += R(f"v_add_u32 v{c.V_SD}, 2048, v{c.V_SD}")
            r.append(g)
        return r

def final(e):
    c = FS
    S_RB, S_CT, S_A, S_L0, S_B, S_T = c.S_RB, c.S_CT, c.S_XA, 40, 76, 46
    S_YA, S_YB, S_PO, S_PI = 52, 53, 54, 55
    V_L16, V_WD, V_WA, V_WH, V_L8, V_SR, VT = G1.V_L16, 3, 4, 8, 12, c.V_SR, 216
    V_XO, V_B2, XR = c.V_XO, c.V_B2, c.XR
    V_PA, V_PD = 221, 222
    ACS, ACY = 16, 96
    WSR = f"s[{S_WS}:{S_WS+3}]"
    e("K_final:")
    stamp(e, 9)
    SA, SB = c.SA, c.SB
    def sreads(s):
        sl = c.slot(s); hi = 2*(sl//2); o = c.STG*(sl % 2)
        r = []
        for k in range(5):
            for t in range(2):
                if k < 4: r.append(("ds", ("sr", s), f"ds_read_b128 {SB(s,k,t)}, v{V_SR+hi} offset:{o+2048*k+1024*t}"))
                r.append(("ds", ("sr", s), f"ds_read_b128 {SA(s,k,t)}, v{V_SR+1+hi} offset:{o+2048*k+1024*t}"))
        return r
    YB = [c.STG*c.slot(12+y) for y in range(3)]
    YLO = YB[2]
    PSZ = 10240
    ysetup = R(f"""v_lshrrev_b32 v{VT}, 3, v{V_LANE}
    v_and_b32 v{VT+1}, 7, v{V_LANE}
    v_and_b32 v{V_WD}, 6, v{VT}
    v_xor_b32 v{VT+1}, v{VT+1}, v{V_WD}
    v_lshlrev_b32 v{VT}, 12, v{VT}
    v_lshl_add_u32 v{V_WD}, v{VT+1}, 4, v{VT}
    v_lshrrev_b32 v{VT}, 2, v{V_LANE}
    v_and_b32 v{V_WH}, 6, v{VT}
    v_bfe_u32 v{VT+1}, v{V_LANE}, 1, 1
    v_xor_b32 v{VT+1}, v{VT+1}, v{V_WH}
    v_lshlrev_b32 v{VT+1}, 4, v{VT+1}
    v_lshl_add_u32 v{VT+1}, v{VT}, 7, v{VT+1}
    v_and_b32 v{VT}, 1, v{V_LANE}
    v_lshl_add_u32 v{VT+1}, v{VT}, 3, v{VT+1}
    s_lshl_b32 s{S_L0}, s{S_WAVE}, 13
    v_add_u32 v{VT+1}, s{S_L0}, v{VT+1}
    v_add_u32 v{VT+1}, {YLO}, v{VT+1}
    v_lshlrev_b32 v{V_L8}, 3, v{V_LANE}
    s_mul_i32 s{S_YA}, s{S_WAVE}, {7*64*4096}
    s_lshl_b32 s{S_T}, s{S_RB}, 7
    s_add_u32 s{S_YA}, s{S_YA}, s{S_T}
    s_mul_i32 s{S_YB}, s{S_CT}, {5*54*1024}
    s_mul_i32 s{S_T}, s{S_WAVE}, {7*2048}
    s_add_u32 s{S_YB}, s{S_YB}, s{S_T}""")
    for sb in range(4):
        ysetup += R(f"""s_add_u32 s{S_T}, s{S_WAVE}, {sb}
        s_and_b32 s{S_T}, s{S_T}, 3
        s_lshl_b32 s{S_T}, s{S_T}, 5
        v_xor_b32 v{V_WA+sb}, s{S_T}, v{VT+1}
        v_add_u32 v{V_WH+sb}, {YB[0]-YLO}, v{V_WA+sb}""")
    ysetup += R(f"""s_and_b32 s{S_T}, s{c.S_G}, 0xfc
    s_add_u32 s{S_T}, s{S_T}, s{S_WAVE}
    s_lshl_b32 s{S_T}, s{S_T}, 2
    s_add_u32 s{S_T}, s{S_T}, s{c.S_KQ}
    s_mul_i32 s{S_PO}, s{S_T}, {PSZ}
    s_add_u32 s{S_PO}, s{S_PO}, {PART_OFF}
    s_mul_i32 s{S_PI}, s{c.S_G}, {4*PSZ}
    s_mul_i32 s{S_T}, s{S_WAVE}, 2560
    s_add_u32 s{S_PI}, s{S_PI}, s{S_T}
    s_add_u32 s{S_PI}, s{S_PI}, {PART_OFF}
    s_mov_b32 s{S_B}, {fhex(-math.log2(math.e))}""")
    def XF(k): return 224+k if k < 16 else 252+(k-16)
    def YA(p, db, t):
        k = 8*db+4*t
        return [ar(144+k, 4), ar(184+k, 4), vr(176+k, 4), ar(k, 4)][p % 4]
    def YBr(p, sb, t, n=4, o=0): return ar((224 if p % 2 == 0 else 40)+8*sb+4*t+o, n)
    def yloads(p):
        r = []
        for n in range(8):
            g = R(f"s_add_u32 m0, s{S_L0}, {YB[p%3]+1024*n}") if n % 4 == 0 else []
            r.append(g+[("raw", f"s_add_u32 s{S_T}, s{S_YA}, {(64*p+8*n)*4096-1024*(n%4)}"),
                        ("vm", ("w", p), f"buffer_load_dwordx4 v{V_WD}, s[{S_W2}:{S_W2+3}], s{S_T} offen offset:{1024*(n%4)} lds")])
        for db in range(5):
            g = [("raw", f"s_add_u32 s{S_T+1}, s{S_YB}, {U_OFF+db*54*1024+p*2048}")]
            if p == 6: g += R(f"s_cmp_eq_u32 s{S_WAVE}, 3\ns_cselect_b32 s{S_T+1}, {WS_SZ}, s{S_T+1}")
            r.append(g+[("vm", ("a", p), f"buffer_load_dwordx4 {YA(p,db,0)}, v{V_L16}, {WSR}, s{S_T+1} offen{SC}")])
            r.append([("vm", ("a", p), f"buffer_load_dwordx4 {YA(p,db,1)}, v{V_L16}, {WSR}, s{S_T+1} offen offset:1024{SC}")])
        return r
    def yreads(p):
        y = p % 3
        va, o = (V_WH, 0) if y == 0 else (V_WA, YB[y]-YLO)
        return [("ds", ("r", p), f"ds_read_b64_tr_b16 {YBr(p,sb,t,2,2*hj)}, v{va+sb} offset:{o+2048*(2*t+hj)}")
                for sb in range(4) for t in range(2) for hj in range(2)]
    V_OW, V_OW8, S_OWN = 13, 223, 50
    ysetup += R(f"""v_add_u32 v{V_OW}, {LDS_OWN}, v{V_L16}
    v_add_u32 v{V_OW8}, {LDS_OWN}, v{V_L8}""")
    own = R(f"s_cmp_eq_u32 s{S_WAVE}, s{c.S_KQ}\ns_cselect_b64 s[{S_OWN}:{S_OWN+1}], -1, 0\ns_cselect_b32 s{S_PO}, {WS_SZ}, s{S_PO}")
    def pstore(sb):
        b = ACS+20*sb
        r = [[("raw", f"v_cvt_pk_bf16_f32 v{b+j}, v{b+2*j}, v{b+2*j+1}")] for j in range(10)]
        r.insert(4, [("vm", "ps", f"buffer_store_dwordx4 {vr(b,4)}, v{V_L16}, {WSR}, s{S_PO} offen{SC}")])
        r.insert(9, [("vm", "ps", f"buffer_store_dwordx4 {vr(b+4,4)}, v{V_L16}, {WSR}, s{S_PO} offen offset:1024{SC}")])
        r.append([("vm", "ps", f"buffer_store_dwordx2 {vr(b+8,2)}, v{V_L8}, {WSR}, s{S_PO} offen offset:2048{SC}"), ("raw", f"s_add_u32 s{S_PO}, s{S_PO}, 2560")])
        r.append(R(f"s_mov_b64 exec, s[{S_OWN}:{S_OWN+1}]") +
                 [("ds", "ow", f"ds_write_b128 v{V_OW}, {vr(b,4)} offset:{2560*sb}"), ("ds", "ow", f"ds_write_b128 v{V_OW}, {vr(b+4,4)} offset:{2560*sb+1024}"),
                  ("ds", "ow", f"ds_write_b64 v{V_OW8}, {vr(b+8,2)} offset:{2560*sb+2048}")] + R("s_mov_b64 exec, -1"))
        return r
    gl = gelu_items(V_L16, S_T+2)
    urd, ust = u_out(V_L16, S_T+2)
    y01 = yloads(0) + yloads(1) + (yloads(2)[:8] if opt('W3', 1) else [])
    GE = opt('GE', 3); US = GE+1+opt('SD', 2); D4 = opt('D4', 1)
    dq = [g for st in range(3, 16) for g in c.dma(st)]
    for s in range(16):
        if s == 13:
            e.wvm("poll")
            spin(e, V_PD, V_PA, opt('SU', 4), have=True)
        SBP = opt('SBP', 0)
        def sync(st):
            r = [("wait", "us", None)] if st == US else []
            if st < 15: r += [("wait", ("sd", st+1 if st else 0), "ALL"), ("raw", "s_barrier")]
            else: r += [("wait", ("w", 0), "ALL")]
            return r
        if not SBP or s <= 1:
            for it in sync(s): e.add(it)
        if Ctx.fine == "f": stamp(e, 14+s)
        gaps = [[] for _ in range(40)]
        rd = sreads(s+1) if s < 15 else yreads(0)
        if s == 0:
            for k, it in enumerate(g1_red_reads()): gaps[k].append(it)
            gaps[18] += [("wait", ("sd", 1), "gr"), ("raw", "s_barrier")]
            for k, it in enumerate(rd): gaps[19+k].append(it)
        else:
            RS = opt('RS', 9)
            for k, it in enumerate(rd): gaps[[m for m in range(40) if m % 4 != 3][(k*RS)//3] if (s < 15 and RS < 5) else (2*k if s < 15 else k)].append(it)
        nd = 12 if (D4 and 1 <= s <= 3) else 9
        mine, dq = dq[:nd], dq[nd:]
        for k, g in enumerate(mine):
            pos = 21+2*k if s == 0 else (4*k+3 if nd == 9 else 2*((3*k)//2)+3)
            if g[0][0] == "raw":
                gaps[pos-1].append(g[0]); g = g[2:]
            gaps[pos] += g
        if D4 and s >= 12:
            cuts = [0, 8, 20, 32, 44] if opt('W3', 1) else [0, 8, 18, 28, 36]
            part = y01[cuts[s-12]:cuts[s-11]]
            for k, g in enumerate(part): gaps[(4*k+3 if len(part) <= 10 else 2*((3*k)//2)+3) if s < 15 else (3*k)//2+1] += g
        if not D4 and s >= 13:
            for k, g in enumerate(y01[12*(s-13):12*(s-12)]): gaps[(2*((3*k)//2)+1) if s < 15 else k+1] += g
        if s <= GE:
            if s == 0: glv = [x for x in gl if x[0] != "ds"]; gld = [x for x in gl if x[0] == "ds"]
            cost = lambda it: 2 if it[1].startswith(("v_exp", "v_rcp")) else (0.3 if it[1].startswith("s_") else 1)
            g0, g1 = (20 if s == 0 else 0), (24 if s == GE else 40)
            room = [max(0, 2 - sum(1 for it in gaps[m] if not (it[0] == "raw" and it[1].startswith("s_")))) for m in range(40)]
            cap = sum(room[g0:g1]); capl = cap + 52*(GE-s-1) + (30 if s < GE else 0) if s < GE else cap
            quota = sum(map(cost, glv))*cap/capl
            acc = 0; used = 0
            for m in range(g0, g1):
                acc += quota*room[m]/cap
                while glv and (used + cost(glv[0])/2 <= acc or (s == GE and m == g1-1)):
                    used += cost(glv[0]); gaps[m].append(glv.pop(0))
            if s == GE:
                assert not glv
                for k, it in enumerate(gld): gaps[25+2*k].insert(0, it)
        if s == GE+1:
            for k, g in enumerate(urd): gaps[2*k+1] += g
            for k, g in enumerate(ust): gaps[4*k+9] += g
        if s == US: gaps[1] += signal(C_U, S_UG, V_PA)
        if 8 <= s < 12:
            n = -(-len(ysetup)//4); q = s-8
            for k, it in enumerate(ysetup[q*n:(q+1)*n]): gaps[2*k].append(it)
        if s == 11:
            for k, it in enumerate(flag_addr(V_PA, C_U, S_CT, 27)): gaps[4*k+1].append(it)
        if s == 12: gaps[1] += poll_ld(V_PD, V_PA); gaps[39] += own
        if SBP and 1 <= s < 15: gaps[SBP] += sync(s+1)
        if s == 15:
            for sb in range(2):
                for k, g in enumerate(pstore(sb)): gaps[18+10*sb+(k*10)//14] += g
        for m in range(40):
            sb, db, t = m//10, (m//2) % 5, m % 2
            if sb % 2 and s < 15 and opt('BZ', 1): db = 4-db
            d = vr(ACS+20*sb+4*db, 4)
            cc = "0" if (s == 0 and t == 0) else d
            if (m//2) % 2 and opt('BZ', 1): t = 1-t
            e(f"{MF} {d}, {SA(s,db,t)}, {SB(s,sb,t)}, {cc}")
            for it in gaps[m]: e.add(it)
    stamp(e, 10)
    V_RW, V_RR = 218, V_WA
    PS = opt('PS', 1)
    PL, SS = ACS, ACS+48
    def psum(src):
        r = []
        for j in range(10):
            x = PL+12*src+j
            if src == 0: r += R(f"v_lshlrev_b32 v{SS+2*j}, 16, v{x}\nv_and_b32 v{SS+2*j+1}, 0xffff0000, v{x}")
            else: r += R(f"v_lshlrev_b32 v{SS+20}, 16, v{x}\nv_and_b32 v{x}, 0xffff0000, v{x}\nv_add_f32 v{SS+2*j}, v{SS+2*j}, v{SS+20}\nv_add_f32 v{SS+2*j+1}, v{SS+2*j+1}, v{x}")
        return r
    for p in range(7):
        if p < 6: e.wvm(("w", p+1))
        if p == PS: e.wvm("ps")
        if p == 5 and opt('PL', 3) == 3: e.wvm("pl")
        e.wait(("a", p), "ALL")
        if Ctx.fine == "g": stamp(e, 24+p)
        gaps = [[] for _ in range(40)]
        if p < 6:
            for k, it in enumerate(yreads(p+1)): gaps[2*k].append(it)
        sh = 0
        if p == 0:
            for k, g in enumerate(pstore(2)): gaps[k//2] += g
            for k, g in enumerate(pstore(3)): gaps[7+k//2] += g
            sh = 4
        PP = opt('PL', 3)
        if p == PP: gaps[16] += poll_ld(V_PD, V_PA)
        if opt('W3', 1): lds_ = (yloads(p+2)[8:] if p+2 < 7 else []) + (yloads(p+3)[:8] if p+3 < 7 else [])
        else: lds_ = yloads(p+2) if p+2 < 7 else []
        for k, g in enumerate(lds_): gaps[min(2*k+1+sh, 39)] += g
        if p == PP:
            gaps[36] += [("wait", "poll", None)] + spin_items(V_PD, V_PA, opt('SP', 2), have=True)
            for k in range(1, 4):
                b = PL+12*k
                gaps[36+k] += R(f"s_add_u32 s{S_T+2}, s{c.S_KQ}, {k}\ns_and_b32 s{S_T+2}, s{S_T+2}, 3\ns_mul_i32 s{S_T+2}, s{S_T+2}, {PSZ}\ns_add_u32 s{S_T+2}, s{S_T+2}, s{S_PI}")
                gaps[36+k] += [("vm", "pl", f"buffer_load_dwordx4 {vr(b,4)}, v{V_L16}, {WSR}, s{S_T+2} offen{SC}"),
                               ("vm", "pl", f"buffer_load_dwordx4 {vr(b+4,4)}, v{V_L16}, {WSR}, s{S_T+2} offen offset:1024{SC}"),
                               ("vm", "pl", f"buffer_load_dwordx2 {vr(b+8,2)}, v{V_L8}, {WSR}, s{S_T+2} offen offset:2048{SC}")]
        if p == 5:
            for k, it in enumerate(c.xloads()): gaps[4*k+1].append(it)
        if p == PS:
            gaps[0] += R("s_barrier") + signal(C_P, c.S_G, VT)
            gaps[2] += R(f"s_mul_i32 s{S_T+2}, s{S_WAVE}, 2560\nv_add_u32 v{V_OW}, s{S_T+2}, v{V_OW}\nv_add_u32 v{V_OW8}, s{S_T+2}, v{V_OW8}")
            gaps[32] += [("ds", "or", f"ds_read_b128 {vr(PL,4)}, v{V_OW}")]
            gaps[34] += [("ds", "or", f"ds_read_b128 {vr(PL+4,4)}, v{V_OW} offset:1024")]
            gaps[36] += [("ds", "or", f"ds_read_b64 {vr(PL+8,2)}, v{V_OW8} offset:2048")]
        if p == PS+1:
            pa = R(f"""v_min_u32 v{V_PA}, 2, v{V_LANE}
            v_add_u32 v{V_PA}, s{c.S_KQ}, v{V_PA}
            v_add_u32 v{V_PA}, 1, v{V_PA}
            v_and_b32 v{V_PA}, 3, v{V_PA}
            s_and_b32 s{S_T+2}, s{c.S_G}, 0xfc
            v_add_u32 v{V_PA}, s{S_T+2}, v{V_PA}
            v_lshlrev_b32 v{V_PA}, 7, v{V_PA}
            v_add_u32 v{V_PA}, {FL_OFF+C_P*32768}, v{V_PA}""") + psum(0)
            for k, it in enumerate(pa): gaps[k if k < 8 else (k*40)//len(pa)].append(it)
        if p == 5 and PP == 3:
            ps = psum(1) + psum(2)[:20]
            for k, it in enumerate(ps): gaps[(k*40)//len(ps)].append(it)
        if p == 6:
            ra = R(f"v_add_u32 v{V_RW}, s{S_L0}, v{V_L16}\nv_add_u32 v{V_RW+1}, {YB[0]}, v{V_RW}\nv_add_u32 v{V_RW}, {YLO}, v{V_RW}")
            for k in range(1, 4):
                ra += R(f"s_add_u32 s{S_T}, s{S_WAVE}, {4-k}\ns_and_b32 s{S_T}, s{S_T}, 3\ns_lshl_b32 s{S_T}, s{S_T}, 13\ns_add_u32 s{S_T}, s{S_T}, {YB[k-1]}\nv_add_u32 v{V_RR+k}, s{S_T}, v{V_L16}")
            if PP == 3: ra += psum(2)[20:] + psum(3)[:20]
            for k, it in enumerate(ra): gaps[(k*40)//len(ra) if PP == 3 else k//2].append(it)
        for m in range(40):
            db, sb, t = m//8, (m//2) % 4, m % 2
            if p == 6: sb, db = 3-m//10, (m//2) % 5
            elif db % 2 and opt('BZ', 1): sb = 3-sb
            d = vr(ACY+20*sb+4*db, 4)
            cc = "0" if (p == 0 and t == 0) else d
            if (m//2) % 2 and opt('BZ', 1): t = 1-t
            e(f"{MF} {d}, {YA(p,db,t)}, {YBr(p,sb,t)}, {cc}")
            if p == 6 and m >= 11 and m % 2 == 1:
                k = (m-11)//2; sb2, db2 = 3-k//5, k % 5
                va, o = (V_RW+1, 0) if sb2 == 1 else (V_RW, YB[sb2-1]-YLO)
                e.ds("yw", f"ds_write_b128 v{va}, {vr(ACY+20*sb2+4*db2,4)} offset:{o+1024*db2}")
            for it in gaps[m]: e.add(it)
    stamp(e, 11)
    Y, Z = ACY, ACY+20
    UN = 176
    def psum2(src):
        for j in range(10): e(f"v_lshlrev_b32 v{UN+2*j}, 16, v{PL+12*src+j}\nv_and_b32 v{UN+2*j+1}, s{S_T}, v{PL+12*src+j}")
        for k in range(0, 20, 2): e(pk("add", SS+k, SS+k, UN+k))
    e(f"s_mov_b32 s{S_T}, 0xffff0000")
    if PP == 3:
        for it in psum(3)[20:]: e.add(it)
    else:
        e.wvm("pl")
        psum2(1)
    e.wds("ALL"); e("s_barrier")
    for sb in range(1, 4):
        for db in range(5): e.ds(("yr", sb), f"ds_read_b128 {vr(ACY+20*sb+4*db,4)}, v{V_RR+sb} offset:{1024*db}")
    if PP != 3: psum2(2); psum2(3)
    e.wvm("e")
    e(f"v_lshlrev_b32 v{VT}, 16, v{V_B2}\nv_lshlrev_b32 v{VT+1}, 16, v{V_B2}\ns_mov_b32 s{S_B+1}, s{S_B}")
    for k in range(10): e(f"v_lshlrev_b32 v{XF(2*k)}, 16, v{XR+k}\nv_and_b32 v{XF(2*k+1)}, 0xffff0000, v{XR+k}")
    for k in range(0, 20, 2): e(pk("add", Y+k, Y+k, VT))
    for sb in range(1, 4):
        e.wds(("yr", sb))
        for k in range(0, 20, 2): e(pk("add", Y+k, Y+k, Y+20*sb+k))
    for k in range(0, 20, 2): e(f"v_pk_mul_f32 {vr(Z+k,2)}, {vr(Y+k,2)}, s[{S_B}:{S_B+1}]")
    for k in range(20): e(f"v_exp_f32 v{Z+k}, v{Z+k}")
    for k in range(0, 20, 2): e(pk("mul", Y+k, Y+k, SS+k))
    for k in range(0, 20, 2): e(f"v_pk_add_f32 {vr(Z+k,2)}, {vr(Z+k,2)}, 1.0 op_sel_hi:[1,0]")
    for db in range(5):
        for k in range(4*db, 4*db+4): e(f"v_rcp_f32 v{Z+k}, v{Z+k}")
        if db:
            d0 = db-1
            e(f"v_cvt_pk_bf16_f32 v{Z+20+2*d0}, v{XF(4*d0)}, v{XF(4*d0+1)}\nv_cvt_pk_bf16_f32 v{Z+21+2*d0}, v{XF(4*d0+2)}, v{XF(4*d0+3)}")
            e(f"buffer_store_dwordx2 {vr(Z+20+2*d0,2)}, v{V_XO}, s[{S_OUT}:{S_OUT+3}], s{S_A} offen offset:{32*d0}")
        else: e("s_nop 0")
        for k in range(4*db, 4*db+4, 2): e(f"v_pk_fma_f32 {vr(XF(k),2)}, {vr(Y+k,2)}, {vr(Z+k,2)}, {vr(XF(k),2)}")
    e(f"v_cvt_pk_bf16_f32 v{Z+28}, v{XF(16)}, v{XF(17)}\nv_cvt_pk_bf16_f32 v{Z+29}, v{XF(18)}, v{XF(19)}")
    e(f"buffer_store_dwordx2 {vr(Z+28,2)}, v{V_XO}, s[{S_OUT}:{S_OUT+3}], s{S_A} offen offset:128")
    stamp(e, 12)
    if Ctx.ts:
        e(f"""s_add_u32 s4, s{S_WS}, {TS_OFF}
        s_addc_u32 s5, s{S_WS+1}, 0
        s_mov_b32 s6, 0x100000
        s_mov_b32 s7, 0x20000
        s_lshl_b32 s8, s2, 2
        s_add_u32 s8, s8, s{S_WAVE}
        s_lshl_b32 s8, s8, 8
        v_lshlrev_b32 v10, 2, v{V_LANE}
        buffer_store_dword v0, v10, s[4:7], s8 offen""")
    if os.environ.get("DIAG"): e("K_dl:\ns_memrealtime s[86:87]\ns_waitcnt lgkmcnt(0)\ns_sub_u32 s86, s86, s84\ns_cmp_lt_u32 s86, 10000\ns_cbranch_scc1 K_dl")
    e("K_end:\ns_endpgm")

def insn_sizes(lines):
    import subprocess, re, tempfile, os
    body = [l for l in lines if isinstance(l, str) and not l.startswith(".")]
    body += [f"K_pg{w}:" for w in range(4)]
    d = tempfile.mkdtemp()
    open(d+"/a.s", "w").write('.amdgcn_target "amdgcn-amd-amdhsa--gfx950"\n.text\n' + "\n".join(body) + "\n")
    subprocess.run(["clang", "-x", "assembler", "-target", "amdgcn-amd-amdhsa", "-mcpu=gfx950", "-c", d+"/a.s", "-o", d+"/a.o"], check=True)
    t = subprocess.run(["llvm-objdump", "-d", "--mcpu=gfx950", d+"/a.o"], capture_output=True, text=True).stdout
    sz = [4*len(m.group(1).split()) for m in re.finditer(r"// [0-9A-F]{12}: ((?:[0-9A-F]{8} ?)+)", t)]
    assert len(sz) == sum(1 for l in body if not l.endswith(":")), (len(sz), len(body))
    return sz
def place_pages(lines):
    sz = iter(insn_sizes(lines))
    out = [".p2align 12"] if opt('AL', 1) == 0 else []
    off = 0x300 if opt('AL', 1) == 0 else None
    nxt = 4096; active = False; masked = False; stubs = []
    for l in lines:
        if not isinstance(l, str):
            if l[1] == "align" and opt('AL', 1): out += ["s_branch K_al", ".p2align 12", "K_al:"]; off = 0
            if l[1] == "warm": active = True; nxt = (off//4096+1)*4096
            if l[1] == "cold": active = False
            if l[1] == "a64":
                while off % 64: out.append("s_nop 0"); off += 4
            continue
        if l.startswith(".") or l.endswith(":"):
            out.append(l); continue
        n = next(sz)
        if active and off >= nxt and not masked:
            stubs.append(len(out)); out.append(None); off += 8 if opt('SN', 0) else 4; nxt += 4096
        if l.startswith("s_mov_b64 exec"): masked = not l.endswith("-1")
        out.append(l)
        if off is not None: off += n
    for k, pos in enumerate(stubs):
        tgt = f"K_pg{k+3}" if k+3 < len(stubs) else f"K_back{k%3}"
        out[pos] = f"K_pg{k}:\ns_cbranch_execz {tgt}" + ("\ns_nop 0" if opt('SN', 0) else "")
    Ctx.npages = len(stubs)
    return out

def gen(ts=False):
    Ctx.ts = ts; Ctx.uid = 0
    e = Em()
    WSR = f"s[{S_WS}:{S_WS+3}]"
    LN_R, LN_L, LT, LN_X, X, D, O1, O2, TA, A0, TG, SB = 96, 97, 98, 100, 110, 130, 150, 160, 170, 176, 182, 184
    XS, HS = LDS_SP, LDS_SP
    e(khead(NAME))
    e("s_cmp_ge_u32 s2, 256\ns_cbranch_scc1 K_exit")
    for s, off in ((S_X,0),(S_DBG,88),(S_WQ,24),(S_WS,96),(S_K,8),(S_V,16),(S_WO,32)):
        e(f"s_load_dwordx2 s[{s}:{s+1}], s[0:1], {off}")
    e(f"s_getpc_b64 s[{S_CODE}:{S_CODE+1}]\nK_pc:")
    e(f"""v_and_b32 v{V_LANE}, 63, v0
    v_lshrrev_b32 v{V_T}, 6, v0
    s_mov_b32 s{S_CODE+2}, K_last-K_pc
    v_readfirstlane_b32 s{S_WAVE}, v{V_T}
    s_mov_b32 s{S_CODE+3}, 0x20000
    s_lshr_b32 s51, s2, 3
    v_lshlrev_b32 v{LT}, 7, v{V_LANE}
    s_cmp_lt_u32 s{S_WAVE}, 2
    s_cbranch_scc1 K_nocp
    s_lshl_b32 s49, s51, 1
    s_add_u32 s49, s49, s{S_WAVE}
    s_and_b32 s49, s49, 15
    s_lshl_b32 s49, s49, 13
    buffer_load_dword v{V_PFD}, v{LT}, s[{S_CODE}:{S_CODE+3}], s49 offen
    K_nocp:
    s_and_b32 s{S_XCD}, s2, 7
    s_lshr_b32 s52, s51, 3
    s_and_b32 s{S_QB}, s51, 7
    s_lshl_b32 s53, s52, 3
    s_add_u32 s53, s53, s{S_XCD}
    s_lshl_b32 s54, s{S_QB}, 5
    s_add_u32 s{S_SLOT}, s53, s54""")
    e(f"""v_lshrrev_b32 v{LN_R}, 5, v0
    v_and_b32 v{LN_L}, 31, v0
    s_lshr_b32 s54, s{S_SLOT}, 2
    s_lshl_b32 s54, s54, 5
    s_and_b32 s55, s{S_SLOT}, 3
    s_lshl_b32 s55, s55, 2
    s_add_u32 s54, s54, s55
    v_and_b32 v{LT}, 3, v{LN_R}
    v_lshrrev_b32 v{LT+1}, 2, v{LN_R}
    v_lshl_add_u32 v{LT}, v{LT+1}, 4, v{LT}
    v_add_u32 v{LT}, s54, v{LT}
    v_mul_u32_u24 v{LT}, 1280, v{LT}
    v_lshl_add_u32 v{LT}, v{LN_L}, 3, v{LT}
    s_mov_b32 s{S_X+2}, {2048*1280}
    s_mov_b32 s{S_X+3}, 0x20000
    s_mov_b32 s{S_DBG+2}, 256
    s_mov_b32 s{S_DBG+3}, 0x20000
    v_mov_b32 v{TG}, 0
    s_memrealtime s[90:91]
    s_waitcnt lgkmcnt(0)""")
    for j in range(5):
        e(f"buffer_load_dwordx2 v[{LN_X+2*j}:{LN_X+2*j+1}], v{LT}, s[{S_X}:{S_X+3}], 0 offen offset:{256*j}{os.environ.get('NTX', '')}")
    e.mark("xout")
    e(f"""s_lshl_b32 s48, s2, 2
    s_add_u32 s48, s48, s{S_WAVE}
    s_cmp_lg_u32 s48, 1
    s_cbranch_scc1 K_notag
    s_or_b32 s90, s90, 1
    v_mov_b32 v{TG+1}, s90
    s_mov_b64 exec, 1
    buffer_store_dword v{TG+1}, v{TG}, s[{S_DBG}:{S_DBG+3}], 0 offen sc1
    s_mov_b64 exec, -1
    K_notag:""")
    if opt('QF', 0) == 3:
        e(f"""s_mov_b32 s{S_WQ+2}, {640*8192}
        s_mov_b32 s{S_WQ+3}, 0x20000
        s_cmp_lt_u32 s{S_WAVE}, 2
        s_cbranch_scc1 K_nopf
        v_min_u32 v{LT}, 39, v{V_LANE}
        v_lshlrev_b32 v{LT}, 7, v{LT}
        s_lshl_b32 s48, s2, 1
        s_add_u32 s48, s48, s{S_WAVE}
        s_sub_u32 s48, s48, 2
        s_mul_i32 s48, s48, 5120
        buffer_load_dword v{V_PFD}, v{LT}, s[{S_WQ}:{S_WQ+3}], s48 offen
        s_add_u32 s48, s48, {512*5120}
        buffer_load_dword v{V_PFD}, v{LT}, s[{S_WQ}:{S_WQ+3}], s48 offen
        K_nopf:""")
    e(f"""s_lshl_b32 s50, s{S_XCD}, 2
    s_add_u32 s50, s50, s52
    s_lshl_b32 s56, s50, 8
    s_sub_u32 s{S_WQ+2}, {640*8192}, s56
    s_mov_b32 s{S_WQ+3}, 0x20000
    s_add_u32 s{S_WQ}, s{S_WQ}, s56
    s_addc_u32 s{S_WQ+1}, s{S_WQ+1}, 0""")
    def wq_pf():
        e(f"""s_cmp_lt_u32 s{S_WAVE}, 2
        s_cbranch_scc1 K_nopf
        v_lshrrev_b32 v{LT}, 1, v{V_LANE}
        v_and_b32 v{LT+1}, 1, v{V_LANE}
        v_lshlrev_b32 v{LT+1}, 7, v{LT+1}
        v_lshl_add_u32 v{LT}, v{LT}, 17, v{LT+1}
        s_lshl_b32 s48, s{S_QB}, 1
        s_add_u32 s48, s48, s{S_WAVE}
        s_sub_u32 s48, s48, 2
        s_lshl_b32 s48, s48, 13
        buffer_load_dword v{V_PFD}, v{LT}, s[{S_WQ}:{S_WQ+3}], s48 offen{NTQ}
        s_add_u32 s48, s48, {32*16*8192}
        buffer_load_dword v{V_PFD}, v{LT}, s[{S_WQ}:{S_WQ+3}], s48 offen{NTQ}
        K_nopf:""")
    if opt('QF', 0) == 0: wq_pf()
    for s, off in ((S_W1,48),(S_B1,56),(S_W2,64),(S_B2,72),(S_OUT,80)):
        e(f"s_load_dwordx2 s[{s}:{s+1}], s[0:1], {off}")
    e(f"""s_mov_b32 s{S_WS+2}, {WS_SZ}
    s_mov_b32 s{S_WS+3}, 0x20000
    s_mov_b32 s{S_PASS}, 0
    s_lshr_b32 s48, s2, 5
    s_lshr_b32 s53, s{S_XCD}, 1
    s_mul_i32 s53, s53, 7
    s_add_u32 s53, s53, s48
    s_cmp_lt_u32 s48, 7
    s_cselect_b32 s{S_G1}, 1, 0
    s_cmp_lt_u32 s53, 27
    s_cselect_b32 s{S_G1}, s{S_G1}, 0
    s_and_b32 s48, s{S_XCD}, 1
    s_lshl_b32 s48, s48, 2
    s_and_b32 s{S_UG}, s{S_QB}, 3
    s_add_u32 s{S_UG}, s{S_UG}, s48
    s_lshl_b32 s{S_UG}, s{S_UG}, 5
    s_add_u32 s{S_UG}, s{S_UG}, s53
    s_cmp_eq_u32 s{S_G1}, 0
    s_cselect_b32 s{S_STATE}, {1<<C_U}, 0
    s_cmp_lg_u32 s{S_WAVE}, 0
    s_cselect_b32 s{S_STATE}, -1, s{S_STATE}
    s_mov_b32 s49, 0xffff0000""")
    e(f"""v_mul_u32_u24 v{A0}, 1280, v{LN_R}
    v_lshl_add_u32 v{A0}, v{LN_L}, 3, v{A0}
    v_add_u32 v{A0}, {XS}, v{A0}
    v_and_b32 v{SB}, 3, v{V_LANE}
    v_bfe_u32 v{SB+1}, v{V_LANE}, 2, 2
    v_bfe_u32 v{SB+2}, v{V_LANE}, 4, 1
    v_lshrrev_b32 v{SB+3}, 5, v{V_LANE}
    v_lshl_add_u32 v{A0+1}, v{SB+2}, 2, v{SB}
    v_mul_u32_u24 v{A0+1}, 1280, v{A0+1}
    v_lshl_add_u32 v{A0+1}, v{SB+3}, 6, v{A0+1}
    v_lshl_add_u32 v{A0+1}, v{SB+1}, 3, v{A0+1}
    v_add_u32 v{A0+1}, {XS}, v{A0+1}
    s_lshr_b32 s54, s{S_SLOT}, 2
    s_lshl_b32 s54, s54, 1
    v_add_u32 v{A0+2}, s54, v{SB+2}
    v_mul_u32_u24 v{A0+2}, 20, v{A0+2}
    v_add_u32 v{A0+2}, v{A0+2}, v{SB+3}
    v_lshlrev_b32 v{A0+2}, 6, v{A0+2}
    v_lshl_add_u32 v{A0+2}, v{SB+1}, 4, v{A0+2}
    v_add_u32 v{A0+2}, v{A0+2}, v{SB}
    v_add_u32 v{A0+2}, s55, v{A0+2}
    v_lshlrev_b32 v{A0+2}, 4, v{A0+2}""")
    QP.addr_dma(e, SB+4)
    e(f"""s_lshl_b32 s52, s50, 19
    s_add_u32 s{S_K}, s{S_K}, s52
    s_addc_u32 s{S_K+1}, s{S_K+1}, 0
    s_add_u32 s{S_V}, s{S_V}, s52
    s_addc_u32 s{S_V+1}, s{S_V+1}, 0""")
    for s, sz in ((S_K,524288),(S_V,524288),(S_WO,4096*1280),(S_W1,2048*3456),(S_B1,3456),(S_W2,1728*4096),(S_B2,4096),(S_OUT,2048*1280)):
        e(f"s_mov_b32 s{s+2}, {sz}\ns_mov_b32 s{s+3}, 0x20000")
    e(f"""s_lshr_b32 s{S_CPF}, s2, 3
    s_lshl_b32 s{S_CPF}, s{S_CPF}, 2
    s_add_u32 s{S_CPF}, s{S_CPF}, s{S_WAVE}
    s_lshl_b32 s{S_CPF}, s{S_CPF}, 10
    s_and_b32 s{S_CPF}, s{S_CPF}, 0xffff
    s_add_u32 s{S_CPF}, s{S_CPF}, K_tail-K_pc""")
    if ts: e("v_mov_b32 v0, 0")
    stamp(e, 0)
    e.mark("align")
    if opt('QF', 0) in (0, 3): e(f"s_cmp_lt_u32 s{S_WAVE}, 2\ns_cbranch_scc1 K_w0\ns_waitcnt vmcnt(2)\ns_branch K_w1\nK_w0:\ns_waitcnt vmcnt(0)\nK_w1:")
    else: e("s_waitcnt vmcnt(0)")
    stamp(e, 1)
    if opt('QF', 0) == 1: wq_pf()
    e(f"buffer_load_dword v{TG+1}, v{TG}, s[{S_DBG}:{S_DBG+3}], 0 offen sc1")
    def kv_pf():
        e(f"""s_cmp_lg_u32 s{S_WAVE}, 1
        s_cbranch_scc1 K_nokv
        v_lshlrev_b32 v{LT}, 7, v{V_LANE}
        s_lshl_b32 s48, s{S_QB}, 13
        buffer_load_dword v{V_PFD}, v{LT}, s[{S_K}:{S_K+3}], s48 offen
        buffer_load_dword v{V_PFD}, v{LT}, s[{S_V}:{S_V+3}], s48 offen
        v_lshrrev_b32 v{LT}, 1, v{V_LANE}
        v_mul_u32_u24 v{LT}, 1280, v{LT}
        v_and_b32 v{LT+1}, 1, v{V_LANE}
        v_lshl_add_u32 v{LT}, v{LT+1}, 7, v{LT}
        s_lshr_b32 s48, s2, 1
        s_mul_i32 s48, s48, {32*1280}
        s_and_b32 s53, s2, 1
        s_mul_i32 s53, s53, 640
        s_add_u32 s48, s48, s53
        buffer_load_dword v{V_PFD}, v{LT}, s[{S_WO}:{S_WO+3}], s48 offen
        buffer_load_dword v{V_PFD}, v{LT}, s[{S_WO}:{S_WO+3}], s48 offen offset:256
        buffer_load_dword v{V_PFD}, v{LT}, s[{S_WO}:{S_WO+3}], s48 offen offset:384
        K_nokv:""")
    if opt('KP', 0) == 1: kv_pf()
    unpack(e, LN_X, X, 10, 49)
    layernorm(e, X, D, O1, TA, 49, scale=math.log2(math.e)/math.sqrt(128.0))
    e("s_waitcnt lgkmcnt(0)")
    for j in range(5): e(f"ds_write_b64 v{A0}, v[{O1+2*j}:{O1+2*j+1}] offset:{256*j}")
    if Ctx.fine == "s": stamp(e, 14)
    e(f"s_waitcnt lgkmcnt(0)\ns_barrier\ns_cmp_lg_u32 s{S_WAVE}, 0\ns_cbranch_scc1 K_noxs")
    for n in range(10): e(f"ds_read2_b64 v[{SB+4*n}:{SB+4*n+3}], v{A0+1} offset0:{16*n} offset1:{16*n+4}")
    for n in range(10):
        if n % 2 == 0: e(f"s_mov_b32 s54, {2048*n}")
        e(f"s_waitcnt lgkmcnt({9-n})\nbuffer_store_dwordx4 v[{SB+4*n}:{SB+4*n+3}], v{A0+2}, {WSR}, s54 offen offset:{2048*(n%2)}{SC}")
    e("K_noxs:")
    if opt('KP', 0) == 2: kv_pf()
    if Ctx.fine == "s": stamp(e, 15)
    e("K_start:")
    T = 64
    urgent = R(f"""v_lshrrev_b32 v{T+2}, 2, v{V_LANE}
    v_and_b32 v{T+3}, 7, v{T+2}
    v_lshlrev_b32 v{T+3}, 1, v{T+3}
    v_and_b32 v{T+4}, 3, v{V_LANE}
    v_xor_b32 v{T+5}, v{T+3}, v{T+4}
    v_lshlrev_b32 v{T+5}, 4, v{T+5}
    v_lshl_add_u32 v{QP.V_WL}, v{T+2}, 8, v{T+5}
    v_xor_b32 v{QP.V_WL+1}, 64, v{QP.V_WL}
    v_xor_b32 v{QP.V_WL+2}, 128, v{QP.V_WL}
    v_xor_b32 v{QP.V_WL+3}, 192, v{QP.V_WL}""")
    urgent += [("raw", f"v_add_u32 v{QP.V_WA+k}, {LDS_V}, v{QP.V_WL+k}") for k in range(4)]
    urgent += flag_addr(T+9, C_XN, S_QB, 8) + R(f"s_lshl_b32 s56, s{S_WAVE}, 10\nv_add_u32 v{T+9}, s56, v{T+9}")
    urgent += R(f"""v_bfe_u32 v89, v{V_LANE}, 2, 2
    v_mul_u32_u24 v89, 1280, v89
    v_lshrrev_b32 v{T}, 4, v{V_LANE}
    s_lshl_b32 s54, s{S_WAVE}, 2
    v_add_u32 v{T}, s54, v{T}
    v_lshl_add_u32 v89, v{T}, 5, v89
    v_lshl_add_u32 v89, v{T+4}, 3, v89
    v_add_u32 v89, {HS}, v89
    v_mul_u32_u24 v88, {HPI}, v{T}
    v_and_b32 v{T+1}, 15, v{V_LANE}
    v_lshl_add_u32 v88, v{T+1}, 4, v88
    s_lshl_b32 s55, s{S_QB}, 4
    s_add_u32 s55, s55, s54
    s_mul_i32 s{QP.S_XOFF}, s55, 20480
    v_lshlrev_b32 v{QP.V_XO}, 4, v{V_LANE}""")
    b = Em()
    b(f"""s_lshl_b32 s50, s{S_XCD}, 2
    s_lshr_b32 s52, s2, 6
    s_add_u32 s50, s50, s52
    s_mov_b32 s{S_KOFF}, s{S_W4K}
    s_mov_b32 s{S_VOFF}, s{S_W4K}
    s_mul_i32 s{S_OST}, s55, {OP}
    s_lshl_b32 s54, s50, 12
    s_add_u32 s{S_OST}, s{S_OST}, s54
    s_add_u32 s{S_OST}, s{S_OST}, {OF_OFF}
    s_lshl_b32 s{S_PF}, s2, 2
    s_add_u32 s{S_PF}, s{S_PF}, s{S_WAVE}
    s_lshl_b32 s54, s50, 2
    s_add_u32 s54, s54, s{S_WAVE}
    s_mul_i32 s{QP.S_WOS}, s54, {32*1280}
    s_mul_i32 s53, s{S_QB}, 160
    s_add_u32 s{QP.S_WOS}, s{QP.S_WOS}, s53
    s_mul_i32 s{QP.S_WOD}, s{S_QB}, {5*OP}
    s_lshl_b32 s54, s54, 10
    s_add_u32 s{QP.S_WOD}, s{QP.S_WOD}, s54
    s_add_u32 s{QP.S_WOD}, s{QP.S_WOD}, {WOF_OFF}
    s_mul_i32 s{S_PF}, s{S_PF}, {56*128}
    s_lshl_b32 s50, s{S_SLOT}, 8
    s_add_u32 s50, s50, {HT_OFF}
    s_cmp_lg_u32 s{S_PASS}, 0
    s_cselect_b32 s50, {WS_SZ}, s50
    s_add_u32 s51, s50, {16*HPI}
    s_add_u32 s52, s50, {32*HPI}
    s_cmp_ge_u32 s{S_WAVE}, 2
    s_cselect_b32 s52, {WS_SZ}, s52
    v_bfe_u32 v{T+4}, v{V_LANE}, 1, 1
    v_xor_b32 v{T+4}, v{T+3}, v{T+4}
    v_lshlrev_b32 v{T+4}, 4, v{T+4}
    v_lshl_add_u32 v{T+4}, v{T+2}, 8, v{T+4}
    v_and_b32 v{T+5}, 1, v{V_LANE}
    v_lshl_add_u32 v{T+4}, v{T+5}, 3, v{T+4}
    v_add_u32 v{V_VA}, {LDS_V}, v{T+4}""")
    for db in range(1, 8): b(f"v_xor_b32 v{V_VA+db}, {32*db}, v{V_VA}")
    b(f"""v_and_b32 v{T}, 15, v{V_LANE}
    v_lshrrev_b32 v{T+1}, 4, v{V_LANE}
    v_and_b32 v{T+2}, 7, v{V_LANE}
    v_lshlrev_b32 v{V_PFA}, 7, v{T+2}
    v_lshlrev_b32 v{T+2}, 1, v{T+2}
    v_xor_b32 v{T+2}, v{T+2}, v{T+1}
    v_lshlrev_b32 v{T+2}, 4, v{T+2}
    v_lshl_add_u32 v{V_KA}, v{T}, 8, v{T+2}
    v_xor_b32 v{V_KA+1}, 64, v{V_KA}
    v_xor_b32 v{V_KA+2}, 128, v{V_KA}
    v_xor_b32 v{V_KA+3}, 192, v{V_KA}
    v_lshlrev_b32 v{T+2}, 1, v{T+1}
    v_xor_b32 v{T+2}, v{T+2}, v{T}
    v_lshlrev_b32 v{T+2}, 4, v{T+2}
    v_lshl_add_u32 v{V_DM}, v{T+1}, 8, v{T+2}
    v_xor_b32 v{V_DM+1}, 128, v{V_DM}
    v_mov_b32 v{T+6}, 0x3f803f80
    v_cmp_gt_u32 vcc, 2, v{T}
    v_mov_b32 v{T+7}, 0x44444444
    v_mov_b32 v{T+8}, 0xeeeeeeee
    v_cndmask_b32 v{V_ONE}, 0, v{T+6}, vcc
    v_cmp_eq_u32 vcc, 1, v{T+5}
    v_mov_b32 v{V_ONE+1}, v{V_ONE}
    v_mov_b32 v{V_ONE+2}, v{V_ONE}
    v_mov_b32 v{V_ONE+3}, v{V_ONE}
    v_cndmask_b32 v{V_IDX}, v{T+7}, v{T+8}, vcc""")
    for n in range(5):
        b(f"""v_add_u32 v{T}, {64*n}, v{V_LANE}
        v_mul_u32_u24 v{T+1}, 6554, v{T}
        v_lshrrev_b32 v{T+1}, 16, v{T+1}
        v_mul_u32_u24 v{T+2}, 10, v{T+1}
        v_sub_u32 v{T}, v{T}, v{T+2}
        v_mul_u32_u24 v{T+1}, 1280, v{T+1}
        v_lshl_add_u32 v{QP.V_OD+n}, v{T}, 4, v{T+1}""")
    for it in urgent: e.add(it)
    urgent = []
    if Ctx.fine == "s": stamp(e, 16)
    e.vm("xs", "s_nop 0")
    grp = []
    for it in b.items:
        if it[1].startswith("s_cselect") or (grp and grp[-1][0][1].startswith("v_cmp") and not grp[-1][-1][1].startswith("v_cndmask")): grp[-1].append(it)
        else: grp.append([it])
    NT = opt('NT', 8)
    wq = [g for j in range(NT) for g in QP.wq_dma(j)]
    nu = -(-len(grp)//len(wq))
    hp = [int(x) for x in opt('HQ', '10/5/15/25').split('/')]
    e.mark("warm")
    for k, g in enumerate(wq):
        if k == hp[0]:
            l0 = lab("w0")
            e(f"s_bitcmp1_b32 s{S_STATE}, {C_XN}\ns_cbranch_scc1 {l0}")
            e.wvm("xs")
            spin(e, TG+1, TG, 1, have=True, cmp=f"v_cmp_eq_u32 vcc, 0, v{TG+1}", srd=S_DBG)
            e(f"v_readfirstlane_b32 s{S_TAG}, v{TG+1}\ns_nop 1")
            for it in signal(C_XN, S_SLOT, LT): e.add(it)
            e(f"{l0}:")
            stamp(e, 2)
        for w in range(1, 4):
            if k == hp[w]:
                e(f"s_cmp_lg_u32 s{S_WAVE}, {w}\ns_cbranch_scc1 K_hop{w}\ns_mov_b64 exec, 0\ns_branch K_pg{w-1}\nK_back{w-1}:\ns_mov_b64 exec, -1\nK_hop{w}:")
        if k == len(wq)-opt('PB', 1): e.vm("xp", f"buffer_load_dword v{T+10}, v{T+9}, {WSR}, 0 offen sc1")
        for it in g + [x for y in grp[:nu] for x in y]: e.add(it)
        grp = grp[nu:]
    assert not grp
    if Ctx.fine == "s": stamp(e, 21)
    b = Em()
    b(f"s_mov_b32 s53, 0xffff0000\nv_min_u32 v{A0}, {LDS_SP+8*1280}, v{A0}\nv_max_u32 v{A0}, {LDS_SP}, v{A0}\nv_and_b32 v{A0}, -8, v{A0}")
    ln_finish(b, D, O2, TA+2)
    unpack(b, O2, X, 10, 53)
    layernorm(b, X, D, O2, TA, 53)
    cut = (len(b.items)*opt('LC', 60))//100
    while b.items[cut][1].startswith(("s_nop", "v_add_f32_dpp", "v_perm")): cut += 1
    for it in b.items[:cut]: e.add(it)
    b.items = b.items[cut:]
    e.wvm("xp")
    l0 = lab("tag")
    e(f"s_cmp_lg_u32 s{S_PASS}, 0\ns_cbranch_scc1 {l0}")
    spin(e, TG+1, TG, 1, have=True, cmp=f"v_cmp_eq_u32 vcc, 0, v{TG+1}", srd=S_DBG)
    e(f"v_readfirstlane_b32 s{S_TAG}, v{TG+1}\ns_nop 1\n{l0}:")
    spin(e, T+10, T+9, 1, have=True)
    stamp(e, 3)
    b("s_barrier")
    for k, it in enumerate(QP.w_reads(0)[:8]): b.add(("ds", ("W0", k//4), it[2]))
    for j in range(5): b.ds("hw", f"ds_write_b64 v{A0}, v[{O2+2*j}:{O2+2*j+1}] offset:{256*j}")
    qproj(e, b.items)
    e(f"s_cmp_lg_u32 s{S_PASS}, 0\ns_cbranch_scc1 K_truemax\nK_it0:")
    l0_ = [(g, [("ds", "wor", f"ds_read_b64_tr_b16 {ar(A_K+2*k,2)}, v{V_PFD} offset:{32*(k//2)+2560*(k%2)}")]) for k, g in enumerate((3, 6, 6, 7, 8, 8, 9, 11, 15, 19))]
    l0_.append((23, [("wait", None, "wor")]))
    l0_ += [(27+8*f, [("vm", "wos", f"buffer_store_dwordx4 {ar(A_K+4*f,4)}, v{QP.V_XO}, s[{S_WS}:{S_WS+3}], s{QP.S_WOD} offen{SC}")]) for f in range(5)]
    l0_ += [(31+8*f, R(f"s_add_u32 s{QP.S_WOD}, s{QP.S_WOD}, {OP}")) for f in range(4)]
    l0_ += [(126, [("wait", "wos", None)]), (131, signal(C_H, S_QB, 21))]
    attn_iter(e, 0, first_pv=True, pf=True, late=l0_, kbase=K1B)
    stamp(e, 5)
    e(f"s_mov_b32 s{S_CNT}, 7\ns_mov_b32 s54, s{S_OST}")
    e.mark("loop0")
    for i in range(1, 5): attn_iter(e, i, pf=True)
    e.mark("loop1")
    for i in range(5, 9): attn_iter(e, i, pf=True)
    e.mark("loop2")
    e("K_tail:")
    stamp(e, 6)
    late29 = [(8, poll_ld(V_T, V_HPA, S_DBG)), (129, R(f"v_and_b32 v24, 7, v{V_LANE}\nv_lshl_add_u32 v24, v24, 4, 64"))]
    late29 += [(11+4*(k//2), [it]) for k, it in enumerate(G1.setup1())]
    attn_iter(e, 9, dma=False, late=late29, extra=list(zip([67, 75, 83, 91, 99, 107, 111, 115], G1.wl(0))))
    spin(e, V_T, 24, 8, have=True, cmp=f"v_cmp_gt_u32 vcc, 32, v{V_T}", srd=S_DBG)
    e(f"""s_cmp_eq_u32 s{S_G1}, 0
    s_cbranch_scc1 K_plain
    s_cmp_lg_u32 s{S_PASS}, 0
    s_cbranch_scc1 K_plain""")
    tail_gemm1(e)
    final(e)
    e.mark("cold")
    e("K_plain:")
    tail_plain(e)
    e(f"K_late:\nv_lshlrev_b32 v{FS.V_SD}, 4, v{V_LANE}")
    spin(e, FS.V_FD, FS.V_FA, opt('SL', 4))
    for g in FS.direct0("untracked") + FS.dma(1, "untracked") + FS.dma(2, "untracked"):
        for it in g: e.add(it)
    e("s_branch K_final")
    e("K_redo_u:\ns_waitcnt lgkmcnt(0)\ns_barrier")
    for it in g1_red_reads(): e.add(it)
    e("s_waitcnt lgkmcnt(0)")
    for it in gelu_items(G1.V_L16, 50): e.add(it)
    e("s_waitcnt lgkmcnt(0)\ns_barrier")
    for part in u_out(G1.V_L16, 50):
        for g in part:
            for it in g: e.add(it)
    e(f"""K_redo:
    s_mov_b32 s{S_PASS}, 1
    s_waitcnt vmcnt(0) lgkmcnt(0)
    s_barrier""")
    for it in signal(C_U, S_UG, V_T+8): e.add(it)
    QP.addr_dma(e, 40)
    e("s_branch K_start")
    KA2 = V_P+32
    e(f"K_truemax:\ns_waitcnt vmcnt(0)\ns_barrier\ns_mov_b32 s{QP.S_WOD}, {WS_SZ}\ns_mov_b32 s50, s{S_W4K}\ns_mov_b32 s51, 33")
    for k in range(4): e(f"v_add_u32 v{KA2+k}, {LDS_SP}, v{V_KA+k}")
    for qb in range(4): e(f"v_mov_b32 v{V_M+4*qb}, 0xff800000")
    e(f"K_mloop:\ns_and_b32 s50, s50, 0x7ffff\ns_add_u32 m0, s{S_W4K}, {LDS_SP}\ns_nop 0")
    for n in range(4): e(f"buffer_load_dwordx4 v{V_DM+(n&1)}, s[{S_K}:{S_K+3}], s50 offen offset:{1024*n} lds")
    e("s_add_u32 s50, s50, 16384\ns_waitcnt vmcnt(0)\ns_barrier")
    for it in k_reads(0, "fb", va=KA2): e.add(it)
    e("s_waitcnt lgkmcnt(0)\ns_barrier")
    for n in range(64):
        kb, qb, ks = n//16, (n//4) % 4, n % 4
        c = "0" if ks == 0 else vr(Sreg(kb,qb), 4)
        e(f"{MF} {vr(Sreg(kb,qb),4)}, {ar(Kreg(kb,ks),4)}, {vr(Qreg(qb,ks),4)}, {c}")
    e("s_nop 7")
    for kb in range(4):
        for qb in range(4):
            sx, m = Sreg(kb,qb), V_M+4*qb
            e(f"v_max3_f32 v{m}, v{m}, v{sx}, v{sx+1}\nv_max3_f32 v{m}, v{m}, v{sx+2}, v{sx+3}")
    e("s_sub_u32 s51, s51, 1\ns_cmp_lg_u32 s51, 0\ns_cbranch_scc1 K_mloop")
    for qb in range(4):
        m = V_M+4*qb
        xlane(e, m, m+1, "v_max_f32")
        e(f"v_sub_f32 v{m}, 0, v{m}\nv_mov_b32 v{m+1}, v{m}\nv_mov_b32 v{m+2}, v{m}\nv_mov_b32 v{m+3}, v{m}")
    for x in range(64): e(f"v_add_f32 v{V_S+x}, v{V_S+x}, v{V_M+4*((x//4)%4)}")
    for x in range(61): e(f"v_exp_f32 v{V_S+x}, v{V_S+x}")
    for x in range(0, 60, 2):
        kb, qb, r = x//16, (x//4) % 4, x % 4
        e(ppack(Preg(0,qb,kb//2)+2*(kb%2)+r//2, V_S+x))
    e("s_nop 1\ns_branch K_it0")
    e("K_exit:\ns_endpgm\nK_last:")
    lines = resolve(e.items)
    i0, i1, i2 = (lines.index(("mark", m)) for m in ("loop0", "loop1", "loop2"))
    b1, b2 = lines[i0+1:i1], lines[i1+1:i2]
    def wle(x, y):
        import re
        mx, my = re.match(r's_waitcnt vmcnt\((\d+)\)(.*)', x), re.match(r's_waitcnt vmcnt\((\d+)\)(.*)', y)
        return mx and my and mx.group(2) == my.group(2)
    b2 = [y if x == y else min(x, y, key=lambda t: int(t.split('(')[1].split(')')[0])) for x, y in zip(b1, b2) if x == y or wle(x, y)]
    assert len(b1) == len(b2), [(x, y) for x, y in zip(b1, b2) if x != y][:5]
    if ts and Ctx.fine == "l":
        b2 = b2 + ["s_memtime s[84:85]", "s_memrealtime s[86:87]", f"s_add_u32 s56, s{S_CNT}, 14", "s_waitcnt lgkmcnt(0)", "v_writelane_b32 v0, s84, s56" if False else "s_mov_b32 m0, s56", "s_nop 1", "v_writelane_b32 v0, s84, m0", "s_add_u32 m0, m0, 32", "s_nop 1", "v_writelane_b32 v0, s86, m0"]
    loop = [("mark", "a64"), "K_loop:"] + b2 + ([f"s_cmp_lg_u32 s{S_CNT}, 0", "s_cbranch_scc1 K_loop"] if opt('LB', 1) else [f"s_sub_u32 s{S_CNT}, s{S_CNT}, 1", f"s_cmp_lg_u32 s{S_CNT}, 0", "s_cbranch_scc1 K_loop"])
    lines = lines[:i0] + loop + lines[i2+1:]
    lines = place_pages(lines)
    ref = open("recurrent_scan__mha_block_cached__mixer_token_mlp__prompt.s.ref").read().split("\n")
    head = [l for l in ref if l.startswith(";") and "@launch" not in l]
    out = head + [f"; @launch grid=(256,1,1) block=(256,1,1) lds={LDS_SZ}", '.amdgcn_target "amdgcn-amd-amdhsa--gfx950"', ".text"]
    out += lines + ['.section .rodata,"a"', kdesc(NAME, 512, 256, 102)]
    return "\n".join(out) + "\n"

if __name__ == "__main__":
    import os
    Ctx.touch = bool(os.environ.get("TOUCH"))
    if os.environ.get("OUT"):
        open(os.environ["OUT"], "w").write(gen(False)); sys.exit(0)
    open("f_nt.s", "w").write(gen(False))
    Ctx.fine = sys.argv[1] if len(sys.argv) > 1 else None
    open("f_ts.s", "w").write(gen(True))
```

```python
from asmlib import *
import math, sys, os

XN_OFF, HT_OFF, U_OFF, WOF_OFF, OF_OFF = 0x0, 0x280000, 0x580000, 0x800000, 0x1000000
PART_OFF = 0x2400000
OP = 0x20000 + int(os.environ.get('OPAD', '4352'))
HPI = 65536 + int(os.environ.get('HPAD', '0'))
HCH = -(-20*HPI//(256*128))*128
WS_SZ = 0x4000000
TS_OFF = 0x4000000
NAME = "recurrent_scan__mha_block_cached__mixer_token_mlp__prompt_kernel"
MF = "v_mfma_f32_16x16x32_bf16"
V_LANE, V_KA, V_VA, V_DM, V_IDX, V_T, V_ONE = 1, 2, 6, 14, 16, 17, 28
V_PFA, V_PFD, V_PFL = 24, 25, 18
V_HPD, V_HPA, V_P1A, V_PHA = 20, 26, 27, 17
S_G1, S_P1, S_PH = 78, 79, 101
V_Q, V_S, V_P, V_M, V_L = 32, 96, 160, 224, 240
A_O, A_K, A_V = 0, 128, 192
S_K, S_V, S_WQ, S_WS, S_W1, S_B1, S_W2, S_WO, S_X, S_DBG, S_B2, S_OUT, S_CODE, S_TS = 4, 8, 12, 16, 20, 24, 28, 32, 36, 60, 64, 68, 72, 84
S_W4K, S_KOFF, S_VOFF, S_CNT, S_WAVE, S_PASS, S_OST, S_STATE, S_PF = 40, 41, 42, 43, 44, 45, 57, 58, 59
S_CPF = 3
S_QB, S_XCD, S_UG, S_SLOT, S_TAG = 80, 81, 82, 83, 88
LDS_K, LDS_V, LDS_SP, LDS_FLAG, LDS_SZ = 0, 65536, 131072, 98304, 163840
LAG = 10
NTQ = os.environ.get("NTQ", "")
SC = " sc1"

import os
OPT = dict(x.split('=') for x in os.environ.get('OPT', '').split(',') if x)
def opt(k, d): return type(d)(OPT.get(k, d))
class Ctx:
    ts = False
    touch = False
    fine = None
    uid = 0
def lab(p):
    Ctx.uid += 1
    return f"L{p}_{Ctx.uid}"
def R(t): return [("raw", x.strip()) for x in t.strip("\n").split("\n") if x.strip()]

def stamp(e, idx):
    if os.environ.get("DIAG") == str(idx): e("s_memrealtime s[84:85]\ns_waitcnt lgkmcnt(0)")
    if Ctx.ts:
        e(f"s_memtime s[84:85]\ns_memrealtime s[86:87]\ns_waitcnt lgkmcnt(0)\nv_writelane_b32 v0, s84, {idx}\nv_writelane_b32 v0, s86, {32+idx}")

FL_OFF = 0xE00000
C_XN, C_H, C_O, C_U, C_P = 0, 1, 2, 3, 4
def signal(kind, sg, t):
    l = lab("sig")
    if kind == C_H:
        st = f"v_mov_b32 v{t}, 1\nv_lshlrev_b32 v{t+1}, 4, v{t+1}\ns_mov_b64 exec, 1\nbuffer_atomic_add v{t}, v{t+1}, s[{S_DBG}:{S_DBG+3}], 0 offen offset:64 sc1"
    else:
        st = f"v_mov_b32 v{t}, s{S_TAG}\nv_lshlrev_b32 v{t+1}, 7, v{t+1}\nv_add_u32 v{t+1}, {FL_OFF+kind*32768}, v{t+1}\ns_mov_b64 exec, 1\nbuffer_store_dword v{t}, v{t+1}, s[{S_WS}:{S_WS+3}], 0 offen sc1"
    return R(f"""s_bitcmp1_b32 s{S_STATE}, {kind}
    s_cbranch_scc1 {l}
    s_bitset1_b32 s{S_STATE}, {kind}
    v_mov_b32 v{t+1}, s{sg}
    {st}
    s_mov_b64 exec, -1
    {l}:""")
def flag_addr(a, kind, sg, n):
    r = R(f"v_min_u32 v{a}, {n-1}, v{V_LANE}\nv_lshlrev_b32 v{a}, 7, v{a}")
    if sg is not None: r += R(f"s_lshl_b32 s56, s{sg}, 12\ns_add_u32 s56, s56, {FL_OFF+kind*32768}\nv_add_u32 v{a}, s56, v{a}")
    else: r += R(f"v_add_u32 v{a}, {FL_OFF+kind*32768}, v{a}")
    return r
def poll_ld(d, a, srd=None):
    srd = S_WS if srd is None else srd
    return [("vm", "poll", f"buffer_load_dword v{d}, v{a}, s[{srd}:{srd+3}], 0 offen sc1")]
def spin_items(*a, **k):
    t = Em(); spin(t, *a, **k); return t.items
def spin(e, d, a, sleep, have=False, cmp=None, srd=None):
    l0, l1 = lab("spin"), lab("spun")
    srd = S_WS if srd is None else srd
    cmp = cmp or f"v_cmp_ne_u32 vcc, s{S_TAG}, v{d}"
    if have: e(f"{cmp}\ns_cbranch_vccz {l1}")
    e(f"""s_mov_b32 s56, 0x40000
    {l0}:
    buffer_load_dword v{d}, v{a}, s[{srd}:{srd+3}], 0 offen sc1
    s_waitcnt vmcnt(0)
    {cmp}
    s_cbranch_vccz {l1}
    s_sleep {sleep}
    s_sub_u32 s56, s56, 1
    s_cmp_lg_u32 s56, 0
    s_cbranch_scc1 {l0}
    {l1}:""")

S_SEL = 100
def ppack(d, x):
    if opt('TR', 0): return f"v_perm_b32 v{d}, v{x+1}, v{x}, s{S_SEL}"
    return f"v_cvt_pk_bf16_f32 v{d}, v{x}, v{x+1}"
def Sreg(kb, qb): return V_S + 16*kb + 4*qb
def Preg(par, qb, t): return V_P + 32*par + 8*qb + 4*t
def Qreg(qb, ks): return V_Q + 16*qb + 4*ks
def Kreg(kb, ks): return A_K + 16*kb + 4*ks
def Vreg(db, t): return A_V + 8*db + 4*t
def Oreg(db, qb): return A_O + 16*db + 4*qb

def allreduce32(e, v, t):
    for k in (8, 4, 2, 1):
        e(f"s_nop 1\nv_add_f32_dpp v{v}, v{v}, v{v} row_ror:{k} row_mask:0xf bank_mask:0xf")
    e(f"v_mov_b32 v{t}, v{v}\ns_nop 1\nv_permlane16_swap_b32 v{t}, v{v}\ns_nop 1\nv_add_f32 v{v}, v{v}, v{t}")
def round_bf16(e, v): e(f"v_cvt_pk_bf16_f32 v{v}, v{v}, v{v}\nv_and_b32 v{v}, 0xffff0000, v{v}")
def unpack(e, src, dst, n, smask):
    for i in range(n): e(f"v_lshlrev_b32 v{dst+2*i}, 16, v{src+i}\nv_and_b32 v{dst+2*i+1}, s{smask}, v{src+i}")
def pk(op, d, a, b, bc=False):
    return f"v_pk_{op}_f32 {vr(d,2)}, {vr(a,2)}, {vr(b,2)}" + (" op_sel_hi:[1,0]" if bc else "")
def ln_finish(e, D, OUT, B, T=None):
    T = D if T is None else T
    for i in range(0, 20, 2): e(pk("mul", T+i, D+i, B, True))
    for i in range(10): e(f"v_cvt_pk_bf16_f32 v{OUT+i}, v{T+2*i}, v{T+2*i+1}")
def layernorm(e, X, D, OUT, A, smask, scale=None):
    B, T = A+2, A+4
    e(pk("add", A, X, X+2))
    for i in range(4, 20, 2): e(pk("add", A, A, X+i))
    e(f"v_add_f32 v{A}, v{A}, v{A+1}")
    allreduce32(e, A, T)
    e(f"v_mul_f32 v{A}, {fhex(-1.0/640)}, v{A}")
    for i in range(0, 20, 2): e(pk("add", D+i, X+i, A, True))
    e(pk("mul", B, D, D))
    for i in range(2, 20, 2): e(f"v_pk_fma_f32 {vr(B,2)}, {vr(D+i,2)}, {vr(D+i,2)}, {vr(B,2)}")
    e(f"v_add_f32 v{B}, v{B}, v{B+1}")
    allreduce32(e, B, T)
    e(f"v_mul_f32 v{B}, {fhex(1.0/640)}, v{B}")
    round_bf16(e, A); round_bf16(e, B)
    e(f"v_add_f32 v{B}, {fhex(1e-5)}, v{B}")
    round_bf16(e, B)
    e(f"v_sqrt_f32 v{B}, v{B}\ns_nop 0")
    round_bf16(e, B)
    e(f"v_rcp_f32 v{B}, v{B}")
    for i in range(0, 20, 2): e(pk("add", D+i, X+i, A, True))
    for i in range(10): e(f"v_cvt_pk_bf16_f32 v{OUT+i}, v{D+2*i}, v{D+2*i+1}")
    unpack(e, OUT, D, 10, smask)
    if scale is None: ln_finish(e, D, OUT, B)
    else:
        e(f"v_mul_f32 v{T}, {fhex(scale)}, v{B}")
        ln_finish(e, D, OUT, T, X)

def dma_kv(which, slot, tag):
    base = (LDS_K if which == "K" else LDS_V) + 16384*slot
    s, off = (S_K, S_KOFF) if which == "K" else (S_V, S_VOFF)
    m0 = ("raw", f"s_add_u32 m0, s{S_W4K}, {base}")
    d = [("vm", tag, f"buffer_load_dwordx4 v{V_DM+(n&1)}, s[{s}:{s+3}], s{off} offen offset:{1024*n}{opt('KVF', '').replace('_', ' ')} lds") for n in range(4)]
    inc = ("raw", f"s_add_u32 s{off}, s{off}, 16384")
    return m0, d, inc
def k_reads(slot, tag, kbase=A_K, va=V_KA):
    return [("ds", tag, f"ds_read_b128 {ar(Kreg(kb,ks)-A_K+kbase,4)}, v{va+ks} offset:{16384*slot+4096*kb}") for kb in range(4) for ks in range(4)]
def v_reads(slot, tag):
    return [("ds", (tag, db), f"ds_read_b64_tr_b16 {ar(Vreg(db,t)+2*hj,2)}, v{V_VA+db} offset:{16384*slot+4096*(2*t+hj)}")
            for db in range(8) for t in range(2) for hj in range(2)]

def attn_iter(e, i, do_qk=True, do_pv=True, first_pv=False, dma=True, wrap_in=True, extra=None, pf=False, endbar=True, late=None, sm_first=False, kbase=A_K, vnext=False, vpre=False):
    NG = 132
    mf = [None]*NG
    gaps = [[] for _ in range(NG)]
    par = i & 1
    if do_qk:
        for n in range(64):
            kb, qb, ks = n//16, (n//4) % 4, n % 4
            c = vr(V_M+4*qb, 4) if ks == 0 else vr(Sreg(kb,qb), 4)
            if opt('BZ', 1) and qb % 2: ks = 3-ks
            mf[n] = f"{MF} {vr(Sreg(kb,qb),4)}, {ar(Kreg(kb,ks)-A_K+kbase,4)}, {vr(Qreg(qb,ks),4)}, {c}"
    if do_pv:
        for m in range(64):
            db, qb, t = m//8, (m//2) % 4, m % 2
            c = "0" if (first_pv and t == 0) else None
            if opt('BZ', 1):
                if qb % 2: t = 1-t
                if db % 2: qb = 3-qb
            c = c or ar(Oreg(db,qb), 4)
            mf[64+m] = f"{MF} {ar(Oreg(db,qb),4)}, {vr(Preg(par,qb,t),4)}, {ar(Vreg(db,t),4)}, {c}"
        for qb in range(4):
            mf[128+qb] = f"v_smfmac_f32_16x16x64_bf16 {vr(V_L+4*qb,4)}, {vr(V_ONE,4)}, {vr(Preg(par,qb,0),8)}, v{V_IDX}"
        if sm_first: mf[64:132] = mf[128:132] + mf[64:128]
        elif opt('SM', 0) == 1: mf[64:132] = [x for k in range(4) for x in mf[64+16*k:80+16*k] + [mf[128+k]]]
        elif opt('SM', 0) == 2: mf[64:132] = mf[128:132] + mf[64:128]
        if not vpre:
            for j, it in enumerate(v_reads(i % 4, ("V", i))): gaps[1+2*j].append(it)
        gaps[63].append(("wait", None, (("V", i), 5)))
        gaps[75].append(("wait", None, (("V", i), 7)))
    if do_qk and dma != "nok":
        kpos = [65,69,71,73,77,79,81,85,87,89,93,95,97,101,103,105]
        for p, it in zip(kpos, k_reads((i+2) % 4, ("K", i+2))): gaps[p].insert(0, it)
    if dma is True:
        m0, d, inc = dma_kv("K", (i+5) % 4, ("D", i))
        gaps[6].append(m0)
        for j in range(4): gaps[67+8*j].insert(0, d[j])
        gaps[91].append(inc)
        m0, d, inc = dma_kv("V", (i+3) % 4, ("D", i))
        gaps[95].append(m0)
        for j in range(4): gaps[99+8*j].insert(0, d[j])
        gaps[123].append(inc)
    if pf:
        k = i % 4
        def ld(va, sp, so, d=V_PFL, fl=""): return ("vm", ("D", i), f"buffer_load_dword v{d}, v{va}, s[{sp}:{sp+3}], {so} offen{fl}")
        if k == 0 and opt('WM', 1):
            gaps[111].insert(0, ld(V_PFA, S_W2, f"s{S_PF}"))
            gaps[119].insert(0, ld(V_PFA, S_X, f"s{S_PF}"))
            gaps[119].append(("raw", f"s_add_u32 s{S_PF}, s{S_PF}, 1024"))
        if k == 1:
            gaps[6] += R(f"s_cmp_le_u32 s{S_CNT}, 3\ns_cselect_b32 s56, 0, 256")
            gaps[8].insert(0, ld(V_HPA, S_DBG, "s56", V_HPD, " sc1"))
            gaps[111] += R(f"s_cmp_le_u32 s{S_CNT}, 2\ns_cselect_b32 s56, s{S_P1}, {0x1000000}")
            gaps[119].insert(0, ld(V_P1A, S_W1, "s56"))
            gaps[119].append(("raw", f"s_sub_u32 s{S_P1}, s{S_P1}, {8*3456}"))
        if k == 2 and opt('CP', 1):
            gaps[111] += R(f"s_cmp_eq_u32 s{S_CNT}, 2\ns_cselect_b32 s56, s{S_CPF}, {0x1000000}")
            gaps[119].insert(0, ld(V_PFA, S_CODE, "s56"))
        if opt('PT', 0) and i > 0:
            if k == 1: gaps[117] = R(f"s_cmp_ge_u32 s{S_CNT}, 4\ns_cselect_b32 s55, s54, {WS_SZ}") + gaps[117]
            gaps[121 if k else 117].insert(0, ("vm", ("D", i), f"buffer_load_dword v{V_PFL}, v{V_PFA}, s[{S_WS}:{S_WS+3}], s55 offen offset:{1024*k}"))
            if k == 2: gaps[8].append(("raw", f"s_add_u32 s54, s54, 0x20000"))
        if k == 0 and i > 0:
            gaps[109].insert(0, ("raw", f"v_cmp_gt_u32 vcc, 32, v{V_HPD}"))
            gaps[113] = R(f"s_cmp_eq_u64 vcc, 0\ns_cselect_b32 s56, s{S_PH}, {WS_SZ}") + gaps[113]
            gaps[121] = R(f"s_cmp_ge_u32 s{S_CNT}, 2\ns_cselect_b32 s56, s56, {WS_SZ}") + gaps[121]
        if k == 0:
            if i == 0: gaps[121].insert(0, ("raw", f"s_mov_b32 s56, {WS_SZ}"))
            hp_ = 125 if opt('WP', 127) != 131 else 127
            gaps[hp_].insert(0, ("vm", ("D", i+1), f"buffer_load_dword v{V_PFL}, v{V_PHA}, s[{S_WS}:{S_WS+3}], s56 offen"))
            gaps[8].append(("raw", f"s_sub_u32 s{S_PH}, s{S_PH}, {HCH}"))
    if extra:
        for pos, grp in extra: gaps[pos] = list(grp) + gaps[pos]
    if vnext:
        for j, it in enumerate(v_reads((i+1) % 4, ("V", i+1))): gaps[73+2*j if j < 28 else 100+j].insert(0, it)
    if late:
        for pos, grp in late: gaps[pos] += list(grp)
    def expi(x): return ("raw", f"v_exp_f32 v{V_S+x}, v{V_S+x}")
    def cvti(c, p):
        x = 2*c; kb, qb, r = x//16, (x//4) % 4, x % 4
        return ("raw", ppack(Preg(p,qb,kb//2)+2*(kb%2)+r//2, V_S+x))
    for x in range(64):
        n = 2*x + LAG
        if n < NG:
            if do_qk: gaps[n].append(expi(x))
        elif wrap_in: gaps[n-NG].append(expi(x))
    for c in range(32):
        n = 4*c + LAG + 3
        if n < NG:
            if do_qk: gaps[n].append(cvti(c, par ^ 1))
        elif wrap_in: gaps[n-NG].append(cvti(c, par))
    if do_qk and endbar:
        wp, bp = (opt('WP', 127), opt('BP', 127)) if dma is True else (131, 131)
        if endbar is True:
            vt = ("D", i-2) if dma is True else "poll"
            gaps[wp].insert(0, ("wait", vt, "ALL"))
        if wp == bp: gaps[bp].insert(1 if endbar is True else 0, ("raw", "s_barrier"))
        else: gaps[bp].insert(0, ("raw", "s_barrier"))
    if pf and i > 0 and i % 4 == 0 and opt('LB', 1):
        gaps[129] = R(f"s_sub_u32 s{S_CNT}, s{S_CNT}, 1") + gaps[129]
    for n in range(NG):
        if mf[n] is not None: e(mf[n])
        elif gaps[n]: e("s_nop 0")
        for it in gaps[n]: e.add(it)

def xlane(e, v, t, op):
    e(f"v_mov_b32 v{t}, v{v}\ns_nop 1\nv_permlane16_swap_b32 v{t}, v{v}\ns_nop 1\n{op} v{v}, v{v}, v{t}")
    e(f"v_mov_b32 v{t}, v{v}\ns_nop 1\nv_permlane32_swap_b32 v{t}, v{v}\ns_nop 1\n{op} v{v}, v{v}, v{t}")

K1B = A_O+64
class QP:
    V_WD, V_WA, V_XO = V_T, V_T+2, V_T+6
    V_WL, V_OD, V_OA, V_OF = V_Q, V_Q+4, V_Q+9, V_Q+12
    S_WOFF, S_XOFF, S_TMP, S_WOS, S_WOD = 46, 47, 48, 76, 77
    @staticmethod
    def slot(j): return (j+6) % 8
    @classmethod
    def addr_dma(c, e, T):
        e(f"""v_lshrrev_b32 v{T}, 4, v{V_LANE}
        v_and_b32 v{T+1}, 15, v{V_LANE}
        v_lshlrev_b32 v{T+2}, 1, v{T}
        v_xor_b32 v{T+1}, v{T+1}, v{T+2}
        v_lshlrev_b32 v{T+1}, 4, v{T+1}
        v_lshl_add_u32 v{c.V_WD}, v{T}, 13, v{T+1}
        v_xor_b32 v{c.V_WD+1}, 128, v{c.V_WD}
        s_lshl_b32 s{c.S_WOFF}, s{S_WAVE}, 17
        s_lshl_b32 s{S_W4K}, s{S_WAVE}, 12""")
    @classmethod
    def wq_dma(c, j):
        r = [R(f"s_add_u32 m0, s{S_W4K}, {16384*c.slot(j)}")]
        for n in range(4):
            r.append([("raw", f"s_add_u32 s{c.S_TMP}, s{c.S_WOFF}, {j*64*8192+n*32768-1024*n}"),
                      ("vm", ("W", j), f"buffer_load_dwordx4 v{c.V_WD+(n&1)}, s[{S_WQ}:{S_WQ+3}], s{c.S_TMP} offen offset:{1024*n} lds")])
        return r
    @classmethod
    def wq_tiles(c, e, t0, t1):
        for j in range(t0, t1):
            for g in c.wq_dma(j):
                for it in g: e.add(it)
    @staticmethod
    def Wreg(j, a, t): return (A_K if j % 2 == 0 else A_V) + 8*a + 4*t
    @classmethod
    def w_reads(c, j):
        sl = c.slot(j)
        va = c.V_WL if sl < 4 else c.V_WA
        return [("ds", ("Wr", j), f"ds_read_b64_tr_b16 {ar(c.Wreg(j,a,t)+2*hj,2)}, v{va+a//2} offset:{16384*(sl%4)+4096*(2*t+hj)+8*(a&1)}")
                for a in range(8) for t in range(2) for hj in range(2)]

def qproj(e, bulk):
    c = QP
    V_XO, S_XOFF, S_TMP = c.V_XO, c.S_XOFF, c.S_TMP
    ACC = V_S
    WSR = f"s[{S_WS}:{S_WS+3}]"
    def Xreg(j, qb, t): return A_O + 32*(j % 4) + 8*qb + 4*t
    def xn_ld(j):
        r = []
        for qb in range(4):
            r.append([("raw", f"s_add_u32 s{S_TMP+1}, s{S_XOFF}, {qb*20480+j*2048}"),
                      ("vm", ("X", j), f"buffer_load_dwordx4 {ar(Xreg(j,qb,0),4)}, v{V_XO}, {WSR}, s{S_TMP+1} offen{SC}")])
            r.append([("vm", ("X", j), f"buffer_load_dwordx4 {ar(Xreg(j,qb,1),4)}, v{V_XO}, {WSR}, s{S_TMP+1} offen offset:1024{SC}")])
        return r
    def kv(which, tile, tag):
        m0, d, inc = dma_kv(which, tile % 4, tag)
        return [[m0], [d[0]], [d[1]], [d[2]], [d[3], inc]]
    wo_dma = []
    for n in range(5):
        wo_dma += [R(f"s_lshl_b32 s{S_TMP}, s{S_WAVE}, 13\ns_add_u32 m0, s{S_TMP}, {LDS_SP+1024*n}"),
                   [("vm", "wo", f"buffer_load_dwordx4 v{c.V_OD+n}, s[{S_WO}:{S_WO+3}], s{c.S_WOS} offen lds")]]
    hs = [[("vm", "hs", f"buffer_store_dwordx4 v[{76+4*n}:{79+4*n}], v88, {WSR}, s{50+n} offen{SC}")] for n in range(3)]
    misc = [("raw", f"v_mov_b32 v{V_L+k}, 0") for k in range(16)]
    misc += R(f"""v_and_b32 v{V_HPA}, 7, v{V_LANE}
    v_min_u32 v{V_P1A}, 6, v{V_HPA}
    v_lshlrev_b32 v{V_P1A}, 7, v{V_P1A}
    v_lshrrev_b32 v{V_PHA}, 3, v{V_LANE}
    v_mul_u32_u24 v{V_PHA}, 3456, v{V_PHA}
    v_add_u32 v{V_P1A}, v{V_P1A}, v{V_PHA}
    v_lshlrev_b32 v{V_HPA}, 4, v{V_HPA}
    v_add_u32 v{V_HPA}, 64, v{V_HPA}
    v_min_u32 v{V_PHA}, {HCH//128-1}, v{V_LANE}
    v_lshlrev_b32 v{V_PHA}, 7, v{V_PHA}
    v_lshrrev_b32 v{V_PFD}, 2, v{V_LANE}
    v_mul_u32_u24 v{V_PFD}, 160, v{V_PFD}
    v_and_b32 v{V_PFL}, 3, v{V_LANE}
    v_lshl_add_u32 v{V_PFD}, v{V_PFL}, 3, v{V_PFD}
    s_lshl_b32 s53, s{S_WAVE}, 13
    s_add_u32 s53, s53, {LDS_SP}
    v_add_u32 v{V_PFD}, s53, v{V_PFD}
    s_lshr_b32 s53, s2, 3
    s_lshl_b32 s53, s53, 2
    s_add_u32 s53, s53, s{S_WAVE}
    s_mul_i32 s{S_P1}, s53, {16*3456}
    s_lshr_b32 s54, s{S_XCD}, 1
    s_mul_i32 s54, s54, 896
    s_add_u32 s{S_P1}, s{S_P1}, s54
    s_add_u32 s{S_P1}, s{S_P1}, {6*8*3456}
    s_mul_i32 s{S_PH}, s53, {2*HCH}
    s_and_b32 s54, s{S_XCD}, 1
    s_mul_i32 s54, s54, {20*HPI}
    s_add_u32 s{S_PH}, s{S_PH}, s54
    s_add_u32 s{S_PH}, s{S_PH}, {HT_OFF+7*HCH}""")
    for k, grp in enumerate(xn_ld(0)):
        for it in grp: e.add(("vm", ("X0", k//2), it[2]) if it[0] == "vm" else it)
    x1 = xn_ld(1) + [g for j in range(opt('NT', 8), 8) for g in c.wq_dma(j)]
    stp = max(2, min(8, (len(bulk)-16)//len(x1)))
    for k, it in enumerate(bulk):
        if k % stp == stp-1 and x1 and not bulk[k][1] in ('s_barrier',):
            for x in x1.pop(0): e.add(x)
        e.add(it)
    assert not x1
    def tmf(j, a, qb, t, flip=False):
        d = vr(ACC+16*a+4*qb, 4)
        cc = "0" if (j == 0 and t == 0) else d
        if flip and opt('BZ', 1): t = 1-t
        return f"{MF} {d}, {ar(c.Wreg(j,a,t),4)}, {ar(Xreg(j,qb,t),4)}, {cc}"
    for j in range(9):
        if j == 0: e.wait(("X0", 3), ("W0", 0))
        else: e.wait(("X", j), "ALL")
        if j in ((1, 3, 7) if opt('START', 0) else (1, 4, 7)): e("s_barrier")
        if Ctx.fine == "q": stamp(e, 14+j)
        grps = []
        XD = opt('XD', 3)
        if j == 1: grps += c.wq_dma(8)
        if j == 2: grps += c.wq_dma(9)
        if XD == 2:
            if j+2 < 10: grps += xn_ld(j+2)
        else:
            if j == 0: xq = [g for t in range(2, 10) for g in xn_ld(t)]
            n = 10 if j < 4 else 8
            grps += xq[:n]; xq = xq[n:]
        if j == 4: grps += kv("K", 0, "K0")
        if j == 5: grps += kv("K", 1, "K1")
        if j == 1: grps += [[("ds", "hr", f"ds_read_b64_tr_b16 v[{76+4*n+2*hj}:{76+4*n+2*hj+1}], v89 offset:{512*n+5120*hj}")] for n in range(3) for hj in range(2)]
        if 2 <= j <= 3: grps += hs[:1] if j == 2 else hs[1:]
        if j == 6: grps += kv("K", 2, ("D", -3))
        if j == 7: grps += wo_dma
        if j == 8: grps += kv("V", 0, ("D", -3)) + kv("K", 3, ("D", -2))
        rd = c.w_reads(j+1)
        if j == 0: rd = [("ds", ("W0", 2+k//4), it[2]) for k, it in enumerate(c.w_reads(0)[8:])] + rd
        gaps = [[] for _ in range(64)]
        for k, it in enumerate(rd): gaps[(k*56)//len(rd)].append(it)
        free = [n for n in range(62) if not gaps[n] or j == 0]
        busy = [n for n in range(62) if gaps[n]]
        for k, grp in enumerate(grps): gaps[free[(k*len(free))//max(len(grps),1)]] += grp
        if j in (4, 6):
            for k, it in enumerate(misc[:24] if j == 4 else misc[24:]): gaps[busy[k]].append(it)
        if j == 0:
            for a in (1, 2, 4): gaps[8*a-1].append(("wait", None, ("W0", {1: 1, 2: 3, 4: 7}[a])))
        for m in range(64):
            a, qb, t = m//8, (m//2) % 4, m % 2
            if a % 2 and opt('BZ', 1): qb = 3-qb
            e(tmf(j, a, qb, t, (m//2) % 2 == 1))
            for it in gaps[m]: e.add(it)
    e(f"s_mov_b32 s{S_SEL}, 0x07060302")
    e.wvm("K1")
    e.wait(("X", 9), "ALL"); e("s_barrier")
    stamp(e, 4)
    order = [("T",0),("T",1),("M",0),("T",2),("M",1),("T",3),("M",2),("S",0),("M",3),("S",1),("S",2),("S",3)]
    mf = []; start = {}
    for kind, qb in order:
        start[(kind, qb)] = len(mf)
        if kind == "T": mf += [tmf(9, a, qb, t, a % 2 == 1) for a in range(8) for t in range(2)]
        for kb in ([0] if kind == "M" else range(4) if kind == "S" else []):
            for ks in range(4):
                cc = vr(Sreg(kb,qb), 4) if ks else ("0" if kind == "M" else vr(V_M+4*qb, 4))
                mf.append(f"{MF} {vr(Sreg(kb,qb),4)}, {ar(Kreg(kb,ks),4)}, {vr(Qreg(qb,ks),4)}, {cc}")
    NG = len(mf)
    gaps = [[] for _ in range(NG+1)]
    for k, it in enumerate(k_reads(0, ("K", 0)) + k_reads(1, ("K", 1), kbase=K1B)): gaps[k].append(it)
    gaps[31].append(("wait", None, ("K", 0)))
    gaps[41] += [("wait", None, "ALL"), ("raw", "s_barrier")]
    if opt('START', 0):
        for k, g in enumerate(kv("K", 3, ("D", -2))): gaps[2*k] += g
    for k, g in enumerate(kv("V", 1, ("D", -2))): gaps[32+2*k] += g
    for k, g in enumerate(kv("K", 4, ("D", -1)) + kv("V", 2, ("D", -1))): gaps[43+4*k] += g
    for qb in range(4):
        for a in range(8):
            r = ACC+16*a+4*qb; q = Qreg(qb, a//2) + 2*(a & 1); g = start[("T", qb)]+2*a+1+8
            gaps[g].append(("raw", f"v_cvt_pk_bf16_f32 v{q}, v{r}, v{r+1}"))
            gaps[g+1].append(("raw", f"v_cvt_pk_bf16_f32 v{q+1}, v{r+2}, v{r+3}"))
        sx, m = Sreg(0,qb), V_M+4*qb; g = start[("M", qb)]+3+8
        for o, t in ((0, f"v_max3_f32 v{m}, v{sx}, v{sx+1}, v{sx+2}"), (1, f"v_max_f32 v{m}, v{m}, v{sx+3}"), (2, f"v_mov_b32 v{m+1}, v{m}"),
                     (4, f"v_permlane16_swap_b32 v{m+1}, v{m}"), (6, f"v_max_f32 v{m}, v{m}, v{m+1}"), (7, f"v_mov_b32 v{m+1}, v{m}"),
                     (9, f"v_permlane32_swap_b32 v{m+1}, v{m}"), (11, f"v_max_f32 v{m}, v{m}, v{m+1}"), (12, f"v_sub_f32 v{m}, 0, v{m}"),
                     (13, f"v_mov_b32 v{m+1}, v{m}"), (14, f"v_mov_b32 v{m+2}, v{m}"), (15, f"v_mov_b32 v{m+3}, v{m}")):
            gaps[g+o].append(("raw", t))
        assert g+15+2 < start[("S", qb)]
    ex = [(start[("S", qb)]+4*kb+3+8, 16*kb+4*qb+r) for qb in range(4) for kb in range(4) for r in range(4) if 16*kb+4*qb+r < 61]
    cv = []
    def cvt0(x):
        kb, qb, r = x//16, (x//4) % 4, x % 4
        return ("raw", ppack(Preg(0,qb,kb//2)+2*(kb%2)+r//2, V_S+x))
    for g in range(NG):
        room = 2-len(gaps[g])
        if room == 2 and ex and ex[0][0] <= g and len(cv) < 2:
            x = ex.pop(0)[1]
            gaps[g].append(("raw", f"v_exp_f32 v{V_S+x}, v{V_S+x}"))
            if x % 2: cv.append((g+1, x-1))
        else:
            while room > 0 and cv and cv[0][0] <= g:
                gaps[g].append(cvt0(cv.pop(0)[1])); room -= 1
    assert len(ex) >= 9
    for _, x in ex:
        gaps[NG].append(("raw", f"v_exp_f32 v{V_S+x}, v{V_S+x}"))
        if x % 2: cv.append((0, x-1))
    gaps[NG] += [cvt0(x) for _, x in cv]
    for g in range(NG+1):
        if g < NG: e(mf[g])
        for it in gaps[g]: e.add(it)
    e.wvm(("D", -3)); e("s_barrier")

class G1:
    S_FB, S_DT, S_A, S_B, S_T, S_LB = 46, 47, 48, 49, 50, 53
    V_WD, V_WA, V_L16, V_B1 = 14, 2, 15, 18
    @staticmethod
    def acc(fb, db):
        k = 5*fb+db
        return V_S+4*k if k < 16 else V_M+4*(k-16)
    @staticmethod
    def H(p, db, t):
        s, k = p % 3, 2*db+t
        if s == 0: return ar(A_K+4*k, 4)
        if s == 1: return ar(A_K+40+4*k, 4) if k < 6 else vr(V_Q+4*(k-6), 4)
        return ar(A_V+4*k, 4)
    @staticmethod
    def W(p, fb, t): return V_P + 32*(p % 2) + 8*fb + 4*t
    V_WH = 6
    @staticmethod
    def reg(p): return LDS_SP if p == 0 else 32768*(p % 3)
    @classmethod
    def setup1(c):
        T = V_T+3
        return R(f"""s_and_b32 s{c.S_FB}, s{S_UG}, 31
        s_lshr_b32 s{c.S_DT}, s{S_UG}, 5
        s_lshl_b32 s{c.S_LB}, s{S_WAVE}, 13
        s_mul_i32 s{c.S_A}, s{S_WAVE}, {512*3456}
        s_lshl_b32 s{c.S_T+1}, s{c.S_FB}, 7
        s_add_u32 s{c.S_A}, s{c.S_A}, s{c.S_T+1}
        s_mul_i32 s{c.S_B}, s{c.S_DT}, {5*HPI}
        s_lshl_b32 s{c.S_T+1}, s{S_WAVE}, 14
        s_add_u32 s{c.S_B}, s{c.S_B}, s{c.S_T+1}
        v_lshrrev_b32 v{T}, 3, v{V_LANE}
        v_and_b32 v{T+1}, 7, v{V_LANE}
        v_and_b32 v{T+2}, 6, v{T}
        v_xor_b32 v{T+1}, v{T+1}, v{T+2}
        v_mul_u32_u24 v{T}, 3456, v{T}
        v_lshl_add_u32 v{c.V_WD}, v{T+1}, 4, v{T}
        v_lshlrev_b32 v{c.V_L16}, 4, v{V_LANE}""")
    @classmethod
    def setup2(c):
        T = V_T+3
        L = f"""v_lshrrev_b32 v{T}, 2, v{V_LANE}
        v_and_b32 v{T+2}, 6, v{T}
        v_bfe_u32 v{T+1}, v{V_LANE}, 1, 1
        v_xor_b32 v{T+1}, v{T+1}, v{T+2}
        v_lshlrev_b32 v{T+1}, 4, v{T+1}
        v_lshl_add_u32 v{T+1}, v{T}, 7, v{T+1}
        v_and_b32 v{T+2}, 1, v{V_LANE}
        v_lshl_add_u32 v{T+1}, v{T+2}, 3, v{T+1}
        v_add_u32 v{T+1}, s{c.S_LB}, v{T+1}"""
        for fb in range(4):
            L += f"""
            s_add_u32 s{c.S_T}, s{S_WAVE}, {fb}
            s_and_b32 s{c.S_T}, s{c.S_T}, 3
            s_lshl_b32 s{c.S_T}, s{c.S_T}, 5
            v_xor_b32 v{c.V_WA+fb}, s{c.S_T}, v{T+1}"""
        L += f"""
        v_lshrrev_b32 v{T}, 4, v{V_LANE}
        v_lshlrev_b32 v{T}, 3, v{T}
        s_lshl_b32 s{c.S_T}, s{c.S_FB}, 2
        s_add_u32 s{c.S_T}, s{c.S_T}, s{S_WAVE}
        s_lshl_b32 s{c.S_T}, s{c.S_T}, 5"""
        r = R(L)
        r.append(("vm", "b1", f"buffer_load_dwordx2 v[{c.V_B1}:{c.V_B1+1}], v{T}, s[{S_B1}:{S_B1+3}], s{c.S_T} offen"))
        return r
    @classmethod
    def sethi(c, off): return [("raw", f"v_add_u32 v{c.V_WH+fb}, {off}, v{c.V_WA+fb}") for fb in range(4)]
    @classmethod
    def wl(c, p):
        r = []
        for n in range(8):
            g = R(f"s_add_u32 m0, s{c.S_LB}, {c.reg(p)+1024*n}") if n % 4 == 0 else []
            g += [("raw", f"s_add_u32 s{c.S_T+1}, s{c.S_A}, {(64*p+8*n)*3456-1024*(n%4)}"),
                  ("vm", ("w", p), f"buffer_load_dwordx4 v{c.V_WD}, s[{S_W1}:{S_W1+3}], s{c.S_T+1} offen offset:{1024*(n%4)} lds")]
            r.append(g)
        return r
    @classmethod
    def hl(c, p):
        r = []
        for db in range(5):
            r.append([("raw", f"s_add_u32 s{c.S_T+2}, s{c.S_B}, {HT_OFF+db*HPI+p*2048}"),
                      ("vm", ("h", p), f"buffer_load_dwordx4 {c.H(p,db,0)}, v{c.V_L16}, s[{S_WS}:{S_WS+3}], s{c.S_T+2} offen{SC}")])
            r.append([("vm", ("h", p), f"buffer_load_dwordx4 {c.H(p,db,1)}, v{c.V_L16}, s[{S_WS}:{S_WS+3}], s{c.S_T+2} offen offset:1024{SC}")])
        return r
    @classmethod
    def reads(c, p):
        va, o = (c.V_WA, c.reg(p)) if c.reg(p) < 65536 else (c.V_WH, 0)
        return [("ds", ("r", p), f"ds_read_b64_tr_b16 {vr(c.W(p,fb,t)+2*hj,2)}, v{va+fb} offset:{o+2048*(2*t+hj)}")
                for fb in range(4) for t in range(2) for hj in range(2)]

def o_frag_items(k, tmp, pkr, va):
    qb, t = k//4, k % 4
    r = [("raw", f"v_accvgpr_read_b32 v{tmp+j}, a{Oreg(2*t+j//4,qb)+j%4}") for j in range(8)]
    r += [("raw", f"v_mul_f32 v{tmp+j}, v{tmp+j}, v{V_L+4*qb}") for j in range(8)]
    r += [("raw", f"v_cvt_pk_bf16_f32 v{pkr+j}, v{tmp+2*j}, v{tmp+2*j+1}") for j in range(4)]
    r.append(("vm", "o", f"buffer_store_dwordx4 {vr(pkr,4)}, v{va}, s[{S_WS}:{S_WS+3}], s{S_OST} offen offset:{1024*t}{SC}"))
    if t == 3: r.append(("raw", f"s_add_u32 s{S_OST}, s{S_OST}, 0x20000"))
    return r

def rowsum_items():
    ch = []
    for qb in range(4):
        l = V_L+4*qb
        ch.append([f"v_add_f32 v{l}, v{l}, v{l+1}", f"v_mov_b32 v{l+1}, v{l}", f"v_permlane16_swap_b32 v{l+1}, v{l}", f"v_add_f32 v{l}, v{l}, v{l+1}",
                   f"v_mov_b32 v{l+1}, v{l}", f"v_permlane32_swap_b32 v{l+1}, v{l}", f"v_add_f32 v{l}, v{l}, v{l+1}"])
    r = [("raw", ch[qb][k]) for k in range(7) for qb in range(4)]
    L = V_L
    r += R(f"""s_mov_b32 s56, {fhex(2.0**40)}
    v_cmp_nge_f32 s[54:55], s56, v{L}
    v_cmp_nge_f32 vcc, s56, v{L+4}
    s_or_b64 s[54:55], s[54:55], vcc
    v_cmp_nge_f32 vcc, s56, v{L+8}
    s_or_b64 s[54:55], s[54:55], vcc
    v_cmp_nge_f32 vcc, s56, v{L+12}
    s_or_b64 s[54:55], s[54:55], vcc
    v_rcp_f32 v{L}, v{L}
    s_or_b32 s54, s54, s55
    v_rcp_f32 v{L+4}, v{L+4}
    s_lshl_b32 s55, s{S_WAVE}, 2
    v_rcp_f32 v{L+8}, v{L+8}
    s_add_u32 s55, s55, {LDS_FLAG}
    v_rcp_f32 v{L+12}, v{L+12}
    v_mov_b32 v{L+1}, s55
    v_mov_b32 v{L+2}, s54
    v_and_b32 v{V_IDX}, 48, v{V_LANE}""")
    r.append(("ds", "flw", f"ds_write_b32 v{L+1}, v{L+2}"))
    return r
def linv_items():
    return [("ds", "li", f"ds_bpermute_b32 v{V_L+4*qb+r}, v{V_IDX}, v{V_L+4*qb} offset:{4*r}") for qb in range(4) for r in (3, 2, 1, 0)]
def o_sel(e, st):
    SEL, TMP = 18, 48
    e(f"""v_and_b32 v{TMP}, 15, v{V_LANE}
    v_lshrrev_b32 v{TMP+1}, 4, v{V_LANE}
    v_lshlrev_b32 v{TMP+1}, 2, v{TMP+1}
    v_sub_u32 v{TMP}, v{TMP}, v{TMP+1}
    v_mov_b32 v{TMP+2}, 0x3f80
    v_mov_b32 v{TMP+3}, 0x3f800000
    v_cmp_eq_u32 vcc, 0, v{TMP}
    v_mov_b32 v{SEL}, 0
    v_mov_b32 v{SEL+1}, 0
    v_cndmask_b32 v{SEL+2}, 0, v{TMP+2}, vcc
    v_cmp_eq_u32 vcc, 1, v{TMP}
    v_mov_b32 v{SEL+4}, 0
    v_mov_b32 v{SEL+5}, 0
    v_cndmask_b32 v{SEL+2}, v{SEL+2}, v{TMP+3}, vcc
    v_cmp_eq_u32 vcc, 2, v{TMP}
    s_add_u32 s{st}, s{S_OST}, {OP}
    s_add_u32 s{st+1}, s{S_OST}, {2*OP}
    v_cndmask_b32 v{SEL+3}, 0, v{TMP+2}, vcc
    v_cmp_eq_u32 vcc, 3, v{TMP}
    s_add_u32 s{S_PF}, s{S_OST}, {3*OP}
    s_nop 0
    v_cndmask_b32 v{SEL+3}, v{SEL+3}, v{TMP+3}, vcc""")
def o_block(e, va, st):
    SEL, PKA, TMP, DD = 18, 24, 48, 64
    so = [S_OST, st, st+1, S_PF]
    def front(u):
        t, qp = (u//2, u % 2) if opt('UO', 0) == 0 else (u % 4, u//4)
        for h in range(2):
            for q in range(2):
                o = Oreg(2*t+h, 2*qp+q); x = TMP+8*h+4*q
                for r in range(4): e(f"v_accvgpr_read_b32 v{x+r}, a{o+r}")
        if u: back(u-1, 0)
        for h in range(2):
            for q in range(2):
                x = TMP+8*h+4*q; l = V_L+4*(2*qp+q)
                for r in range(4): e(f"v_mul_f32 v{x+r}, v{x+r}, v{l+r}")
        for j in range(8): e(f"v_cvt_pk_bf16_f32 v{PKA+j}, v{TMP+2*j}, v{TMP+2*j+1}")
        if u: back(u-1, 1)
        else: e("s_nop 0")
        for q in range(2):
            for h in range(2):
                e(f"{MF} {vr(DD+16*(u%2)+8*q+4*h,4)}, {vr(PKA+4*h,4)}, {vr(SEL+2-2*q,4)}, 0")
    def back(u, q):
        t, qp = (u//2, u % 2) if opt('UO', 0) == 0 else (u % 4, u//4)
        x = DD+16*(u % 2)+8*q
        for j in range(4): e(f"v_cvt_pk_bf16_f32 v{x+j}, v{x+2*j}, v{x+2*j+1}")
        e.vm("o", f"buffer_store_dwordx4 {vr(x,4)}, v{va}, s[{S_WS}:{S_WS+3}], s{so[2*qp+q]} offen offset:{1024*t}{SC}")
    for u in range(8): front(u)
    e("s_nop 7")
    back(7, 0); back(7, 1)
def flag_read(t):
    return R(f"v_mov_b32 v{t}, {LDS_FLAG}") + [("ds", "fl", f"ds_read_b128 {vr(t+1,4)}, v{t}")]
def flag_eval(t):
    return [("wait", None, "fl")] + R(f"v_or3_b32 v{t+1}, v{t+1}, v{t+2}, v{t+3}\nv_or_b32 v{t+1}, v{t+1}, v{t+4}\ns_nop 0\nv_readfirstlane_b32 s{S_REDO}, v{t+1}\ns_nop 3")

S_REDO, S_LATE = 55, 54
def tail_gemm1(e):
    c = G1
    VN = bool(opt('VN', 1))
    w = c.wl(1)+c.wl(2)
    late30 = list(zip(range(3, 64, 4), w))
    h = c.hl(0)+c.hl(1)+c.hl(2)
    ex30 = list(zip(range(67, 131, 4), h[:16]))
    su = c.setup2()
    late30 += [(65+4*(k//2), [it]) for k, it in enumerate(su)]
    attn_iter(e, 10, dma="nok", extra=ex30, endbar="bar", late=late30, vnext=VN)
    ex31 = [(65+4*k, g) for k, g in enumerate(h[16:20])] + [(81+4*k, g) for k, g in enumerate(h[20:])]
    late31 = [(64+k, [it]) for k, it in enumerate(c.sethi(LDS_SP))] + [(70, [("wait", ("w", 0), None)])] + [(71+4*k if k < 15 else 129, [it]) for k, it in enumerate(c.reads(0))]
    B = c.V_B1
    ob = Em()
    for it in rowsum_items() + linv_items(): ob.add(it)
    ob.wvm("b1")
    ob(f"v_lshlrev_b32 v10, 16, v{B}\nv_and_b32 v11, 0xffff0000, v{B}\nv_lshlrev_b32 v12, 16, v{B+1}\nv_and_b32 v13, 0xffff0000, v{B+1}")
    o_sel(ob, 76)
    ob.wds("li")
    o_block(ob, c.V_L16, 76)
    oi = ob.items
    used = {}
    for pos, g in ex31 + late31: used[pos] = used.get(pos, 0) + 1
    for g in range(73, 132):
        n = opt('ON', 3) - used.get(g, 0)
        late31.append((g, oi[:n])); oi = oi[n:]
    attn_iter(e, 11, do_qk=False, dma=False, extra=ex31, late=late31, sm_first=True, vpre=VN)
    stamp(e, 7)
    assert not any(it[0] == "wait" for it in oi)
    oi = c.sethi(65536) + oi
    ocut = [0, (len(oi)*opt('OC', 50))//100, (len(oi)*opt('OD', 100))//100, len(oi)]
    TMP = V_T+3
    PSIG = opt('PSIG', 3)
    PC = opt('PC', 6)
    fsu = FS.setup(c.S_T, 56, 76)
    sq = FS.direct0() + FS.dma(1) + FS.dma(2)
    for p in range(8):
        if p == PC:
            e.wvm("poll")
            e(f"v_cmp_ne_u32 vcc, s{S_TAG}, v{FS.V_FD}\ns_nop 1\ns_cmp_lg_u64 vcc, 0\ns_cselect_b32 s{S_LATE}, {WS_SZ}, 0\nv_add_u32 v{FS.V_SD}, s{S_LATE}, v{FS.V_SD}")
        if p < 7: e.wvm(("w", p+1))
        e.wvm(("h", p))
        if p == PSIG: e.wvm("o")
        e.wds("ALL" if p == 0 else ("r", p))
        if Ctx.fine == "g": stamp(e, 14+p)
        gaps = [[] for _ in range(40)]
        if p == PSIG: gaps[0] += R("s_barrier") + flag_read(23)
        if p == 6: gaps[0] += R("s_barrier")
        if p < 7:
            for k, it in enumerate(c.reads(p+1)): gaps[2*k].append(it)
        if p == PC-1: gaps[opt('PG', 0)] += poll_ld(FS.V_FD, FS.V_FA)
        lds_ = (c.hl(p+2) if 1 <= p <= 5 else []) + (c.wl(p+3) if p <= 4 else [])
        for k, grp in enumerate(lds_): gaps[2*k+1 if len(lds_) > 10 else 4*k+1] += grp
        if p < 3:
            part = oi[ocut[p]:ocut[p+1]]
            for k, it in enumerate(part): gaps[(k*40)//len(part)].append(it)
        if p == PSIG:
            l0 = lab("nosig")
            gaps[6] += flag_eval(23) + R(f"s_cmp_lg_u32 s{S_REDO}, 0\ns_cbranch_scc1 {l0}") + signal(C_O, S_SLOT, TMP) + R(f"{l0}:")
        if p in (2, PC-2):
            part = fsu[0] if p == 2 else fsu[1]
            for k, g in enumerate(part): gaps[(k*40)//len(part)] += g
        if p >= PC:
            n = -(-36//(8-PC)) if not opt('SQ', '') else int(opt('SQ', '').split('/')[p-PC]); part, sq = sq[:n], sq[n:]
            for k, g in enumerate(part):
                pos = 2*((k*19)//n) + (2 if p == 7 else 1) + (0 if p == 7 else 2) if n <= 19 else 2+(k*37)//n
                pos = min(pos, 39)
                if len(g) > 1 and g[1][1] == "s_nop 0":
                    gaps[pos-1].append(g[0]); g = g[2:]
                gaps[pos] += g
        if p == 6:
            pre = R(f"v_add_u32 v10, s{c.S_LB}, v{c.V_L16}")
            for fb in range(1, 4):
                pre += R(f"s_add_u32 s{c.S_T}, s{S_WAVE}, {4-fb}\ns_and_b32 s{c.S_T}, s{c.S_T}, 3\ns_lshl_b32 s{c.S_T}, s{c.S_T}, 13\nv_add_u32 v{10+fb}, s{c.S_T}, v{c.V_L16}")
            U = FS.S_US; t = c.S_T
            pre += R(f"""s_mul_i32 s{U}, s{c.S_DT}, {5*54*1024}
            s_lshl_b32 s{t}, s{c.S_FB}, 11
            s_add_u32 s{U}, s{U}, s{t}
            s_add_u32 s{U}, s{U}, {U_OFF}""")
            for k, it in enumerate(pre): gaps[2+(k*38)//len(pre)].append(it)
        for m in range(40):
            fb, db, t = m//10, (m//2) % 5, m % 2
            if p == 7: fb = 3-fb
            elif fb % 2 and opt('BZ', 1): db = 4-db
            d = vr(c.acc(fb,db), 4)
            cc = ("v[10:13]" if fb == 0 else "0") if (p == 0 and t == 0) else d
            if (m//2) % 2 and opt('BZ', 1): t = 1-t
            e(f"{MF} {d}, {vr(c.W(p,fb,t),4)}, {c.H(p,db,t)}, {cc}")
            if p == 7 and m >= 11 and m % 2 == 1:
                k = (m-11)//2; fb2, db2 = 3-k//5, k % 5
                kk = 5*(fb2-1)+db2
                e.ds("gw", f"ds_write_b128 v10, {vr(c.acc(fb2,db2),4)} offset:{32768*(kk//8)+1024*(kk%8)}")
            for it in gaps[m]: e.add(it)
    stamp(e, 8)
    e(f"s_cmp_lg_u32 s{S_REDO}, 0\ns_cbranch_scc1 K_redo_u\ns_cmp_lg_u32 s{S_LATE}, 0\ns_cbranch_scc1 K_late")

LDS_OWN = 4*36864
def g1_red_reads():
    return [("ds", "gr", f"ds_read_b128 {vr(V_S+20+4*kk,4)}, v{11+kk//5} offset:{32768*(kk//8)+1024*(kk%8)}") for kk in range(15)]
def gelu_items(va, st):
    X = V_S; Z = X+20; K0, K1, A = Z+30, Z+31, Z+32
    r = [("raw", f"v_add_f32 v{X+k}, v{X+k}, v{X+20*j+k}") for j in range(1, 4) for k in range(20)]
    r += R(f"""v_mov_b32 v{K0}, {fhex(-2*math.log2(math.e)*math.sqrt(2/math.pi))}
    v_mov_b32 v{K1}, {fhex(-2*math.log2(math.e)*math.sqrt(2/math.pi)*0.044715)}
    s_lshr_b32 s{st}, s{S_WAVE}, 1
    s_lshl_b32 s{st}, s{st}, 10
    v_add_u32 v{A}, s{st}, v{va}
    s_and_b32 s{st}, s{S_WAVE}, 1
    s_lshl_b32 s{st}, s{st}, 3
    s_add_u32 s{st}, s{st}, {LDS_OWN}
    v_add_u32 v{A}, s{st}, v{A}""")
    st1 = lambda k: [f"v_mul_f32 v{Z+k}, v{X+k}, v{X+k}", f"v_fma_f32 v{Z+k}, v{Z+k}, v{K1}, v{K0}", f"v_mul_f32 v{Z+k}, v{Z+k}, v{X+k}"]
    for k in range(-1, 24):
        L = []
        if 0 <= k+1 < 20: L += st1(k+1)
        if 0 <= k < 20: L.append(f"v_exp_f32 v{Z+k}, v{Z+k}")
        if 0 <= k-3 < 20: L.append(f"v_mul_f32 v{X+k-3}, v{X+k-3}, v{Z+k-3}")
        if 0 <= k-1 < 20: L.append(f"v_add_f32 v{Z+k-1}, 1.0, v{Z+k-1}")
        if 0 <= k-4 < 20 and (k-4) % 2: L.append(f"v_cvt_pk_bf16_f32 v{Z+20+(k-4)//2}, v{X+k-5}, v{X+k-4}")
        if 0 <= k-2 < 20: L.append(f"v_rcp_f32 v{Z+k-2}, v{Z+k-2}")
        if k >= 19: L.append("s_nop 0")
        r += [("raw", t) for t in L]
    r += [("ds", "uw", f"ds_write_b64 v{A}, {vr(Z+20+2*db,2)} offset:{2048*db}") for db in range(5)]
    return r
def u_out(va, st):
    X = V_S; A = X+52
    rd = R(f"s_lshl_b32 s{st}, s{S_WAVE}, 10\ns_add_u32 s{st}, s{st}, {LDS_OWN}\nv_add_u32 v{A}, s{st}, v{va}")
    rd = [rd] + [[("ds", "ur", f"ds_read_b128 {vr(X+4*n,4)}, v{A} offset:{4096*n}")] for n in range(3)]
    U = FS.S_US
    sto = [R(f"s_lshr_b32 s{st}, s{S_WAVE}, 1\ns_mul_i32 s{st}, s{st}, {54*1024}\ns_add_u32 s{U}, s{U}, s{st}"),
           R(f"s_and_b32 s{st}, s{S_WAVE}, 1\ns_lshl_b32 s{st}, s{st}, 10\ns_add_u32 s{U}, s{U}, s{st}"), [("wait", None, "ur")]]
    for n in range(3):
        g = [("vm", "us", f"buffer_store_dwordx4 {vr(X+4*n,4)}, v{va}, s[{S_WS}:{S_WS+3}], s{U} offen{SC}")]
        if n == 0: g += R(f"s_add_u32 s{U}, s{U}, {2*54*1024}")
        if n == 1: g += R(f"s_add_u32 s{U}, s{U}, {2*54*1024}\ns_cmp_ge_u32 s{S_WAVE}, 2\ns_cselect_b32 s{U}, {WS_SZ}, s{U}")
        sto.append(g)
    return rd, sto

def tail_plain(e):
    attn_iter(e, 10, dma="nok", endbar="bar")
    attn_iter(e, 11, do_qk=False, dma=False, late=[(76+k, [it]) for k, it in enumerate(rowsum_items())] + [(123+k//2, [it]) for k, it in enumerate(linv_items())], sm_first=True)
    stamp(e, 7)
    o_sel(e, 76)
    e.wds("li")
    o_block(e, G1.V_L16, 76)
    for part in FS.setup(50, 51, 52):
        for g in part:
            for it in g: e.add(it)
    e("s_waitcnt vmcnt(0) lgkmcnt(0)\ns_barrier")
    for it in flag_read(19) + flag_eval(19): e.add(it)
    e(f"""s_cmp_lg_u32 s{S_PASS}, 0
    s_cbranch_scc1 K_plain_done
    s_cmp_lg_u32 s{S_REDO}, 0
    s_cbranch_scc1 K_redo
    K_plain_done:
    s_barrier""")
    for it in signal(C_O, S_SLOT, V_T+1): e.add(it)
    e(f"s_mov_b32 s{FS.S_US}, {WS_SZ}")
    for k in range(11, 14): e(f"v_mov_b32 v{k}, v{G1.V_L16}")
    if opt('PW', 0):
        e(f"v_lshlrev_b32 v20, 7, v{V_LANE}\ns_lshl_b32 s52, s{S_WAVE}, 13\ns_add_u32 s51, s51, s52\ns_add_u32 s51, s51, {8*OP}")
        for k in range(10): e(f"buffer_load_dword v21, v20, s[{S_WS}:{S_WS+3}], s51 offen\ns_add_u32 s51, s51, 0x20000")
    if opt('PW', 0) >= 2:
        e(f"""v_and_b32 v20, 7, v{V_LANE}
        v_lshlrev_b32 v20, 8, v20
        v_lshrrev_b32 v22, 3, v{V_LANE}
        v_lshl_add_u32 v20, v22, 12, v20
        s_and_b32 s51, s{S_QB}, 3
        s_lshl_b32 s51, s51, 2
        s_add_u32 s51, s51, s{S_WAVE}
        s_mul_i32 s51, s51, {108*4096}
        s_and_b32 s52, s{FS.S_RB}, 17
        s_lshl_b32 s52, s52, 7
        s_add_u32 s51, s51, s52""")
        for k in range(14): e(f"buffer_load_dword v21, v20, s[{S_W2}:{S_W2+3}], s51 offen\ns_add_u32 s51, s51, {8*4096}")
    if opt('PP1', 8):
        l0 = lab("park")
        e(f"s_cmp_lg_u32 s{S_WAVE}, 0\ns_cbranch_scc1 {l0}")
        spin(e, FS.V_FD, FS.V_FA, opt('PP1', 8))
        e(f"{l0}:\ns_barrier")
    stamp(e, 8)

class FS:
    S_SO, S_M0, S_G, S_KQ = 89, 98, 99, 100
    V_SR, S_DO, S_DW = 240, 59, 77
    V_SD, V_FA, V_FD = 244, 245, 246
    STG = 36864
    S_US = 79
    S_RB, S_CT, S_XA = 41, 42, 43
    XR, V_B2, V_XO = 240, 250, 251
    @staticmethod
    def slot(s): return 3 - (s-1) % 4
    @staticmethod
    def SA(s, db, t): return ar(72*(s % 2)+8*db+4*t, 4)
    @staticmethod
    def SB(s, sb, t): return ar(72*(s % 2)+40+8*sb+4*t, 4)
    @classmethod
    def setup(c, t0, t1, t2):
        RM = opt('RM', 0)
        L = f"""s_lshr_b32 s{c.S_KQ}, s{S_XCD}, 1
        s_and_b32 s{t0}, s{S_XCD}, 1
        s_lshl_b32 s{t0}, s{t0}, 5
        s_lshr_b32 s{t1}, s2, 3
        s_add_u32 s{t0}, s{t0}, s{t1}
        s_lshl_b32 s{c.S_G}, s{t0}, 2
        s_add_u32 s{c.S_G}, s{c.S_G}, s{c.S_KQ}
        s_lshr_b32 s{t1}, s{t0}, {4 if RM else 3}
        s_lshl_b32 s{t1}, s{t1}, 5
        s_lshl_b32 s{t2}, s{c.S_KQ}, 1
        s_add_u32 s{t1}, s{t1}, s{t2}
        s_lshl_b32 s{t1}, s{t1}, 7
        s_add_u32 s{t1}, s{t1}, {FL_OFF+C_O*32768}
        v_bfe_u32 v{c.V_FA}, v{V_LANE}, 1, 2
        v_and_b32 v{c.V_SD}, 1, v{V_LANE}
        v_lshl_add_u32 v{c.V_FA}, v{c.V_FA}, 3, v{c.V_SD}
        v_and_b32 v{c.V_SD}, {8 if RM else 0}, v{V_LANE}
        v_lshl_add_u32 v{c.V_FA}, v{c.V_SD}, 4, v{c.V_FA}
        v_lshlrev_b32 v{c.V_FA}, 7, v{c.V_FA}
        v_add_u32 v{c.V_FA}, s{t1}, v{c.V_FA}
        v_lshlrev_b32 v{c.V_SD}, 4, v{V_LANE}
        s_lshr_b32 s{c.S_RB}, s{t0}, 2
        s_lshl_b32 s{c.S_RB}, s{c.S_RB}, {0 if RM else 1}
        s_lshr_b32 s{t2}, s{c.S_KQ}, 1
        s_lshl_b32 s{t2}, s{t2}, {4 if RM else 0}
        s_add_u32 s{c.S_RB}, s{c.S_RB}, s{t2}
        s_and_b32 s{c.S_CT}, s{t0}, 3
        s_and_b32 s{t2}, s{c.S_KQ}, 1
        s_lshl_b32 s{t2}, s{t2}, 2
        s_add_u32 s{c.S_CT}, s{c.S_CT}, s{t2}
        v_and_b32 v{c.V_B2}, 15, v{V_LANE}
        v_lshrrev_b32 v252, 4, v{V_LANE}
        v_mul_u32_u24 v{c.V_XO}, 1280, v{c.V_B2}
        v_lshl_add_u32 v{c.V_XO}, v252, 3, v{c.V_XO}
        s_lshl_b32 s{c.S_XA}, s{c.S_RB}, 2
        s_add_u32 s{c.S_XA}, s{c.S_XA}, s{S_WAVE}
        s_lshl_b32 s{t2}, s{c.S_XA}, 4
        v_add_lshl_u32 v252, v{c.V_B2}, s{t2}, 1
        s_mul_i32 s{c.S_XA}, s{c.S_XA}, {16*1280}
        s_mul_i32 s{t2}, s{c.S_CT}, 160
        s_add_u32 s{c.S_XA}, s{c.S_XA}, s{t2}
        s_lshl_b32 s{t2}, s{c.S_KQ}, 15
        s_and_b32 s{t1}, s{t0}, 3
        s_mul_i32 s{t1}, s{t1}, {5*OP}
        s_add_u32 s{t1}, s{t1}, s{t2}
        s_add_u32 s{t1}, s{t1}, {(WOF_OFF-(68 if RM else 8)*OP) & 0xffffffff}
        s_lshr_b32 s{t0}, s{t0}, 2
        s_mul_i32 s{t0}, s{t0}, {(4 if RM else 8)*OP}
        s_add_u32 s{t0}, s{t0}, s{t2}
        s_add_u32 s{t0}, s{t0}, {OF_OFF}
        s_mul_i32 s{c.S_M0}, s{S_WAVE}, 9"""
        p0 = [[it] for it in R(L)]
        p1 = []
        for n in range(9):
            so = c.S_SO+n
            p1 += [R(f"s_add_u32 s{t2}, s{c.S_M0}, {n}"), R(f"s_cmp_lt_u32 s{t2}, 16\ns_cselect_b32 s{so}, s{t0}, s{t1}"),
                   R(f"s_cmp_ge_u32 s{t2}, 8\ns_cselect_b32 s101, {60*OP if RM else 0}, 0\ns_add_u32 s{so}, s{so}, s101"),
                   R(f"s_cmp_ge_u32 s{t2}, 26\ns_cselect_b32 s101, {15*OP}, 0\ns_add_u32 s{so}, s{so}, s101"),
                   R(f"s_and_b32 s101, s{t2}, 1\ns_lshl_b32 s101, s101, 10"), R(f"s_add_u32 s{so}, s{so}, s101\ns_sub_u32 s{so}, s{so}, {1024*(n%4)}"),
                   R(f"s_lshr_b32 s{t2}, s{t2}, 1\ns_mul_i32 s{t2}, s{t2}, {OP}\ns_add_u32 s{so}, s{so}, s{t2}")]
        p1.append(R(f"s_lshl_b32 s{c.S_M0}, s{c.S_M0}, 10"))
        p1 += [[it] for it in R(f"""s_lshr_b32 s{t2}, s{S_WAVE}, 1
        s_mul_i32 s101, s{t2}, {(64 if RM else 4)*OP}
        s_add_u32 s{c.S_DO}, s{t0}, s101
        s_lshl_b32 s{t2}, s{t2}, 13
        v_add_u32 v{c.V_SR}, s{t2}, v{c.V_SD}
        s_and_b32 s{t2}, s{S_WAVE}, 1
        s_mul_i32 s101, s{t2}, {20*OP}
        s_add_u32 s101, s101, {(68 if RM else 8)*OP}
        s_add_u32 s{c.S_DW}, s{t1}, s101
        s_mul_i32 s{t2}, s{t2}, 5
        s_add_u32 s{t2}, s{t2}, 8
        s_lshl_b32 s{t2}, s{t2}, 11
        v_add_u32 v{c.V_SR+1}, s{t2}, v{c.V_SD}
        v_add_u32 v{c.V_SR+2}, {2*c.STG}, v{c.V_SR}
        v_add_u32 v{c.V_SR+3}, {2*c.STG}, v{c.V_SR+1}""")] + [[it] for it in c.rot(t2)]
        return p0, p1
    @classmethod
    def rot(c, t):
        m, sh = opt('ROT', 3), opt('RSH', 1)
        return R(f"""s_lshr_b32 s{t}, s2, 3
        s_lshr_b32 s101, s2, 5
        s_mul_i32 s{t}, s{t}, {opt('RMU', 1)}
        s_add_u32 s{t}, s{t}, s101
        s_and_b32 s{t}, s{t}, {m}
        s_lshl_b32 s{t}, s{t}, {11+sh}
        v_add_u32 v{c.V_SD}, s{t}, v{c.V_SD}""")
    @classmethod
    def direct0(c, tag=None):
        r = []
        for k in (0, 4, 5, 6, 7, 8, 1, 2, 3):
            base, d = (c.S_DO, lambda t: c.SB(0, k, t)) if k < 4 else (c.S_DW, lambda t: c.SA(0, k-4, t))
            for t in range(2):
                g = R(f"s_add_u32 s101, s{base}, {OP*(k if k < 4 else k-4)}") if t == 0 else []
                x = f"buffer_load_dwordx4 {d(t)}, v{c.V_SD}, s[{S_WS}:{S_WS+3}], s101 offen offset:{1024*t}{SC}"
                r.append(g + [("vm", ("sd", 0), x) if tag is None else ("raw", x)])
        r[-1] += R(f"v_xor_b32 v{c.V_SD}, 2048, v{c.V_SD}")
        return r
    @classmethod
    def xloads(c):
        r = [("vm", "e", f"buffer_load_ushort v{c.V_B2}, v252, s[{S_B2}:{S_B2+3}], 0 offen")]
        return r + [("vm", "e", f"buffer_load_dwordx2 {vr(c.XR+2*db,2)}, v{c.V_XO}, s[{S_X}:{S_X+3}], s{c.S_XA} offen offset:{32*db}") for db in range(5)]
    @classmethod
    def dma(c, s, tag=None):
        r = []
        for n in range(9):
            g = R(f"s_add_u32 m0, s{c.S_M0}, {c.STG*c.slot(s)+1024*n}\ns_nop 0") if n % 4 == 0 else []
            t = f"buffer_load_dwordx4 v{c.V_SD}, s[{S_WS}:{S_WS+3}], s{c.S_SO+n} offen offset:{1024*(n%4)}{SC} lds"
            g.append(("vm", ("sd", s), t) if tag is None else ("raw", t))
            if n == 8: g += R(f"v_xor_b32 v{c.V_SD}, {2048*(s ^ (s+1))}, v{c.V_SD}")
            r.append(g)
        return r

def final(e):
    c = FS
    S_RB, S_CT, S_A, S_L0, S_B, S_T = c.S_RB, c.S_CT, c.S_XA, 40, 76, 46
    S_YA, S_YB, S_PO, S_PI = 52, 53, 54, 55
    V_L16, V_WD, V_WA, V_WH, V_L8, V_SR, VT = G1.V_L16, 3, 4, 8, 12, c.V_SR, 216
    V_XO, V_B2, XR = c.V_XO, c.V_B2, c.XR
    V_PA, V_PD = 221, 222
    ACS, ACY = 16, 96
    WSR = f"s[{S_WS}:{S_WS+3}]"
    e("K_final:")
    stamp(e, 9)
    SA, SB = c.SA, c.SB
    def sreads(s):
        sl = c.slot(s); hi = 2*(sl//2); o = c.STG*(sl % 2)
        r = []
        for k in range(5):
            for t in range(2):
                if k < 4: r.append(("ds", ("sr", s), f"ds_read_b128 {SB(s,k,t)}, v{V_SR+hi} offset:{o+2048*k+1024*t}"))
                r.append(("ds", ("sr", s), f"ds_read_b128 {SA(s,k,t)}, v{V_SR+1+hi} offset:{o+2048*k+1024*t}"))
        return r
    YB = [c.STG*c.slot(12+y) for y in range(3)]
    YLO = YB[2]
    PSZ = 10240
    ysetup = R(f"""v_lshrrev_b32 v{VT}, 3, v{V_LANE}
    v_and_b32 v{VT+1}, 7, v{V_LANE}
    v_and_b32 v{V_WD}, 6, v{VT}
    v_xor_b32 v{VT+1}, v{VT+1}, v{V_WD}
    v_lshlrev_b32 v{VT}, 12, v{VT}
    v_lshl_add_u32 v{V_WD}, v{VT+1}, 4, v{VT}
    v_lshrrev_b32 v{VT}, 2, v{V_LANE}
    v_and_b32 v{V_WH}, 6, v{VT}
    v_bfe_u32 v{VT+1}, v{V_LANE}, 1, 1
    v_xor_b32 v{VT+1}, v{VT+1}, v{V_WH}
    v_lshlrev_b32 v{VT+1}, 4, v{VT+1}
    v_lshl_add_u32 v{VT+1}, v{VT}, 7, v{VT+1}
    v_and_b32 v{VT}, 1, v{V_LANE}
    v_lshl_add_u32 v{VT+1}, v{VT}, 3, v{VT+1}
    s_lshl_b32 s{S_L0}, s{S_WAVE}, 13
    v_add_u32 v{VT+1}, s{S_L0}, v{VT+1}
    v_add_u32 v{VT+1}, {YLO}, v{VT+1}
    v_lshlrev_b32 v{V_L8}, 3, v{V_LANE}
    s_mul_i32 s{S_YA}, s{S_WAVE}, {7*64*4096}
    s_lshl_b32 s{S_T}, s{S_RB}, 7
    s_add_u32 s{S_YA}, s{S_YA}, s{S_T}
    s_mul_i32 s{S_YB}, s{S_CT}, {5*54*1024}
    s_mul_i32 s{S_T}, s{S_WAVE}, {7*2048}
    s_add_u32 s{S_YB}, s{S_YB}, s{S_T}""")
    for sb in range(4):
        ysetup += R(f"""s_add_u32 s{S_T}, s{S_WAVE}, {sb}
        s_and_b32 s{S_T}, s{S_T}, 3
        s_lshl_b32 s{S_T}, s{S_T}, 5
        v_xor_b32 v{V_WA+sb}, s{S_T}, v{VT+1}
        v_add_u32 v{V_WH+sb}, {YB[0]-YLO}, v{V_WA+sb}""")
    ysetup += R(f"""s_and_b32 s{S_T}, s{c.S_G}, 0xfc
    s_add_u32 s{S_T}, s{S_T}, s{S_WAVE}
    s_lshl_b32 s{S_T}, s{S_T}, 2
    s_add_u32 s{S_T}, s{S_T}, s{c.S_KQ}
    s_mul_i32 s{S_PO}, s{S_T}, {PSZ}
    s_add_u32 s{S_PO}, s{S_PO}, {PART_OFF}
    s_mul_i32 s{S_PI}, s{c.S_G}, {4*PSZ}
    s_mul_i32 s{S_T}, s{S_WAVE}, 2560
    s_add_u32 s{S_PI}, s{S_PI}, s{S_T}
    s_add_u32 s{S_PI}, s{S_PI}, {PART_OFF}
    s_mov_b32 s{S_B}, {fhex(-math.log2(math.e))}""")
    def XF(k): return 224+k if k < 16 else 252+(k-16)
    def YA(p, db, t):
        k = 8*db+4*t
        return [ar(144+k, 4), ar(184+k, 4), vr(176+k, 4), ar(k, 4)][p % 4]
    def YBr(p, sb, t, n=4, o=0): return ar((224 if p % 2 == 0 else 40)+8*sb+4*t+o, n)
    S_R3W, S_R1W, S_R3U, S_R1U, S_PW, S_PU = 4, 5, 6, 7, 8, 9
    ysetup += R(f"""s_lshr_b32 s{S_T}, s2, 3
    s_lshr_b32 s{S_T+1}, s2, 5
    s_add_u32 s{S_T}, s{S_T}, s{S_T+1}
    s_and_b32 s{S_T}, s{S_T}, {opt('YR', 3)}
    s_lshl_b32 s{S_R3W}, s{S_T}, 18
    s_lshl_b32 s{S_R3U}, s{S_T}, 11
    s_and_b32 s{S_R1W}, s{S_R3W}, {1 << 18}
    s_and_b32 s{S_R1U}, s{S_R3U}, {1 << 11}""")
    def yloads(p):
        r = []
        def base(d, b, r3, r1, sh):
            if p == 6: return R(f"s_add_u32 s{d}, s{b}, {p << sh}")
            return R(f"s_xor_b32 s{d}, s{r3 if p < 4 else r1}, {p << sh}\ns_add_u32 s{d}, s{d}, s{b}")
        for n in range(8):
            g = base(S_PW, S_YA, S_R3W, S_R1W, 18) if n == 0 else []
            g += R(f"s_add_u32 m0, s{S_L0}, {YB[p%3]+1024*n}") if n % 4 == 0 else []
            r.append(g+[("raw", f"s_add_u32 s{S_T}, s{S_PW}, {8*n*4096-1024*(n%4)}"),
                        ("vm", ("w", p), f"buffer_load_dwordx4 v{V_WD}, s[{S_W2}:{S_W2+3}], s{S_T} offen offset:{1024*(n%4)} lds")])
        for db in range(5):
            g = base(S_PU, S_YB, S_R3U, S_R1U, 11) if db == 0 else []
            g += [("raw", f"s_add_u32 s{S_T+1}, s{S_PU}, {U_OFF+db*54*1024}")]
            if p == 6: g += R(f"s_cmp_eq_u32 s{S_WAVE}, 3\ns_cselect_b32 s{S_T+1}, {WS_SZ}, s{S_T+1}")
            r.append(g+[("vm", ("a", p), f"buffer_load_dwordx4 {YA(p,db,0)}, v{V_L16}, {WSR}, s{S_T+1} offen{SC}")])
            r.append([("vm", ("a", p), f"buffer_load_dwordx4 {YA(p,db,1)}, v{V_L16}, {WSR}, s{S_T+1} offen offset:1024{SC}")])
        return r
    def yreads(p):
        y = p % 3
        va, o = (V_WH, 0) if y == 0 else (V_WA, YB[y]-YLO)
        return [("ds", ("r", p), f"ds_read_b64_tr_b16 {YBr(p,sb,t,2,2*hj)}, v{va+sb} offset:{o+2048*(2*t+hj)}")
                for sb in range(4) for t in range(2) for hj in range(2)]
    V_OW, V_OW8, S_OWN = 13, 223, 50
    ysetup += R(f"""v_add_u32 v{V_OW}, {LDS_OWN}, v{V_L16}
    v_add_u32 v{V_OW8}, {LDS_OWN}, v{V_L8}""")
    own = R(f"s_cmp_eq_u32 s{S_WAVE}, s{c.S_KQ}\ns_cselect_b64 s[{S_OWN}:{S_OWN+1}], -1, 0\ns_cselect_b32 s{S_PO}, {WS_SZ}, s{S_PO}")
    def pstore(sb):
        b = ACS+20*sb
        r = [[("raw", f"v_cvt_pk_bf16_f32 v{b+j}, v{b+2*j}, v{b+2*j+1}")] for j in range(10)]
        r.insert(4, [("vm", "ps", f"buffer_store_dwordx4 {vr(b,4)}, v{V_L16}, {WSR}, s{S_PO} offen{SC}")])
        r.insert(9, [("vm", "ps", f"buffer_store_dwordx4 {vr(b+4,4)}, v{V_L16}, {WSR}, s{S_PO} offen offset:1024{SC}")])
        r.append([("vm", "ps", f"buffer_store_dwordx2 {vr(b+8,2)}, v{V_L8}, {WSR}, s{S_PO} offen offset:2048{SC}"), ("raw", f"s_add_u32 s{S_PO}, s{S_PO}, 2560")])
        r.append(R(f"s_mov_b64 exec, s[{S_OWN}:{S_OWN+1}]") +
                 [("ds", "ow", f"ds_write_b128 v{V_OW}, {vr(b,4)} offset:{2560*sb}"), ("ds", "ow", f"ds_write_b128 v{V_OW}, {vr(b+4,4)} offset:{2560*sb+1024}"),
                  ("ds", "ow", f"ds_write_b64 v{V_OW8}, {vr(b+8,2)} offset:{2560*sb+2048}")] + R("s_mov_b64 exec, -1"))
        return r
    gl = gelu_items(V_L16, S_T+2)
    urd, ust = u_out(V_L16, S_T+2)
    y01 = yloads(0) + yloads(1) + (yloads(2)[:8] if opt('W3', 1) else [])
    GE = opt('GE', 3); US = GE+1+opt('SD', 2); D4 = opt('D4', 1)
    dq = [g for st in range(3, 16) for g in c.dma(st)]
    for s in range(16):
        if s == 13:
            e.wvm("poll")
            spin(e, V_PD, V_PA, opt('SU', 4), have=True)
        SBP = opt('SBP', 0)
        def sync(st):
            r = [("wait", "us", None)] if st == US else []
            if st < 15: r += [("wait", ("sd", st+1 if st else 0), "ALL"), ("raw", "s_barrier")]
            else: r += [("wait", ("w", 0), "ALL")]
            return r
        if not SBP or s <= 1:
            for it in sync(s): e.add(it)
        if Ctx.fine == "f": stamp(e, 14+s)
        gaps = [[] for _ in range(40)]
        rd = sreads(s+1) if s < 15 else yreads(0)
        if s == 0:
            for k, it in enumerate(g1_red_reads()): gaps[k].append(it)
            gaps[18] += [("wait", ("sd", 1), "gr"), ("raw", "s_barrier")]
            for k, it in enumerate(rd): gaps[19+k].append(it)
        else:
            RS = opt('RS', 9)
            for k, it in enumerate(rd): gaps[[m for m in range(40) if m % 4 != 3][(k*RS)//3] if (s < 15 and RS < 5) else (2*k if s < 15 else k)].append(it)
        nd = 12 if (D4 and 1 <= s <= 3) else 9
        mine, dq = dq[:nd], dq[nd:]
        for k, g in enumerate(mine):
            pos = 21+2*k if s == 0 else (4*k+3 if nd == 9 else 2*((3*k)//2)+3)
            if g[0][0] == "raw":
                gaps[pos-1].append(g[0]); g = g[2:]
            gaps[pos] += g
        if D4 and s >= 12:
            cuts = [0, 8, 20, 32, 44] if opt('W3', 1) else [0, 8, 18, 28, 36]
            part = y01[cuts[s-12]:cuts[s-11]]
            for k, g in enumerate(part): gaps[(4*k+3 if len(part) <= 10 else 2*((3*k)//2)+3) if s < 15 else (3*k)//2+1] += g
        if not D4 and s >= 13:
            for k, g in enumerate(y01[12*(s-13):12*(s-12)]): gaps[(2*((3*k)//2)+1) if s < 15 else k+1] += g
        if s <= GE:
            if s == 0: glv = [x for x in gl if x[0] != "ds"]; gld = [x for x in gl if x[0] == "ds"]
            cost = lambda it: 2 if it[1].startswith(("v_exp", "v_rcp")) else (0.3 if it[1].startswith("s_") else 1)
            g0, g1 = (20 if s == 0 else 0), (24 if s == GE else 40)
            room = [max(0, 2 - sum(1 for it in gaps[m] if not (it[0] == "raw" and it[1].startswith("s_")))) for m in range(40)]
            cap = sum(room[g0:g1]); capl = cap + 52*(GE-s-1) + (30 if s < GE else 0) if s < GE else cap
            quota = sum(map(cost, glv))*cap/capl
            acc = 0; used = 0
            for m in range(g0, g1):
                acc += quota*room[m]/cap
                while glv and (used + cost(glv[0])/2 <= acc or (s == GE and m == g1-1)):
                    used += cost(glv[0]); gaps[m].append(glv.pop(0))
            if s == GE:
                assert not glv
                for k, it in enumerate(gld): gaps[25+2*k].insert(0, it)
        if s == GE+1:
            for k, g in enumerate(urd): gaps[2*k+1] += g
            for k, g in enumerate(ust): gaps[4*k+9] += g
        if s == US: gaps[1] += signal(C_U, S_UG, V_PA)
        if 8 <= s < 12:
            n = -(-len(ysetup)//4); q = s-8
            for k, it in enumerate(ysetup[q*n:(q+1)*n]): gaps[2*k].append(it)
        if s == 11:
            for k, it in enumerate(flag_addr(V_PA, C_U, S_CT, 27)): gaps[4*k+1].append(it)
        WL = [int(x) for x in opt('W2L', '9/10/12/14/15/16/17').split('/')]
        W0 = WL[0]
        w2pf = [("vm", "w2p", f"buffer_load_dword v220, v2, s[{S_W2}:{S_W2+3}], s49 offen"), ("raw", f"s_add_u32 s49, s49, {64*4096}")]
        if W0 and s == 5:
            wp = R(f"""v_min_u32 v2, 3, v{V_LANE}
            v_and_b32 v{V_WD}, 1, v2
            v_lshrrev_b32 v2, 1, v2
            v_lshlrev_b32 v2, 12, v2
            v_lshl_add_u32 v2, v{V_WD}, 10, v2
            s_lshr_b32 s{S_T}, s2, 3
            s_lshl_b32 s{S_T}, s{S_T}, 2
            s_add_u32 s{S_T}, s{S_T}, s{S_WAVE}
            s_lshr_b32 s{S_T+1}, s{S_T}, 5
            s_mul_i32 s49, s{S_T+1}, {448*4096}
            s_and_b32 s{S_T}, s{S_T}, 31
            s_lshl_b32 s{S_T}, s{S_T}, 13
            s_add_u32 s49, s49, s{S_T}
            s_lshr_b32 s{S_T}, s{S_W2}, 7
            s_sub_u32 s{S_T}, 3, s{S_T}
            s_and_b32 s{S_T}, s{S_T}, 7
            s_and_b32 s{S_T+1}, s{S_RB}, 16
            s_add_u32 s{S_T+1}, s{S_T+1}, s{S_T}
            s_lshl_b32 s{S_T+1}, s{S_T+1}, 7
            s_add_u32 s49, s49, s{S_T+1}
            s_xor_b32 s{S_T}, s{S_T}, s{S_RB}""")
            for k, it in enumerate(wp): gaps[(k*36)//len(wp)].append(it)
            gaps[38] += R(f"s_bitcmp1_b32 s{S_T}, 0\ns_cselect_b32 s49, {0x1000000}, s49")
        if W0 and s in WL: gaps[38] = w2pf + gaps[38]
        if s == 12: gaps[1] += poll_ld(V_PD, V_PA); gaps[39] += own
        if SBP and 1 <= s < 15: gaps[SBP] += sync(s+1)
        if s == 15:
            for sb in range(2):
                for k, g in enumerate(pstore(sb)): gaps[18+10*sb+(k*10)//14] += g
        for m in range(40):
            sb, db, t = m//10, (m//2) % 5, m % 2
            if sb % 2 and s < 15 and opt('BZ', 1): db = 4-db
            d = vr(ACS+20*sb+4*db, 4)
            cc = "0" if (s == 0 and t == 0) else d
            if (m//2) % 2 and opt('BZ', 1): t = 1-t
            e(f"{MF} {d}, {SA(s,db,t)}, {SB(s,sb,t)}, {cc}")
            for it in gaps[m]: e.add(it)
    stamp(e, 10)
    V_RW, V_RR = 218, V_WA
    PS = opt('PS', 1)
    PL, SS = ACS, ACS+48
    def psum(src):
        r = []
        for j in range(10):
            x = PL+12*src+j
            if src == 0: r += R(f"v_lshlrev_b32 v{SS+2*j}, 16, v{x}\nv_and_b32 v{SS+2*j+1}, 0xffff0000, v{x}")
            else: r += R(f"v_lshlrev_b32 v{SS+20}, 16, v{x}\nv_and_b32 v{x}, 0xffff0000, v{x}\nv_add_f32 v{SS+2*j}, v{SS+2*j}, v{SS+20}\nv_add_f32 v{SS+2*j+1}, v{SS+2*j+1}, v{x}")
        return r
    for p in range(7):
        if p < 6: e.wvm(("w", p+1))
        if p == PS: e.wvm("ps")
        if p == 5 and opt('PL', 3) == 3: e.wvm("pl")
        e.wait(("a", p), "ALL")
        if Ctx.fine == "g": stamp(e, 24+p)
        gaps = [[] for _ in range(40)]
        if p < 6:
            for k, it in enumerate(yreads(p+1)): gaps[2*k].append(it)
        sh = 0
        if p == 0:
            for k, g in enumerate(pstore(2)): gaps[k//2] += g
            for k, g in enumerate(pstore(3)): gaps[7+k//2] += g
            sh = 4
        PP = opt('PL', 3)
        if W0 and 16+p in WL: gaps[opt('WG', 38)] += w2pf
        if p == PP: gaps[16] += poll_ld(V_PD, V_PA)
        if opt('W3', 1): lds_ = (yloads(p+2)[8:] if p+2 < 7 else []) + (yloads(p+3)[:8] if p+3 < 7 else [])
        else: lds_ = yloads(p+2) if p+2 < 7 else []
        for k, g in enumerate(lds_): gaps[min(2*k+1+sh, 39)] += g
        if p == PP:
            gaps[36] += [("wait", "poll", None)] + spin_items(V_PD, V_PA, opt('SP', 2), have=True)
            for k in range(1, 4):
                b = PL+12*k
                gaps[36+k] += R(f"s_add_u32 s{S_T+2}, s{c.S_KQ}, {k}\ns_and_b32 s{S_T+2}, s{S_T+2}, 3\ns_mul_i32 s{S_T+2}, s{S_T+2}, {PSZ}\ns_add_u32 s{S_T+2}, s{S_T+2}, s{S_PI}")
                gaps[36+k] += [("vm", "pl", f"buffer_load_dwordx4 {vr(b,4)}, v{V_L16}, {WSR}, s{S_T+2} offen{SC}"),
                               ("vm", "pl", f"buffer_load_dwordx4 {vr(b+4,4)}, v{V_L16}, {WSR}, s{S_T+2} offen offset:1024{SC}"),
                               ("vm", "pl", f"buffer_load_dwordx2 {vr(b+8,2)}, v{V_L8}, {WSR}, s{S_T+2} offen offset:2048{SC}")]
        if p == 5:
            for k, it in enumerate(c.xloads()): gaps[4*k+1].append(it)
        if p == PS:
            gaps[0] += R("s_barrier") + signal(C_P, c.S_G, VT)
            gaps[2] += R(f"s_mul_i32 s{S_T+2}, s{S_WAVE}, 2560\nv_add_u32 v{V_OW}, s{S_T+2}, v{V_OW}\nv_add_u32 v{V_OW8}, s{S_T+2}, v{V_OW8}")
            gaps[32] += [("ds", "or", f"ds_read_b128 {vr(PL,4)}, v{V_OW}")]
            gaps[34] += [("ds", "or", f"ds_read_b128 {vr(PL+4,4)}, v{V_OW} offset:1024")]
            gaps[36] += [("ds", "or", f"ds_read_b64 {vr(PL+8,2)}, v{V_OW8} offset:2048")]
        if p == PS+1:
            pa = R(f"""v_min_u32 v{V_PA}, 2, v{V_LANE}
            v_add_u32 v{V_PA}, s{c.S_KQ}, v{V_PA}
            v_add_u32 v{V_PA}, 1, v{V_PA}
            v_and_b32 v{V_PA}, 3, v{V_PA}
            s_and_b32 s{S_T+2}, s{c.S_G}, 0xfc
            v_add_u32 v{V_PA}, s{S_T+2}, v{V_PA}
            v_lshlrev_b32 v{V_PA}, 7, v{V_PA}
            v_add_u32 v{V_PA}, {FL_OFF+C_P*32768}, v{V_PA}""") + psum(0)
            for k, it in enumerate(pa): gaps[k if k < 8 else (k*40)//len(pa)].append(it)
        if p == 5 and PP == 3:
            ps = psum(1) + psum(2)[:20]
            for k, it in enumerate(ps): gaps[(k*40)//len(ps)].append(it)
        if p == 6:
            ra = R(f"v_add_u32 v{V_RW}, s{S_L0}, v{V_L16}\nv_add_u32 v{V_RW+1}, {YB[0]}, v{V_RW}\nv_add_u32 v{V_RW}, {YLO}, v{V_RW}")
            for k in range(1, 4):
                ra += R(f"s_add_u32 s{S_T}, s{S_WAVE}, {4-k}\ns_and_b32 s{S_T}, s{S_T}, 3\ns_lshl_b32 s{S_T}, s{S_T}, 13\ns_add_u32 s{S_T}, s{S_T}, {YB[k-1]}\nv_add_u32 v{V_RR+k}, s{S_T}, v{V_L16}")
            if PP == 3: ra += psum(2)[20:] + psum(3)[:20]
            for k, it in enumerate(ra): gaps[(k*40)//len(ra) if PP == 3 else k//2].append(it)
        for m in range(40):
            db, sb, t = m//8, (m//2) % 4, m % 2
            if p == 6: sb, db = 3-m//10, (m//2) % 5
            elif db % 2 and opt('BZ', 1): sb = 3-sb
            d = vr(ACY+20*sb+4*db, 4)
            cc = "0" if (p == 0 and t == 0) else d
            if (m//2) % 2 and opt('BZ', 1): t = 1-t
            e(f"{MF} {d}, {YA(p,db,t)}, {YBr(p,sb,t)}, {cc}")
            if p == 6 and m >= 11 and m % 2 == 1:
                k = (m-11)//2; sb2, db2 = 3-k//5, k % 5
                va, o = (V_RW+1, 0) if sb2 == 1 else (V_RW, YB[sb2-1]-YLO)
                e.ds("yw", f"ds_write_b128 v{va}, {vr(ACY+20*sb2+4*db2,4)} offset:{o+1024*db2}")
            for it in gaps[m]: e.add(it)
    stamp(e, 11)
    Y, Z = ACY, ACY+20
    UN = 176
    def psum2(src):
        for j in range(10): e(f"v_lshlrev_b32 v{UN+2*j}, 16, v{PL+12*src+j}\nv_and_b32 v{UN+2*j+1}, s{S_T}, v{PL+12*src+j}")
        for k in range(0, 20, 2): e(pk("add", SS+k, SS+k, UN+k))
    e(f"s_mov_b32 s{S_T}, 0xffff0000")
    if PP == 3:
        for it in psum(3)[20:]: e.add(it)
    else:
        e.wvm("pl")
        psum2(1)
    e.wds("ALL"); e("s_barrier")
    for sb in range(1, 4):
        for db in range(5): e.ds(("yr", sb), f"ds_read_b128 {vr(ACY+20*sb+4*db,4)}, v{V_RR+sb} offset:{1024*db}")
    if PP != 3: psum2(2); psum2(3)
    e.wvm("e")
    e(f"v_lshlrev_b32 v{VT}, 16, v{V_B2}\nv_lshlrev_b32 v{VT+1}, 16, v{V_B2}\ns_mov_b32 s{S_B+1}, s{S_B}")
    for k in range(10): e(f"v_lshlrev_b32 v{XF(2*k)}, 16, v{XR+k}\nv_and_b32 v{XF(2*k+1)}, 0xffff0000, v{XR+k}")
    for k in range(0, 20, 2): e(pk("add", Y+k, Y+k, VT))
    for sb in range(1, 4):
        e.wds(("yr", sb))
        for k in range(0, 20, 2): e(pk("add", Y+k, Y+k, Y+20*sb+k))
    for k in range(0, 20, 2): e(f"v_pk_mul_f32 {vr(Z+k,2)}, {vr(Y+k,2)}, s[{S_B}:{S_B+1}]")
    for k in range(20): e(f"v_exp_f32 v{Z+k}, v{Z+k}")
    for k in range(0, 20, 2): e(pk("mul", Y+k, Y+k, SS+k))
    for k in range(0, 20, 2): e(f"v_pk_add_f32 {vr(Z+k,2)}, {vr(Z+k,2)}, 1.0 op_sel_hi:[1,0]")
    for db in range(5):
        for k in range(4*db, 4*db+4): e(f"v_rcp_f32 v{Z+k}, v{Z+k}")
        if db:
            d0 = db-1
            e(f"v_cvt_pk_bf16_f32 v{Z+20+2*d0}, v{XF(4*d0)}, v{XF(4*d0+1)}\nv_cvt_pk_bf16_f32 v{Z+21+2*d0}, v{XF(4*d0+2)}, v{XF(4*d0+3)}")
            e(f"buffer_store_dwordx2 {vr(Z+20+2*d0,2)}, v{V_XO}, s[{S_OUT}:{S_OUT+3}], s{S_A} offen offset:{32*d0}")
        else: e("s_nop 0")
        for k in range(4*db, 4*db+4, 2): e(f"v_pk_fma_f32 {vr(XF(k),2)}, {vr(Y+k,2)}, {vr(Z+k,2)}, {vr(XF(k),2)}")
    e(f"v_cvt_pk_bf16_f32 v{Z+28}, v{XF(16)}, v{XF(17)}\nv_cvt_pk_bf16_f32 v{Z+29}, v{XF(18)}, v{XF(19)}")
    e(f"buffer_store_dwordx2 {vr(Z+28,2)}, v{V_XO}, s[{S_OUT}:{S_OUT+3}], s{S_A} offen offset:128")
    stamp(e, 12)
    if Ctx.ts:
        e(f"""s_add_u32 s4, s{S_WS}, {TS_OFF}
        s_addc_u32 s5, s{S_WS+1}, 0
        s_mov_b32 s6, 0x100000
        s_mov_b32 s7, 0x20000
        s_lshl_b32 s8, s2, 2
        s_add_u32 s8, s8, s{S_WAVE}
        s_lshl_b32 s8, s8, 8
        v_lshlrev_b32 v10, 2, v{V_LANE}
        buffer_store_dword v0, v10, s[4:7], s8 offen""")
    if os.environ.get("DIAG"): e("K_dl:\ns_memrealtime s[86:87]\ns_waitcnt lgkmcnt(0)\ns_sub_u32 s86, s86, s84\ns_cmp_lt_u32 s86, 10000\ns_cbranch_scc1 K_dl")
    e("K_end:\ns_endpgm")

def insn_sizes(lines):
    import subprocess, re, tempfile, os
    body = [l for l in lines if isinstance(l, str) and not l.startswith(".")]
    body += [f"K_pg{w}:" for w in range(4)]
    d = tempfile.mkdtemp()
    open(d+"/a.s", "w").write('.amdgcn_target "amdgcn-amd-amdhsa--gfx950"\n.text\n' + "\n".join(body) + "\n")
    subprocess.run(["clang", "-x", "assembler", "-target", "amdgcn-amd-amdhsa", "-mcpu=gfx950", "-c", d+"/a.s", "-o", d+"/a.o"], check=True)
    t = subprocess.run(["llvm-objdump", "-d", "--mcpu=gfx950", d+"/a.o"], capture_output=True, text=True).stdout
    sz = [4*len(m.group(1).split()) for m in re.finditer(r"// [0-9A-F]{12}: ((?:[0-9A-F]{8} ?)+)", t)]
    assert len(sz) == sum(1 for l in body if not l.endswith(":")), (len(sz), len(body))
    return sz
def place_pages(lines):
    sz = iter(insn_sizes(lines))
    out = [".p2align 12"] if opt('AL', 1) == 0 else []
    off = 0x300 if opt('AL', 1) == 0 else None
    nxt = 4096; active = False; masked = False; stubs = []
    for l in lines:
        if not isinstance(l, str):
            if l[1] == "align" and opt('AL', 1): out += ["s_branch K_al", ".p2align 12", "K_al:"]; off = 0
            if l[1] == "warm": active = True; nxt = (off//4096+1)*4096
            if l[1] == "cold": active = False
            if l[1] == "a64":
                while off % 64: out.append("s_nop 0"); off += 4
            continue
        if l.startswith(".") or l.endswith(":"):
            out.append(l); continue
        n = next(sz)
        if active and off >= nxt and not masked:
            stubs.append(len(out)); out.append(None); off += 8 if opt('SN', 0) else 4; nxt += 4096
        if l.startswith("s_mov_b64 exec"): masked = not l.endswith("-1")
        out.append(l)
        if off is not None: off += n
    for k, pos in enumerate(stubs):
        tgt = f"K_pg{k+3}" if k+3 < len(stubs) else f"K_back{k%3}"
        out[pos] = f"K_pg{k}:\ns_cbranch_execz {tgt}" + ("\ns_nop 0" if opt('SN', 0) else "")
    Ctx.npages = len(stubs)
    return out

def gen(ts=False):
    Ctx.ts = ts; Ctx.uid = 0
    e = Em()
    WSR = f"s[{S_WS}:{S_WS+3}]"
    LN_R, LN_L, LT, LN_X, X, D, O1, O2, TA, A0, TG, SB = 96, 97, 98, 100, 110, 130, 150, 160, 170, 176, 182, 184
    XS, HS = LDS_SP, LDS_SP
    e(khead(NAME))
    e("s_cmp_ge_u32 s2, 256\ns_cbranch_scc1 K_exit")
    for s, off in ((S_X,0),(S_DBG,88),(S_WQ,24),(S_WS,96),(S_K,8),(S_V,16),(S_WO,32)):
        e(f"s_load_dwordx2 s[{s}:{s+1}], s[0:1], {off}")
    e(f"s_getpc_b64 s[{S_CODE}:{S_CODE+1}]\nK_pc:")
    e(f"""v_and_b32 v{V_LANE}, 63, v0
    v_lshrrev_b32 v{V_T}, 6, v0
    s_mov_b32 s{S_CODE+2}, K_last-K_pc
    v_readfirstlane_b32 s{S_WAVE}, v{V_T}
    s_mov_b32 s{S_CODE+3}, 0x20000
    s_lshr_b32 s51, s2, 3
    v_lshlrev_b32 v{LT}, 7, v{V_LANE}
    s_cmp_lt_u32 s{S_WAVE}, 2
    s_cbranch_scc1 K_nocp
    s_lshl_b32 s49, s51, 1
    s_add_u32 s49, s49, s{S_WAVE}
    s_and_b32 s49, s49, 15
    s_lshl_b32 s49, s49, 13
    buffer_load_dword v{V_PFD}, v{LT}, s[{S_CODE}:{S_CODE+3}], s49 offen
    K_nocp:
    s_and_b32 s{S_XCD}, s2, 7
    s_lshr_b32 s52, s51, 3
    s_and_b32 s{S_QB}, s51, 7
    s_lshl_b32 s53, s52, 3
    s_add_u32 s53, s53, s{S_XCD}
    s_lshl_b32 s54, s{S_QB}, 5
    s_add_u32 s{S_SLOT}, s53, s54""")
    e(f"""v_lshrrev_b32 v{LN_R}, 5, v0
    v_and_b32 v{LN_L}, 31, v0
    s_lshr_b32 s54, s{S_SLOT}, 2
    s_lshl_b32 s54, s54, 5
    s_and_b32 s55, s{S_SLOT}, 3
    s_lshl_b32 s55, s55, 2
    s_add_u32 s54, s54, s55
    v_and_b32 v{LT}, 3, v{LN_R}
    v_lshrrev_b32 v{LT+1}, 2, v{LN_R}
    v_lshl_add_u32 v{LT}, v{LT+1}, 4, v{LT}
    v_add_u32 v{LT}, s54, v{LT}
    v_mul_u32_u24 v{LT}, 1280, v{LT}
    v_lshl_add_u32 v{LT}, v{LN_L}, 3, v{LT}
    s_mov_b32 s{S_X+2}, {2048*1280}
    s_mov_b32 s{S_X+3}, 0x20000
    s_mov_b32 s{S_DBG+2}, 256
    s_mov_b32 s{S_DBG+3}, 0x20000
    v_mov_b32 v{TG}, 0
    s_memrealtime s[90:91]
    s_waitcnt lgkmcnt(0)""")
    for j in range(5):
        e(f"buffer_load_dwordx2 v[{LN_X+2*j}:{LN_X+2*j+1}], v{LT}, s[{S_X}:{S_X+3}], 0 offen offset:{256*j}{os.environ.get('NTX', '')}")
    e.mark("xout")
    e(f"""s_lshl_b32 s48, s2, 2
    s_add_u32 s48, s48, s{S_WAVE}
    s_cmp_lg_u32 s48, 1
    s_cbranch_scc1 K_notag
    s_or_b32 s90, s90, 1
    v_mov_b32 v{TG+1}, s90
    s_mov_b64 exec, 1
    buffer_store_dword v{TG+1}, v{TG}, s[{S_DBG}:{S_DBG+3}], 0 offen sc1
    s_mov_b64 exec, -1
    K_notag:""")
    if opt('QF', 0) == 4:
        e(f"""s_mov_b32 s{S_WQ+2}, {640*8192}
        s_mov_b32 s{S_WQ+3}, 0x20000
        s_cmp_lt_u32 s{S_WAVE}, 2
        s_cbranch_scc1 K_nopf
        v_min_u32 v{LT}, 39, v{V_LANE}
        v_and_b32 v{LT+1}, 7, v{LT}
        v_lshrrev_b32 v{LT}, 3, v{LT}
        v_lshlrev_b32 v{LT}, 19, v{LT}
        v_lshl_add_u32 v{LT}, v{LT+1}, 7, v{LT}
        s_lshl_b32 s48, s51, 1
        s_add_u32 s48, s48, s{S_WAVE}
        s_sub_u32 s48, s48, 2
        s_lshl_b32 s48, s48, 13
        s_lshl_b32 s53, s{S_XCD}, 10
        s_add_u32 s48, s48, s53
        buffer_load_dword v{V_PFD}, v{LT}, s[{S_WQ}:{S_WQ+3}], s48 offen
        s_add_u32 s48, s48, {320*8192}
        buffer_load_dword v{V_PFD}, v{LT}, s[{S_WQ}:{S_WQ+3}], s48 offen
        K_nopf:""")
    if opt('QF', 0) == 3:
        e(f"""s_mov_b32 s{S_WQ+2}, {640*8192}
        s_mov_b32 s{S_WQ+3}, 0x20000
        s_cmp_lt_u32 s{S_WAVE}, 2
        s_cbranch_scc1 K_nopf
        v_min_u32 v{LT}, 39, v{V_LANE}
        v_lshlrev_b32 v{LT}, 7, v{LT}
        s_lshl_b32 s48, s2, 1
        s_add_u32 s48, s48, s{S_WAVE}
        s_sub_u32 s48, s48, 2
        s_mul_i32 s48, s48, 5120
        buffer_load_dword v{V_PFD}, v{LT}, s[{S_WQ}:{S_WQ+3}], s48 offen
        s_add_u32 s48, s48, {512*5120}
        buffer_load_dword v{V_PFD}, v{LT}, s[{S_WQ}:{S_WQ+3}], s48 offen
        K_nopf:""")
    e(f"""s_lshl_b32 s50, s{S_XCD}, 2
    s_add_u32 s50, s50, s52
    s_lshl_b32 s56, s50, 8
    s_sub_u32 s{S_WQ+2}, {640*8192}, s56
    s_mov_b32 s{S_WQ+3}, 0x20000
    s_add_u32 s{S_WQ}, s{S_WQ}, s56
    s_addc_u32 s{S_WQ+1}, s{S_WQ+1}, 0""")
    def wq_pf():
        e(f"""s_cmp_lt_u32 s{S_WAVE}, 2
        s_cbranch_scc1 K_nopf
        v_lshrrev_b32 v{LT}, 1, v{V_LANE}
        v_and_b32 v{LT+1}, 1, v{V_LANE}
        v_lshlrev_b32 v{LT+1}, 7, v{LT+1}
        v_lshl_add_u32 v{LT}, v{LT}, 17, v{LT+1}
        s_lshl_b32 s48, s{S_QB}, 1
        s_add_u32 s48, s48, s{S_WAVE}
        s_sub_u32 s48, s48, 2
        s_lshl_b32 s48, s48, 13
        buffer_load_dword v{V_PFD}, v{LT}, s[{S_WQ}:{S_WQ+3}], s48 offen{NTQ}
        s_add_u32 s48, s48, {32*16*8192}
        buffer_load_dword v{V_PFD}, v{LT}, s[{S_WQ}:{S_WQ+3}], s48 offen{NTQ}
        K_nopf:""")
    if opt('QF', 0) == 0: wq_pf()
    for s, off in ((S_W1,48),(S_B1,56),(S_W2,64),(S_B2,72),(S_OUT,80)):
        e(f"s_load_dwordx2 s[{s}:{s+1}], s[0:1], {off}")
    e(f"""s_mov_b32 s{S_WS+2}, {WS_SZ}
    s_mov_b32 s{S_WS+3}, 0x20000
    s_mov_b32 s{S_PASS}, 0
    s_lshr_b32 s48, s2, 5
    s_lshr_b32 s53, s{S_XCD}, 1
    s_mul_i32 s53, s53, 7
    s_add_u32 s53, s53, s48
    s_cmp_lt_u32 s48, 7
    s_cselect_b32 s{S_G1}, 1, 0
    s_cmp_lt_u32 s53, 27
    s_cselect_b32 s{S_G1}, s{S_G1}, 0
    s_and_b32 s48, s{S_XCD}, 1
    s_lshl_b32 s48, s48, 2
    s_and_b32 s{S_UG}, s{S_QB}, 3
    s_add_u32 s{S_UG}, s{S_UG}, s48
    s_lshl_b32 s{S_UG}, s{S_UG}, 5
    s_add_u32 s{S_UG}, s{S_UG}, s53
    s_cmp_eq_u32 s{S_G1}, 0
    s_cselect_b32 s{S_STATE}, {1<<C_U}, 0
    s_cmp_lg_u32 s{S_WAVE}, 0
    s_cselect_b32 s{S_STATE}, -1, s{S_STATE}
    s_mov_b32 s49, 0xffff0000""")
    e(f"""v_mul_u32_u24 v{A0}, 1280, v{LN_R}
    v_lshl_add_u32 v{A0}, v{LN_L}, 3, v{A0}
    v_add_u32 v{A0}, {XS}, v{A0}
    v_and_b32 v{SB}, 3, v{V_LANE}
    v_bfe_u32 v{SB+1}, v{V_LANE}, 2, 2
    v_bfe_u32 v{SB+2}, v{V_LANE}, 4, 1
    v_lshrrev_b32 v{SB+3}, 5, v{V_LANE}
    v_lshl_add_u32 v{A0+1}, v{SB+2}, 2, v{SB}
    v_mul_u32_u24 v{A0+1}, 1280, v{A0+1}
    v_lshl_add_u32 v{A0+1}, v{SB+3}, 6, v{A0+1}
    v_lshl_add_u32 v{A0+1}, v{SB+1}, 3, v{A0+1}
    v_add_u32 v{A0+1}, {XS}, v{A0+1}
    s_lshr_b32 s54, s{S_SLOT}, 2
    s_lshl_b32 s54, s54, 1
    v_add_u32 v{A0+2}, s54, v{SB+2}
    v_mul_u32_u24 v{A0+2}, 20, v{A0+2}
    v_add_u32 v{A0+2}, v{A0+2}, v{SB+3}
    v_lshlrev_b32 v{A0+2}, 6, v{A0+2}
    v_lshl_add_u32 v{A0+2}, v{SB+1}, 4, v{A0+2}
    v_add_u32 v{A0+2}, v{A0+2}, v{SB}
    v_add_u32 v{A0+2}, s55, v{A0+2}
    v_lshlrev_b32 v{A0+2}, 4, v{A0+2}""")
    QP.addr_dma(e, SB+4)
    e(f"""s_lshl_b32 s52, s50, 19
    s_add_u32 s{S_K}, s{S_K}, s52
    s_addc_u32 s{S_K+1}, s{S_K+1}, 0
    s_add_u32 s{S_V}, s{S_V}, s52
    s_addc_u32 s{S_V+1}, s{S_V+1}, 0""")
    for s, sz in ((S_K,524288),(S_V,524288),(S_WO,4096*1280),(S_W1,2048*3456),(S_B1,3456),(S_W2,1728*4096),(S_B2,4096),(S_OUT,2048*1280)):
        e(f"s_mov_b32 s{s+2}, {sz}\ns_mov_b32 s{s+3}, 0x20000")
    e(f"""s_lshr_b32 s{S_CPF}, s2, 3
    s_lshl_b32 s{S_CPF}, s{S_CPF}, 2
    s_add_u32 s{S_CPF}, s{S_CPF}, s{S_WAVE}
    s_lshl_b32 s{S_CPF}, s{S_CPF}, 10
    s_and_b32 s{S_CPF}, s{S_CPF}, 0xffff
    s_add_u32 s{S_CPF}, s{S_CPF}, K_tail-K_pc""")
    if ts: e("v_mov_b32 v0, 0")
    stamp(e, 0)
    e.mark("align")
    if opt('QF', 0) in (0, 3, 4): e(f"s_cmp_lt_u32 s{S_WAVE}, 2\ns_cbranch_scc1 K_w0\ns_waitcnt vmcnt(2)\ns_branch K_w1\nK_w0:\ns_waitcnt vmcnt(0)\nK_w1:")
    else: e("s_waitcnt vmcnt(0)")
    stamp(e, 1)
    if opt('QF', 0) == 1: wq_pf()
    e(f"buffer_load_dword v{TG+1}, v{TG}, s[{S_DBG}:{S_DBG+3}], 0 offen sc1")
    def kv_pf():
        e(f"""s_cmp_lg_u32 s{S_WAVE}, 1
        s_cbranch_scc1 K_nokv
        v_lshlrev_b32 v{LT}, 7, v{V_LANE}
        s_lshl_b32 s48, s{S_QB}, 13
        buffer_load_dword v{V_PFD}, v{LT}, s[{S_K}:{S_K+3}], s48 offen
        buffer_load_dword v{V_PFD}, v{LT}, s[{S_V}:{S_V+3}], s48 offen
        v_lshrrev_b32 v{LT}, 1, v{V_LANE}
        v_mul_u32_u24 v{LT}, 1280, v{LT}
        v_and_b32 v{LT+1}, 1, v{V_LANE}
        v_lshl_add_u32 v{LT}, v{LT+1}, 7, v{LT}
        s_lshr_b32 s48, s2, 1
        s_mul_i32 s48, s48, {32*1280}
        s_and_b32 s53, s2, 1
        s_mul_i32 s53, s53, 640
        s_add_u32 s48, s48, s53
        buffer_load_dword v{V_PFD}, v{LT}, s[{S_WO}:{S_WO+3}], s48 offen
        buffer_load_dword v{V_PFD}, v{LT}, s[{S_WO}:{S_WO+3}], s48 offen offset:256
        buffer_load_dword v{V_PFD}, v{LT}, s[{S_WO}:{S_WO+3}], s48 offen offset:384
        K_nokv:""")
    if opt('KP', 0) == 1: kv_pf()
    unpack(e, LN_X, X, 10, 49)
    layernorm(e, X, D, O1, TA, 49, scale=math.log2(math.e)/math.sqrt(128.0))
    e("s_waitcnt lgkmcnt(0)")
    for j in range(5): e(f"ds_write_b64 v{A0}, v[{O1+2*j}:{O1+2*j+1}] offset:{256*j}")
    if Ctx.fine == "s": stamp(e, 14)
    e(f"s_waitcnt lgkmcnt(0)\ns_barrier\ns_cmp_lg_u32 s{S_WAVE}, 0\ns_cbranch_scc1 K_noxs")
    for n in range(10): e(f"ds_read2_b64 v[{SB+4*n}:{SB+4*n+3}], v{A0+1} offset0:{16*n} offset1:{16*n+4}")
    for n in range(10):
        if n % 2 == 0: e(f"s_mov_b32 s54, {2048*n}")
        e(f"s_waitcnt lgkmcnt({9-n})\nbuffer_store_dwordx4 v[{SB+4*n}:{SB+4*n+3}], v{A0+2}, {WSR}, s54 offen offset:{2048*(n%2)}{SC}")
    e("K_noxs:")
    if opt('KP', 0) == 2: kv_pf()
    if Ctx.fine == "s": stamp(e, 15)
    e("K_start:")
    T = 64
    urgent = R(f"""v_lshrrev_b32 v{T+2}, 2, v{V_LANE}
    v_and_b32 v{T+3}, 7, v{T+2}
    v_lshlrev_b32 v{T+3}, 1, v{T+3}
    v_and_b32 v{T+4}, 3, v{V_LANE}
    v_xor_b32 v{T+5}, v{T+3}, v{T+4}
    v_lshlrev_b32 v{T+5}, 4, v{T+5}
    v_lshl_add_u32 v{QP.V_WL}, v{T+2}, 8, v{T+5}
    v_xor_b32 v{QP.V_WL+1}, 64, v{QP.V_WL}
    v_xor_b32 v{QP.V_WL+2}, 128, v{QP.V_WL}
    v_xor_b32 v{QP.V_WL+3}, 192, v{QP.V_WL}""")
    urgent += [("raw", f"v_add_u32 v{QP.V_WA+k}, {LDS_V}, v{QP.V_WL+k}") for k in range(4)]
    urgent += flag_addr(T+9, C_XN, S_QB, 8) + R(f"s_lshl_b32 s56, s{S_WAVE}, 10\nv_add_u32 v{T+9}, s56, v{T+9}")
    urgent += R(f"""v_bfe_u32 v89, v{V_LANE}, 2, 2
    v_mul_u32_u24 v89, 1280, v89
    v_lshrrev_b32 v{T}, 4, v{V_LANE}
    s_lshl_b32 s54, s{S_WAVE}, 2
    v_add_u32 v{T}, s54, v{T}
    v_lshl_add_u32 v89, v{T}, 5, v89
    v_lshl_add_u32 v89, v{T+4}, 3, v89
    v_add_u32 v89, {HS}, v89
    v_mul_u32_u24 v88, {HPI}, v{T}
    v_and_b32 v{T+1}, 15, v{V_LANE}
    v_lshl_add_u32 v88, v{T+1}, 4, v88
    s_lshl_b32 s55, s{S_QB}, 4
    s_add_u32 s55, s55, s54
    s_mul_i32 s{QP.S_XOFF}, s55, 20480
    v_lshlrev_b32 v{QP.V_XO}, 4, v{V_LANE}""")
    b = Em()
    b(f"""s_lshl_b32 s50, s{S_XCD}, 2
    s_lshr_b32 s52, s2, 6
    s_add_u32 s50, s50, s52
    s_mov_b32 s{S_KOFF}, s{S_W4K}
    s_mov_b32 s{S_VOFF}, s{S_W4K}
    s_mul_i32 s{S_OST}, s55, {OP}
    s_lshl_b32 s54, s50, 12
    s_add_u32 s{S_OST}, s{S_OST}, s54
    s_add_u32 s{S_OST}, s{S_OST}, {OF_OFF}
    s_lshl_b32 s{S_PF}, s2, 2
    s_add_u32 s{S_PF}, s{S_PF}, s{S_WAVE}
    s_lshl_b32 s54, s50, 2
    s_add_u32 s54, s54, s{S_WAVE}
    s_mul_i32 s{QP.S_WOS}, s54, {32*1280}
    s_mul_i32 s53, s{S_QB}, 160
    s_add_u32 s{QP.S_WOS}, s{QP.S_WOS}, s53
    s_mul_i32 s{QP.S_WOD}, s{S_QB}, {5*OP}
    s_lshl_b32 s54, s54, 10
    s_add_u32 s{QP.S_WOD}, s{QP.S_WOD}, s54
    s_add_u32 s{QP.S_WOD}, s{QP.S_WOD}, {WOF_OFF}
    s_mul_i32 s{S_PF}, s{S_PF}, {56*128}
    s_lshl_b32 s50, s{S_SLOT}, 8
    s_add_u32 s50, s50, {HT_OFF}
    s_cmp_lg_u32 s{S_PASS}, 0
    s_cselect_b32 s50, {WS_SZ}, s50
    s_add_u32 s51, s50, {16*HPI}
    s_add_u32 s52, s50, {32*HPI}
    s_cmp_ge_u32 s{S_WAVE}, 2
    s_cselect_b32 s52, {WS_SZ}, s52
    v_bfe_u32 v{T+4}, v{V_LANE}, 1, 1
    v_xor_b32 v{T+4}, v{T+3}, v{T+4}
    v_lshlrev_b32 v{T+4}, 4, v{T+4}
    v_lshl_add_u32 v{T+4}, v{T+2}, 8, v{T+4}
    v_and_b32 v{T+5}, 1, v{V_LANE}
    v_lshl_add_u32 v{T+4}, v{T+5}, 3, v{T+4}
    v_add_u32 v{V_VA}, {LDS_V}, v{T+4}""")
    for db in range(1, 8): b(f"v_xor_b32 v{V_VA+db}, {32*db}, v{V_VA}")
    b(f"""v_and_b32 v{T}, 15, v{V_LANE}
    v_lshrrev_b32 v{T+1}, 4, v{V_LANE}
    v_and_b32 v{T+2}, 7, v{V_LANE}
    v_lshlrev_b32 v{V_PFA}, 7, v{T+2}
    v_lshlrev_b32 v{T+2}, 1, v{T+2}
    v_xor_b32 v{T+2}, v{T+2}, v{T+1}
    v_lshlrev_b32 v{T+2}, 4, v{T+2}
    v_lshl_add_u32 v{V_KA}, v{T}, 8, v{T+2}
    v_xor_b32 v{V_KA+1}, 64, v{V_KA}
    v_xor_b32 v{V_KA+2}, 128, v{V_KA}
    v_xor_b32 v{V_KA+3}, 192, v{V_KA}
    v_lshlrev_b32 v{T+2}, 1, v{T+1}
    v_xor_b32 v{T+2}, v{T+2}, v{T}
    v_lshlrev_b32 v{T+2}, 4, v{T+2}
    v_lshl_add_u32 v{V_DM}, v{T+1}, 8, v{T+2}
    v_xor_b32 v{V_DM+1}, 128, v{V_DM}
    v_mov_b32 v{T+6}, 0x3f803f80
    v_cmp_gt_u32 vcc, 2, v{T}
    v_mov_b32 v{T+7}, 0x44444444
    v_mov_b32 v{T+8}, 0xeeeeeeee
    v_cndmask_b32 v{V_ONE}, 0, v{T+6}, vcc
    v_cmp_eq_u32 vcc, 1, v{T+5}
    v_mov_b32 v{V_ONE+1}, v{V_ONE}
    v_mov_b32 v{V_ONE+2}, v{V_ONE}
    v_mov_b32 v{V_ONE+3}, v{V_ONE}
    v_cndmask_b32 v{V_IDX}, v{T+7}, v{T+8}, vcc""")
    for n in range(5):
        b(f"""v_add_u32 v{T}, {64*n}, v{V_LANE}
        v_mul_u32_u24 v{T+1}, 6554, v{T}
        v_lshrrev_b32 v{T+1}, 16, v{T+1}
        v_mul_u32_u24 v{T+2}, 10, v{T+1}
        v_sub_u32 v{T}, v{T}, v{T+2}
        v_mul_u32_u24 v{T+1}, 1280, v{T+1}
        v_lshl_add_u32 v{QP.V_OD+n}, v{T}, 4, v{T+1}""")
    for it in urgent: e.add(it)
    urgent = []
    if Ctx.fine == "s": stamp(e, 16)
    e.vm("xs", "s_nop 0")
    grp = []
    for it in b.items:
        if it[1].startswith("s_cselect") or (grp and grp[-1][0][1].startswith("v_cmp") and not grp[-1][-1][1].startswith("v_cndmask")): grp[-1].append(it)
        else: grp.append([it])
    NT = opt('NT', 8)
    wq = [g for j in range(NT) for g in QP.wq_dma(j)]
    nu = -(-len(grp)//len(wq))
    hp = [int(x) for x in opt('HQ', '10/5/15/25').split('/')]
    e.mark("warm")
    for k, g in enumerate(wq):
        if k == hp[0]:
            l0 = lab("w0")
            e(f"s_bitcmp1_b32 s{S_STATE}, {C_XN}\ns_cbranch_scc1 {l0}")
            e.wvm("xs")
            spin(e, TG+1, TG, 1, have=True, cmp=f"v_cmp_eq_u32 vcc, 0, v{TG+1}", srd=S_DBG)
            e(f"v_readfirstlane_b32 s{S_TAG}, v{TG+1}\ns_nop 1")
            for it in signal(C_XN, S_SLOT, LT): e.add(it)
            e(f"{l0}:")
            stamp(e, 2)
        for w in range(1, 4):
            if k == hp[w]:
                e(f"s_cmp_lg_u32 s{S_WAVE}, {w}\ns_cbranch_scc1 K_hop{w}\ns_mov_b64 exec, 0\ns_branch K_pg{w-1}\nK_back{w-1}:\ns_mov_b64 exec, -1\nK_hop{w}:")
        if k == len(wq)-opt('PB', 1): e.vm("xp", f"buffer_load_dword v{T+10}, v{T+9}, {WSR}, 0 offen sc1")
        for it in g + [x for y in grp[:nu] for x in y]: e.add(it)
        grp = grp[nu:]
    assert not grp
    if Ctx.fine == "s": stamp(e, 21)
    b = Em()
    b(f"s_mov_b32 s53, 0xffff0000\nv_min_u32 v{A0}, {LDS_SP+8*1280}, v{A0}\nv_max_u32 v{A0}, {LDS_SP}, v{A0}\nv_and_b32 v{A0}, -8, v{A0}")
    ln_finish(b, D, O2, TA+2)
    unpack(b, O2, X, 10, 53)
    layernorm(b, X, D, O2, TA, 53)
    cut = (len(b.items)*opt('LC', 60))//100
    while b.items[cut][1].startswith(("s_nop", "v_add_f32_dpp", "v_perm")): cut += 1
    for it in b.items[:cut]: e.add(it)
    b.items = b.items[cut:]
    e.wvm("xp")
    l0 = lab("tag")
    e(f"s_cmp_lg_u32 s{S_PASS}, 0\ns_cbranch_scc1 {l0}")
    spin(e, TG+1, TG, 1, have=True, cmp=f"v_cmp_eq_u32 vcc, 0, v{TG+1}", srd=S_DBG)
    e(f"v_readfirstlane_b32 s{S_TAG}, v{TG+1}\ns_nop 1\n{l0}:")
    spin(e, T+10, T+9, 1, have=True)
    stamp(e, 3)
    b("s_barrier")
    for k, it in enumerate(QP.w_reads(0)[:8]): b.add(("ds", ("W0", k//4), it[2]))
    for j in range(5): b.ds("hw", f"ds_write_b64 v{A0}, v[{O2+2*j}:{O2+2*j+1}] offset:{256*j}")
    qproj(e, b.items)
    e(f"s_cmp_lg_u32 s{S_PASS}, 0\ns_cbranch_scc1 K_truemax\nK_it0:")
    l0_ = [(g, [("ds", "wor", f"ds_read_b64_tr_b16 {ar(A_K+2*k,2)}, v{V_PFD} offset:{32*(k//2)+2560*(k%2)}")]) for k, g in enumerate((3, 6, 6, 7, 8, 8, 9, 11, 15, 19))]
    l0_.append((23, [("wait", None, "wor")]))
    l0_ += [(27+8*f, [("vm", "wos", f"buffer_store_dwordx4 {ar(A_K+4*f,4)}, v{QP.V_XO}, s[{S_WS}:{S_WS+3}], s{QP.S_WOD} offen{SC}")]) for f in range(5)]
    l0_ += [(31+8*f, R(f"s_add_u32 s{QP.S_WOD}, s{QP.S_WOD}, {OP}")) for f in range(4)]
    l0_ += [(126, [("wait", "wos", None)]), (131, signal(C_H, S_QB, 21))]
    attn_iter(e, 0, first_pv=True, pf=True, late=l0_, kbase=K1B)
    stamp(e, 5)
    e(f"s_mov_b32 s{S_CNT}, 7\ns_mov_b32 s54, s{S_OST}")
    e.mark("loop0")
    for i in range(1, 5): attn_iter(e, i, pf=True)
    e.mark("loop1")
    for i in range(5, 9): attn_iter(e, i, pf=True)
    e.mark("loop2")
    e("K_tail:")
    stamp(e, 6)
    late29 = [(8, poll_ld(V_T, V_HPA, S_DBG)), (129, R(f"v_and_b32 v24, 7, v{V_LANE}\nv_lshl_add_u32 v24, v24, 4, 64"))]
    late29 += [(11+4*(k//2), [it]) for k, it in enumerate(G1.setup1())]
    attn_iter(e, 9, dma=False, late=late29, extra=list(zip([67, 75, 83, 91, 99, 107, 111, 115], G1.wl(0))))
    spin(e, V_T, 24, 8, have=True, cmp=f"v_cmp_gt_u32 vcc, 32, v{V_T}", srd=S_DBG)
    e(f"""s_cmp_eq_u32 s{S_G1}, 0
    s_cbranch_scc1 K_plain
    s_cmp_lg_u32 s{S_PASS}, 0
    s_cbranch_scc1 K_plain""")
    tail_gemm1(e)
    final(e)
    e.mark("cold")
    e("K_plain:")
    tail_plain(e)
    e(f"K_late:\nv_lshlrev_b32 v{FS.V_SD}, 4, v{V_LANE}")
    for it in FS.rot(50): e.add(it)
    spin(e, FS.V_FD, FS.V_FA, opt('SL', 4))
    for g in FS.direct0("untracked") + FS.dma(1, "untracked") + FS.dma(2, "untracked"):
        for it in g: e.add(it)
    e("s_branch K_final")
    e("K_redo_u:\ns_waitcnt lgkmcnt(0)\ns_barrier")
    for it in g1_red_reads(): e.add(it)
    e("s_waitcnt lgkmcnt(0)")
    for it in gelu_items(G1.V_L16, 50): e.add(it)
    e("s_waitcnt lgkmcnt(0)\ns_barrier")
    for part in u_out(G1.V_L16, 50):
        for g in part:
            for it in g: e.add(it)
    e(f"""K_redo:
    s_mov_b32 s{S_PASS}, 1
    s_waitcnt vmcnt(0) lgkmcnt(0)
    s_barrier""")
    for it in signal(C_U, S_UG, V_T+8): e.add(it)
    QP.addr_dma(e, 40)
    e("s_branch K_start")
    KA2 = V_P+32
    e(f"K_truemax:\ns_waitcnt vmcnt(0)\ns_barrier\ns_mov_b32 s{QP.S_WOD}, {WS_SZ}\ns_mov_b32 s50, s{S_W4K}\ns_mov_b32 s51, 33")
    for k in range(4): e(f"v_add_u32 v{KA2+k}, {LDS_SP}, v{V_KA+k}")
    for qb in range(4): e(f"v_mov_b32 v{V_M+4*qb}, 0xff800000")
    e(f"K_mloop:\ns_and_b32 s50, s50, 0x7ffff\ns_add_u32 m0, s{S_W4K}, {LDS_SP}\ns_nop 0")
    for n in range(4): e(f"buffer_load_dwordx4 v{V_DM+(n&1)}, s[{S_K}:{S_K+3}], s50 offen offset:{1024*n} lds")
    e("s_add_u32 s50, s50, 16384\ns_waitcnt vmcnt(0)\ns_barrier")
    for it in k_reads(0, "fb", va=KA2): e.add(it)
    e("s_waitcnt lgkmcnt(0)\ns_barrier")
    for n in range(64):
        kb, qb, ks = n//16, (n//4) % 4, n % 4
        c = "0" if ks == 0 else vr(Sreg(kb,qb), 4)
        e(f"{MF} {vr(Sreg(kb,qb),4)}, {ar(Kreg(kb,ks),4)}, {vr(Qreg(qb,ks),4)}, {c}")
    e("s_nop 7")
    for kb in range(4):
        for qb in range(4):
            sx, m = Sreg(kb,qb), V_M+4*qb
            e(f"v_max3_f32 v{m}, v{m}, v{sx}, v{sx+1}\nv_max3_f32 v{m}, v{m}, v{sx+2}, v{sx+3}")
    e("s_sub_u32 s51, s51, 1\ns_cmp_lg_u32 s51, 0\ns_cbranch_scc1 K_mloop")
    for qb in range(4):
        m = V_M+4*qb
        xlane(e, m, m+1, "v_max_f32")
        e(f"v_sub_f32 v{m}, 0, v{m}\nv_mov_b32 v{m+1}, v{m}\nv_mov_b32 v{m+2}, v{m}\nv_mov_b32 v{m+3}, v{m}")
    for x in range(64): e(f"v_add_f32 v{V_S+x}, v{V_S+x}, v{V_M+4*((x//4)%4)}")
    for x in range(61): e(f"v_exp_f32 v{V_S+x}, v{V_S+x}")
    for x in range(0, 60, 2):
        kb, qb, r = x//16, (x//4) % 4, x % 4
        e(ppack(Preg(0,qb,kb//2)+2*(kb%2)+r//2, V_S+x))
    e("s_nop 1\ns_branch K_it0")
    e("K_exit:\ns_endpgm\nK_last:")
    lines = resolve(e.items)
    i0, i1, i2 = (lines.index(("mark", m)) for m in ("loop0", "loop1", "loop2"))
    b1, b2 = lines[i0+1:i1], lines[i1+1:i2]
    def wle(x, y):
        import re
        mx, my = re.match(r's_waitcnt vmcnt\((\d+)\)(.*)', x), re.match(r's_waitcnt vmcnt\((\d+)\)(.*)', y)
        return mx and my and mx.group(2) == my.group(2)
    b2 = [y if x == y else min(x, y, key=lambda t: int(t.split('(')[1].split(')')[0])) for x, y in zip(b1, b2) if x == y or wle(x, y)]
    assert len(b1) == len(b2), [(x, y) for x, y in zip(b1, b2) if x != y][:5]
    if ts and Ctx.fine == "l":
        b2 = b2 + ["s_memtime s[84:85]", "s_memrealtime s[86:87]", f"s_add_u32 s56, s{S_CNT}, 14", "s_waitcnt lgkmcnt(0)", "v_writelane_b32 v0, s84, s56" if False else "s_mov_b32 m0, s56", "s_nop 1", "v_writelane_b32 v0, s84, m0", "s_add_u32 m0, m0, 32", "s_nop 1", "v_writelane_b32 v0, s86, m0"]
    loop = [("mark", "a64"), "K_loop:"] + b2 + ([f"s_cmp_lg_u32 s{S_CNT}, 0", "s_cbranch_scc1 K_loop"] if opt('LB', 1) else [f"s_sub_u32 s{S_CNT}, s{S_CNT}, 1", f"s_cmp_lg_u32 s{S_CNT}, 0", "s_cbranch_scc1 K_loop"])
    lines = lines[:i0] + loop + lines[i2+1:]
    lines = place_pages(lines)
    ref = open("recurrent_scan__mha_block_cached__mixer_token_mlp__prompt.s.ref").read().split("\n")
    head = [l for l in ref if l.startswith(";") and "@launch" not in l]
    out = head + [f"; @launch grid=(256,1,1) block=(256,1,1) lds={LDS_SZ}", '.amdgcn_target "amdgcn-amd-amdhsa--gfx950"', ".text"]
    out += lines + ['.section .rodata,"a"', kdesc(NAME, 512, 256, 102)]
    return "\n".join(out) + "\n"

if __name__ == "__main__":
    import os
    Ctx.touch = bool(os.environ.get("TOUCH"))
    if os.environ.get("OUT"):
        open(os.environ["OUT"], "w").write(gen(False)); sys.exit(0)
    open("f_nt.s", "w").write(gen(False))
    Ctx.fine = sys.argv[1] if len(sys.argv) > 1 else None
    open("f_ts.s", "w").write(gen(True))
```
